```python
import torch

def _softmax(x, axis=-1):
    return torch.softmax(x, dim=axis)
def _gelu(x):
    return torch.nn.functional.gelu(x, approximate="tanh")
def _silu(x):
    return torch.nn.functional.silu(x)
def _sigmoid(x):
    return torch.sigmoid(x)
def _layernorm(x, axis=-1, eps=1e-5):
    m = x.mean(dim=axis, keepdim=True)
    v = x.var(dim=axis, keepdim=True, unbiased=False)
    return (x - m) / torch.sqrt(v + eps)
def _scatter_add(tgt, idx, src, axis=0):
    return tgt.clone().index_add_(axis, idx, src)
def _segment_sum(src, seg, n):
    out = torch.zeros((n,) + src.shape[1:], dtype=src.dtype)
    return out.index_add_(0, seg, src)
def _pad(x, pw):
    flat = tuple(v for pair in reversed(pw) for v in pair)
    return torch.nn.functional.pad(x, flat)

kernel_name = 'standalone__modern_conv_block_convnext__vision'

def setup_inputs():

    _w = (lambda a: (lambda t: t.to(torch.bfloat16) if t.is_floating_point() else t)(torch.as_tensor(a)))
    H = W = 512
    C = 96
    K = 3
    return {
        "x": _w((lambda *s: torch.randn(*s, dtype=torch.bfloat16) * 0.05)(1, H, W, C)),
        "dw": _w((lambda *s: torch.randn(*s, dtype=torch.bfloat16) * 0.05)(K, K, C)),
        "w1": _w((lambda *s: torch.randn(*s, dtype=torch.bfloat16) * 0.05)(C, 4 * C)),
        "b1": _w((lambda *s: torch.randn(*s, dtype=torch.bfloat16) * 0.2)(4 * C)),
        "w2": _w((lambda *s: torch.randn(*s, dtype=torch.bfloat16) * 0.05)(4 * C, C)),
        "b2": _w((lambda *s: torch.randn(*s, dtype=torch.bfloat16) * 0.2)(C)),
        "gamma": _w((lambda *s: torch.randn(*s, dtype=torch.bfloat16) * 0.05)(C)),
    }

def reference(x, dw, w1, b1, w2, b2, gamma):
    B, H, W, C = x.shape
    K = dw.shape[0]
    pad = K // 2
    xp = _pad(x, ((0,0),(pad,pad),(pad,pad),(0,0)))
    out = torch.zeros_like(x)
    for i in range(K):
        for j in range(K):
            out = out + xp[:, i:i+H, j:j+W, :] * dw[i, j][None, None, None, :]
    h = _layernorm(out, axis=-1)
    h = torch.einsum('bhwc,ce->bhwe', h, w1) + b1
    h = _gelu(h)
    h = torch.einsum('bhwe,ec->bhwc', h, w2) + b2
    return x + gamma[None, None, None, :] * h
```

```python
import re

LOOSE = False
TRANS = ("v_exp_", "v_rcp_", "v_rsq_", "v_log_", "v_sqrt_", "v_sin_", "v_cos_")

def regs_of(op):
    op = op.strip()
    neg = op.lstrip("-|").rstrip("|")
    m = re.fullmatch(r"([vsa])(\d+)", neg)
    if m: return [(m.group(1), int(m.group(2)))]
    m = re.fullmatch(r"([vsa])\[(\d+):(\d+)\]", neg)
    if m: return [(m.group(1), i) for i in range(int(m.group(2)), int(m.group(3)) + 1)]
    if neg == "vcc": return [("s", "vcc")]
    if neg in ("exec", "exec_lo", "exec_hi"): return [("s", "exec")]
    if neg == "m0": return [("s", "m0")]
    return []

class I:
    __slots__ = ("text", "op", "kind", "rd", "wr", "passes", "a", "b", "c", "ws", "trans", "sdwa", "data", "wide", "tag", "cost", "run", "ab", "free", "cap", "conf")
    def __init__(self, text, ws=1, tag=None):
        self.text = text; self.ws = ws; self.tag = tag
        self.passes = 0; self.a = self.b = self.c = (); self.trans = False; self.sdwa = False
        self.data = (); self.wide = False; self.run = 1
        t = text.split(";")[0].strip()
        if t.endswith(":") or t.startswith(".") or not t:
            self.op = ""; self.kind = "label"; self.rd = set(); self.wr = set(); self.ws = 0; self.cost = 0; return
        sp = t.split(None, 1); op = sp[0]; self.op = op
        rest = sp[1] if len(sp) > 1 else ""
        ops = []
        depth = 0; cur = ""
        for ch in rest:
            if ch == "[": depth += 1
            if ch == "]": depth -= 1
            if ch == "," and depth == 0: ops.append(cur.strip()); cur = ""
            else: cur += ch
        mods = ""
        if cur.strip():
            p = cur.strip().split(None, 1); ops.append(p[0]); mods = p[1] if len(p) > 1 else ""
        R = [regs_of(o) for o in ops]
        flat = lambda l: set(x for y in l for x in y)
        self.cost = 0
        if op.startswith("v_mfma") or op.startswith("v_smfmac"):
            self.kind = "mfma"; self.passes = 8 if "32x32" in op else 4
            self.wr = set(R[0]); self.a = tuple(R[1]); self.b = tuple(R[2])
            if op.startswith("v_smfmac"): self.c = tuple(R[0]); self.a = self.a + tuple(R[3])
            else: self.c = tuple(R[3])
            self.rd = set(self.a) | set(self.b) | set(self.c); self.cost = 8
        elif op.startswith("v_"):
            self.kind = "valu"; self.cost = 4
            self.trans = op.startswith(TRANS)
            if self.trans: self.cost = 8
            self.sdwa = "_sdwa" in op or "mixlo" in op or "mixhi" in op
            self.wr = set(R[0]); self.rd = flat(R[1:]); self.ab = flat(R[1:3])
            if "UNUSED_PRESERVE" in mods or op.startswith(("v_fmac", "v_mac", "v_dot2c", "v_fma_mixlo", "v_fma_mixhi")) : self.rd |= set(R[0])
            if "_dpp" in op and ("bank_mask:0xf" not in mods or "row_mask:0xf" not in mods): self.rd |= set(R[0])
            if op.startswith("v_permlane"): self.wr = flat(R); self.rd = flat(R); self.cost = 8
            if op.startswith("v_cndmask") and len(ops) == 3: self.rd.add(("s", "vcc"))
            if op.startswith("v_writelane"): self.rd |= set(R[0])
            if op in ("v_add_co_u32", "v_addc_co_u32", "v_sub_co_u32", "v_mad_u64_u32"): self.wr |= set(R[1]); self.rd = flat(R[2:])
        elif op.startswith("ds_"):
            if "read" in op or "bpermute" in op:
                self.kind = "dsr"; self.wr = set(R[0]); self.rd = flat(R[1:])
            else:
                self.kind = "dsw"; self.wr = set(); self.rd = flat(R); self.data = tuple(flat(R[1:])); self.wide = True
        elif op.startswith("buffer_") or op.startswith("global_"):
            if "load" in op and " lds" not in (" " + mods):
                self.kind = "vml"; self.wr = set(R[0]); self.rd = flat(R[1:])
            elif "load" in op:
                self.kind = "vmd"; self.wr = set(); self.rd = flat(R) | {("s", "m0")}
            else:
                self.kind = "vms"; self.wr = set(); self.rd = flat(R); self.data = tuple(R[0]); self.wide = len(R[0]) >= 3
        elif op.startswith("s_load") or op.startswith("s_mem"):
            self.kind = "sml"; self.wr = set(R[0]); self.rd = flat(R[1:])
        elif op == "s_nop":
            self.kind = "nop"; self.rd = set(); self.wr = set(); self.ws = (int(ops[0], 0) + 1) if ws else 0
        elif op == "s_waitcnt":
            self.kind = "wait"; self.rd = set(); self.wr = set()
        elif op.startswith(("s_barrier", "s_branch", "s_cbranch", "s_setprio", "s_endpgm", "s_sleep")):
            self.kind = "ctl"; self.rd = {("c", "scc")} if "scc" in op else set(); self.wr = set()
        elif op.startswith("s_cmp") or op.startswith("s_bitcmp"):
            self.kind = "salu"; self.rd = flat(R); self.wr = {("c", "scc")}
        elif op.startswith("s_"):
            self.kind = "salu"; self.wr = set(R[0]); self.rd = flat(R[1:])
            if "saveexec" in op: self.wr.add(("s", "exec")); self.rd.add(("s", "exec"))
            if op.startswith(("s_cselect", "s_addc", "s_subb", "s_cmov")): self.rd.add(("c", "scc"))
            if op.startswith(("s_cmov", "s_mulk", "s_addk")): self.rd |= set(R[0])
            if not op.startswith(("s_mov", "s_cselect", "s_mul", "s_cmov", "s_getpc")): self.wr.add(("c", "scc"))
        else:
            raise ValueError("unknown instr " + text)

def use(*regs):
    i = I(""); i.kind = "use"; i.rd = set(r for o in regs for r in (regs_of(o) if isinstance(o, str) else [o])); return i

def parse(x):
    if isinstance(x, I): return [x]
    if isinstance(x, str): return [I(l.strip()) for l in x.split("\n") if l.strip()]
    out = []
    for y in x: out += parse(y)
    return out

class State:
    def __init__(s):
        s.t = 0
        s.vw = {}
        s.mw = {}
        s.mc = {}
        s.sd = {}
        s.m0 = -99
        s.iss = {"vm": 0, "lg": 0}; s.done = {"vm": 0, "lg": 0}
        s.pend = {}
        s.smem = False

def need(st, i):
    n = 0; w = {}
    def req(t0, k):
        nonlocal n
        n = max(n, k - (st.t - t0))
    regs = i.rd | i.wr
    for r in regs:
        if r in st.pend:
            c, seq = st.pend[r]
            if i.kind == "dsr" and c == "lg" and not st.smem and r not in i.rd: continue
            if i.kind in ("vmd", "vml") and c == "vm" and r not in i.rd: continue
            if seq > st.done[c]:
                N = st.iss[c] - seq
                if c == "lg" and st.smem: N = 0
                w[c] = min(w.get(c, 99), N)
    if i.kind in ("dsr", "dsw", "sml") and st.iss["lg"] - st.done["lg"] >= 15 - (1 if i.kind == "sml" else 0):
        w["lg"] = min(w.get("lg", 99), 0 if st.smem else 15 - min(i.run, 6))
    if i.kind in ("vml", "vms", "vmd") and st.iss["vm"] - st.done["vm"] >= 63:
        w["vm"] = min(w.get("vm", 99), 62)
    if i.kind == "mfma":
        for r in i.rd:
            if r in st.vw: req(st.vw[r][0], 3 if st.vw[r][1].op.startswith("v_dot") else 2)
        for r in set(i.a) | set(i.b):
            if r in st.mw: t0, p = st.mw[r]; req(t0, 12 if p.passes == 8 else 8)
        for r in set(i.c) | i.wr:
            if r in st.mw:
                t0, p = st.mw[r]
                same = (p.passes == i.passes and p.wr == set(i.c) and i.wr == set(i.c) and (p.op == i.op or LOOSE))
                if not same:
                    if r in i.c: req(t0, 10 if p.passes == 8 else 6)
                    else: req(t0, 12 if p.passes == 8 else 8)
    elif i.kind == "valu":
        for r in regs:
            if r in st.mw: t0, p = st.mw[r]; req(t0, 12 if p.passes == 8 else 8)
        for r in i.wr:
            if r in st.mc: t0, p = st.mc[r]; req(t0, 7 if p.passes == 8 else 3)
            if r in st.sd: req(st.sd[r], 2)
        for r in i.rd:
            if r in st.vw:
                t0, p = st.vw[r]
                if r[0] == "s": req(t0, 4 if "lane" in i.op else 2)
                if p.trans: req(t0, 1)
                if p.sdwa: req(t0, 1)
                if i.op.startswith("v_permlane") or "dpp" in i.text: req(t0, 2)
                if i.op.startswith(("v_readfirstlane", "v_readlane")): req(t0, 1)
        for r in regs:
            if r in st.vw and st.vw[r][1].op.startswith("v_dot"):
                t0, p = st.vw[r]
                if p.op != i.op or r in i.ab: req(t0, 3)
        for r in i.wr:
            if r in st.vw and st.vw[r][1].sdwa and i.sdwa: req(st.vw[r][0], 1)
    elif i.kind in ("dsr", "dsw", "vml", "vms", "vmd"):
        for r in regs:
            if r in st.mw: t0, p = st.mw[r]; req(t0, 12 if p.passes == 8 else 8)
        for r in i.rd:
            if r[0] == "s" and r in st.vw: req(st.vw[r][0], 5)
            if r[0] == "v" and r in st.vw and (st.vw[r][1].trans or st.vw[r][1].sdwa): req(st.vw[r][0], 1)
        for r in i.wr:
            if r in st.sd: req(st.sd[r], 1)
            if r in st.mc: t0, p = st.mc[r]; req(t0, 7 if p.passes == 8 else 3)
        if i.kind == "vmd": req(st.m0, 1)
    elif i.kind in ("salu", "sml"):
        for r in i.rd:
            if r in st.vw: req(st.vw[r][0], 1)
    return n, w

def apply_wait(st, w):
    for c, N in w.items():
        st.done[c] = max(st.done[c], st.iss[c] - N)
        if c == "lg" and N == 0: st.smem = False
    st.t += 1

def commit(st, i):
    if i.kind == "wait":
        w = {}
        m = re.search(r"vmcnt\((\d+)\)", i.text);  w.update({"vm": int(m.group(1))} if m else {})
        m = re.search(r"lgkmcnt\((\d+)\)", i.text); w.update({"lg": int(m.group(1))} if m else {})
        if st.smem and w.get("lg", 1) != 0: w.pop("lg", None)
        apply_wait(st, w); st.t += i.ws - 1
        return
    st.t += i.ws
    t = st.t
    for r in i.wr:
        st.vw.pop(r, None); st.mw.pop(r, None); st.pend.pop(r, None)
    if i.kind == "valu":
        for r in i.wr: st.vw[r] = (t, i)
    elif i.kind == "mfma":
        for r in i.wr: st.mw[r] = (t, i)
        for r in i.c: st.mc[r] = (t, i)
    elif i.kind in ("dsr", "dsw", "sml"):
        k = 2 if (i.kind == "sml" and len(i.wr) > 1) else 1
        st.iss["lg"] += k
        if i.kind == "sml": st.smem = True
        for r in i.wr: st.pend[r] = ("lg", st.iss["lg"])
    elif i.kind in ("vml", "vms", "vmd"):
        st.iss["vm"] += 1
        for r in i.wr: st.pend[r] = ("vm", st.iss["vm"])
    elif i.kind == "salu" and ("s", "m0") in i.wr: st.m0 = t
    if i.wide:
        for r in i.data: st.sd[r] = t

def resolve(sections, paths):
    ins = {n: [[0, {}] for _ in l] for n, l in sections.items()}
    for l in sections.values():
        run = 0
        for i in reversed(l):
            if i.kind in ("dsr", "dsw"): run += 1; i.run = run
            elif i.kind not in ("salu", "use"): run = 0
    changed = True; it = 0
    while changed:
        changed = False; it += 1
        assert it < 50
        for path in paths:
            st = State()
            for n in path:
                for k, i in enumerate(sections[n]):
                    e = ins[n][k]
                    _, w = need(st, i)
                    for c, N in w.items():
                        if N < e[1].get(c, 99): e[1][c] = N; changed = True
                    if e[1]: apply_wait(st, e[1])
                    nn, w2 = need(st, i)
                    assert not w2 or all(st.iss[c] - st.done[c] <= N for c, N in w2.items()), (i.text, w2)
                    if nn > e[0]: e[0] = nn; changed = True
                    st.t += e[0]
                    commit(st, i)
    out = {}; stats = {}
    for n, l in sections.items():
        L = []; nw = nn = 0
        for i, e in zip(l, ins[n]):
            if e[1]:
                s = "s_waitcnt"
                if "vm" in e[1]: s += f" vmcnt({e[1]['vm']})"
                if "lg" in e[1]: s += f" lgkmcnt({e[1]['lg']})"
                L.append("    " + s); nw += 1
            k = e[0]
            while k > 0:
                q = min(k, 16); L.append(f"    s_nop {q-1}"); k -= q; nn += q
            if i.kind != "use": L.append(i.text if i.kind == "label" else "    " + i.text)
        out[n] = L
        stats[n] = dict(n=len(l), waits=nw, nops=nn, port=sum(i.cost for i in l),
                        mem=sum(i.kind in ("dsr", "dsw", "vml", "vms", "vmd") for i in l))
    return out, stats
```

```python
import sys, struct, math
from asmdsl import I, parse, resolve

KNAME = "standalone__modern_conv_block_convnext__vision_kernel"
def f2u(x): return struct.unpack("<I", struct.pack("<f", x))[0]
def h2u(x): return struct.unpack("<H", struct.pack("<e", x))[0]
A_ = 2 * math.sqrt(2 / math.pi) * math.log2(math.e)
K_ = (A_ * 0.044715) ** (1 / 3)
C_ = A_ / K_
XB = 512 * 512 * 192
ROW = 98304
OOR = 0x10000000
PB = 145408; PBS = 1120
G2 = PB + 2 * PBS + 480
TAB = PB + 8 * PBS; DYS = 3072
LDS = 163840
FO = 3 * PBS
IMG = 49152
assert TAB + 3 * DYS + 16 <= LDS
vXO, vO, vW, vCT, vPW, vPB, vA = 1, 2, (3, 4, 5), 6, 7, (8, 9), (10, 11)
vS, vQ, vRK, vNB = 12, 13, 14, 15
ACC, YN, Y, U, G, T, E, WR, X, ID, RES, SP = 16, 64, 88, 104, 112, 120, 128, 136, 160, 208, 216, 224
def Breg(g, dx): return (SP + 8 + 4 * dx) if g % 2 else [SP, X + 4 * g, SP + 4][dx]
AB = [(SP + 20, SP + 24), (Y, Y + 4)]
vIDX = SP + 28; GK = (SP + 29, SP + 30, SP + 31)
RHO = (0x3021, 0x2130)
def Creg(g): return YN + 4 * (g >> 1) if g % 2 == 0 else [U, U + 4, T, T + 4, E, E + 4][g >> 1]
sW = 3; sX = 20; sO = 24; sDW = 28; sB1 = 32; sB2 = 36; sGA = 40; sW1 = 44; sW2 = 48
sT, sOF, sOF2, sC, sROW, sCOL, sPBW, sSTG = 52, 53, 54, 55, 56, 57, 58, 59
sTMP = 60
sIMG = 86
vDM = X + 28
vN = X + 32
KB = 0.46875
r4 = lambda r: f"v[{r}:{r+3}]"
r16 = lambda r: f"v[{r}:{r+15}]"
srd = lambda s: f"s[{s}:{s+3}]"

def mm32(ty, d, a, b, c=None):
    return I(f"v_mfma_f32_32x32x16_{ty} {r16(d)}, {r4(a)}, {r4(b)}, {r16(d) if c is None else c}")
def waddr(j, f):
    a = 12288 * j + 1024 * f; k = min(a // 61440, 2)
    return vW[k], a - 61440 * k
def wread(j, f, dst):
    v, o = waddr(j, f); return I(f"ds_read_b128 {r4(dst)}, v{v} offset:{o}")
def cread(dst, off): return I(f"ds_read_b128 {r4(dst)}, v{vCT} offset:{off}")

def mix(main, extra):
    extra = sorted(extra, key=lambda e: e[0]); out = []; acc = 0; k = 0
    for m in main:
        while k < len(extra) and extra[k][0] <= acc: out += extra[k][1]; k += 1
        out.append(m); acc += m.cost
    for e in extra[k:]: out += e[1]
    return out

def mksrd(s, p, n): return f"s_mov_b32 s{s}, s{p}\ns_mov_b32 s{s+1}, s{p+1}\ns_mov_b32 s{s+2}, {n}\ns_mov_b32 s{s+3}, 0x20000"

def wbl2():
    i = I("s_barrier"); i.text = "buffer_wbl2 sc1"; i.kind = "vms"; return i
XFL = {}
def xloads(planes): return [I(f"buffer_load_dwordx4 {r4(X+4*g)}, v{vXO}, {srd(sX)}, 0 offen offset:{16*g} {XFL['m'] if g in XFL['mp'] and len(planes) != 5 else XFL['r']}".rstrip()) for g in planes]

def gen(opt):
    S = {}
    XFL.update(m=opt.get("xfl", ""), r=opt.get("xfl2", ""), mp=(0, 4, 1, 5))
    stamp = opt.get("stamp")
    RS, NT = (4, 8) if opt.get("solo") else (8, 4)
    def st(k):
        if not stamp: return []
        if k == 0 and opt.get("rt0"): return parse("s_memtime s[78:79]\ns_waitcnt lgkmcnt(0)\ns_mov_b32 s96, s76\ns_mov_b32 s97, s78")
        if k == 0: return parse("s_memrealtime s[76:77]\ns_memtime s[78:79]\ns_waitcnt lgkmcnt(0)\ns_mov_b32 s96, s76\ns_mov_b32 s97, s78")
        if k == 7: return parse("s_memrealtime s[76:77]\ns_memtime s[78:79]\ns_waitcnt lgkmcnt(0)\ns_mov_b32 s101, s76\ns_mov_b32 s100, s78")
        return parse(f"s_memtime s[78:79]\ns_waitcnt lgkmcnt(0)\ns_mov_b32 s{97+k}, s78")
    def xs(k):
        if not stamp or k not in opt.get("exs", ()): return []
        i = I(f"{'s_memrealtime' if opt.get('exrt') else 's_memtime'} s[{88+2*opt['exs'].index(k)}:{89+2*opt['exs'].index(k)}]"); i.kind = "ctl"; i.wr = set(); return [i]
    def ls(k):
        if not stamp or stamp == 3: return []
        i = I(f"{'s_memrealtime' if stamp == 2 else 's_memtime'} s[{64+2*k}:{65+2*k}]"); i.kind = "ctl"; i.wr = set(); return [i]
    def lsflush():
        if not stamp or stamp == 3: return []
        l = ["s_waitcnt lgkmcnt(0)", f"s_lshl_b32 m0, s{sT}, 4"]
        for k in range(16): l += [f"s_sub_u32 s60, s{64+2*k}, s{96 if stamp == 2 else 97}", "v_writelane_b32 v0, s60, m0", "s_add_u32 m0, m0, 1"]
        return parse(l)
    dmcalc = parse(f"""
v_and_b32 v20, 0x3c, v17
v_lshrrev_b32 v21, 4, v17
v_xor_b32 v21, v21, v17
v_and_b32 v21, 3, v21
v_lshlrev_b32 v21, 4, v21
""" + "\n".join(f"ds_bpermute_b32 v{vDM+k}, v20, v{vXO} offset:{64*k}" for k in range(4)) + "\n" +
        "\n".join(f"v_add_u32 v{vDM+k}, v{vDM+k}, v21" for k in range(4)))
    S["head"] = parse(f"""
s_cmp_ge_u32 s2, 256
s_cbranch_scc1 L_end
s_load_dwordx16 s[4:19], s[0:1], 0
v_lshrrev_b32 v16, 6, v0
v_and_b32 v17, 63, v0
v_readfirstlane_b32 s{sW}, v16
s_and_b32 s60, s2, 7
s_lshl_b32 s60, s60, 5
s_lshr_b32 s61, s2, 3
s_add_u32 s60, s60, s61
s_lshr_b32 s61, s60, 4
s_and_b32 s60, s60, 15
s_lshl_b32 s61, s61, 5
s_lshl_b32 s60, s60, 5
s_lshr_b32 s62, s{sW}, 2
s_lshl_b32 s62, s62, 2
s_add_u32 s{sROW}, s61, s62
s_and_b32 s62, s{sW}, 3
s_lshl_b32 s62, s62, 3
s_add_u32 s{sCOL}, s60, s62
s_mul_i32 s61, s{sROW}, {ROW}
s_mul_i32 s62, s{sCOL}, 192
s_add_u32 s63, s61, s62
s_sub_u32 s64, s63, {ROW+192}
s_sub_u32 s65, s{sCOL}, 1
s_xor_b32 s{sPBW}, s{sW}, 4
s_mul_i32 s{sIMG}, s{sW}, 12288
s_add_u32 s{sIMG}, s{sIMG}, {IMG}
s_mul_i32 s{sPBW}, s{sPBW}, {PBS}
s_add_u32 s{sPBW}, s{sPBW}, {PB}
v_and_b32 v22, 31, v17
v_lshrrev_b32 v26, 5, v17
v_mul_u32_u24 v18, 205, v22
v_lshrrev_b32 v18, 11, v18
v_mul_u32_u24 v19, 10, v18
v_sub_u32 v19, v22, v19
v_mad_i32_i24 v20, v18, -2, 5
v_mad_i32_i24 v18, v26, v20, v18
v_mul_u32_u24 v20, {ROW}, v18
v_mul_u32_u24 v21, 192, v19
v_add3_u32 v{vXO}, v20, v21, s64
v_add_u32 v20, s65, v19
v_cmp_gt_u32 vcc, 0x200, v20
v_cmp_gt_u32 s[66:67], 30, v22
v_bfrev_b32 v21, 1
s_and_b64 vcc, vcc, s[66:67]
v_cndmask_b32 v{vXO}, v21, v{vXO}, vcc
""") + dmcalc + st(0) + parse(f"""
{mksrd(sX, 4, XB)}""") + xs("h1") + parse(f"""
{mksrd(sGA, 16, 192)}
{mksrd(sW2, 12, 73728)}
s_cmp_ge_u32 s{sW}, 4
s_cbranch_scc1 L_late
""")
    lanec = f"""
v_mad_u32_u24 v22, v26, 40, v22
v_lshl_add_u32 v22, v22, 4, s{sPBW}
v_mov_b32 v23, {OOR}
s_movk_i32 s68, {DYS}
v_cndmask_b32 v{vPW}, v23, v22, s[66:67]
v_and_b32 v18, 15, v17
v_lshrrev_b32 v19, 4, v17
""" + (f"""v_lshrrev_b32 v27, 3, v18
v_mul_u32_u24 v20, 15, v27
v_xor_b32 v20, v20, v18
v_and_b32 v21, 3, v20
v_lshl_add_u32 v21, v21, 1, v27
v_lshrrev_b32 v20, 2, v20
""" if opt.get("st128") else f"""v_add_u32 v20, 4, v18
v_lshrrev_b32 v20, 3, v20
v_lshlrev_b32 v21, 2, v20
v_sub_u32 v21, v18, v21
v_and_b32 v20, 1, v20
""") + f"""v_and_b32 v22, 1, v19
v_lshl_add_u32 v22, v20, 1, v22
v_mul_u32_u24 v24, {ROW}, v22
v_mul_u32_u24 v25, 192, v21
v_add3_u32 v24, v24, v25, s63
v_lshl_add_u32 v{vO}, v26, 4, v24
""" + (f"""v_and_b32 v24, 1, v19
v_mul_u32_u24 v24, {ROW-32}, v24
v_sub_u32 v{vO}, v{vO}, v24
""" if opt.get("st64") or opt.get("st128") else "") + (f"""v_lshlrev_b32 v27, 7, v27
v_sub_u32 v{vO}, v{vO}, v27
""" if opt.get("st128") else "") + f"""v_lshlrev_b32 v19, 2, v19
v_bfe_u32 v27, v18, 2, 1
v_and_b32 v22, 3, v18
v_mul_u32_u24 v{vIDX}, 17, v22
v_lshrrev_b32 v24, 3, v18
v_lshl_add_u32 v22, v24, 2, v22
v_lshlrev_b32 v22, 5, v22
v_add_u32 v22, {TAB}, v22
""" + "".join(f"""v_mov_b32 v24, {hex(RHO[p])}
v_bfe_u32 v24, v24, v19, 4
v_lshl_add_u32 v25, v20, 1, v24
v_sub_u32 v24, v24, v27
v_cmp_gt_u32 vcc, 3, v25
v_mul_u32_u24 v25, 10, v25
v_sub_u32 v28, 90, v25
v_cndmask_b32 v25, v28, v25, vcc
v_add_u32 v25, v25, v21
v_lshl_add_u32 v{vPB[p]}, v25, 4, s{sPBW}
v_cmp_gt_u32 vcc, 3, v24
v_lshrrev_b32 v25, 1, v24
v_lshl_add_u32 v25, v25, 4, v22
v_mad_u32_u24 v25, v24, s68, v25
v_cndmask_b32 v{vA[p]}, v23, v25, vcc
""" for p in range(2)) + f"""v_lshlrev_b32 v{vW[0]}, 4, v17
v_add_u32 v{vW[1]}, 61440, v{vW[0]}
v_add_u32 v{vW[2]}, 122880, v{vW[0]}
v_lshlrev_b32 v{vCT}, 4, v26
v_add_u32 v{vCT}, {G2}, v{vCT}
v_bfe_u32 v20, v17, 1, 1
v_bfe_u32 v21, v17, 3, 2
v_lshl_add_u32 v20, v21, 1, v20
v_bfe_u32 v21, v17, 2, 1
v_cmp_eq_u32 vcc, v21, v26
v_and_b32 v22, 1, v17
v_lshlrev_b32 v22, 4, v22
v_mov_b32 v24, 0x3f80
v_lshlrev_b32 v22, v22, v24
v_cndmask_b32 v20, 15, v20, vcc
""" + "\n".join(f"v_cmp_eq_u32 vcc, {r}, v20\nv_cndmask_b32 v{ID+r}, 0, v22, vcc" for r in range(8)) + f"""
{mksrd(sO, 18, XB)}
s_and_b32 s{sSTG}, s{sW}, 3
s_mov_b32 s{sT}, 0
s_mov_b32 s{sOF}, 0
s_mov_b32 s{sOF2}, {ROW}
s_mov_b32 s{sC}, {h2u(C_) * 0x10001}
"""
    sig = f"""
v_and_b32 v30, 0x13, v17
v_lshrrev_b32 v31, 1, v17
v_and_or_b32 v30, v31, 4, v30
v_lshlrev_b32 v29, 1, v17
v_and_or_b32 v30, v29, 8, v30
v_lshlrev_b32 v12, 1, v30
v_and_b32 v30, 3, v17
v_and_or_b32 v30, v31, 4, v30
v_lshlrev_b32 v29, 3, v17
v_and_or_b32 v30, v29, 32, v30
v_lshlrev_b32 v29, 2, v17
v_and_or_b32 v30, v29, 64, v30
v_lshrrev_b32 v31, 5, v17
v_lshlrev_b32 v31, 4, v31
v_mul_u32_u24 v13, 192, v30
v_add_u32 v13, v13, v31
s_mov_b32 s70, {280*192}
"""
    def gload(bs): return "\n".join(f"buffer_load_ushort v{GK[b]}, v12, {srd(sGA)}, 0 offen offset:{64*b}" for b in bs) + "\n" + \
            "\n".join(f"buffer_load_dwordx4 {r4(SP+16+4*s)}, v13, {srd(sW2)}, s70 offen offset:{128+32*s}" for s in range(2))
    def gprep(bs): return "\n".join(f"v_lshlrev_b32 v{GK[b]}, 16, v{GK[b]}\nv_mul_f32 v{GK[b]}, {hex(f2u(1/K_))}, v{GK[b]}" for b in bs)
    def xpose(d, src, c="0"):
        return [mm32("bf16", d, src, ID, c), mm32("bf16", d, src + 4, ID + 4)]
    def fin_w2(d, dst, b, gk=GK):
        return parse([f"v_mul_f32 v{d+i}, v{gk[b]}, v{d+i}" for i in range(16)] +
                     [f"v_cvt_pk_f16_f32 v{dst+i}, v{d+2*i}, v{d+2*i+1}" for i in range(8)] +
                     ([f"v_and_b32 v{dst+i}, {opt['w2mask']}, v{dst+i}" for i in range(8)] if "w2mask" in opt else []))
    resprep = xpose(SP, SP + 16) + fin_w2(SP, RES, 2)
    IMGR = ("x", "img")
    def xdma():
        l = []
        for k in range(4):
            for Gq in range(3):
                i = I(f"buffer_load_dwordx4 v{vDM+k}, {srd(sX)}, 0 offen offset:{64*Gq} {opt.get('dfl', 'nt')} lds")
                if (k, Gq) == (3, 2): i.wr = {IMGR}
                l += parse(f"s_add_u32 m0, s{sIMG}, {4096*Gq + 1024*k - 64*Gq}") + [i]
        return l
    def ximg():
        E = WR
        l = parse(f"v_lshrrev_b32 v{E}, 2, v{vW[0]}\nv_bfe_u32 v{E+1}, v{vW[0]}, 6, 2\nv_lshlrev_b32 v{E+1}, 4, v{E+1}\nv_lshl_add_u32 v{E}, v{E}, 4, v{E+1}\nv_add_u32 v{E}, s{sIMG}, v{E}")
        l += parse([f"v_xor_b32 v{E+i}, {16*i}, v{E}" for i in (1, 2, 3)])
        for g in range(12):
            i = I(f"ds_read_b128 {r4(X+4*g)}, v{E+(g&3)} offset:{4096*(g>>2)}"); i.rd = i.rd | {IMGR}; l.append(i)
        return l
    def signal(n): return parse(f"v_mov_b32 v15, {hex(1 << 4*n)}\ns_mov_b64 exec, 1\nds_add_u32 v{vCT}, v15 offset:{FO}\ns_mov_b64 exec, -1")
    def poll(n, cnt, tag, first=False, extra=""):
        l = parse(f"L_pl{tag}:\nds_read_b32 v15, v{vCT} offset:{FO}\ns_waitcnt lgkmcnt(0)\nv_readfirstlane_b32 s60, v15\ns_nop 0\n"
                  f"s_bfe_u32 s60, s60, {hex(4*n | 4 << 16)}\ns_cmp_lt_u32 s60, {cnt}\ns_cbranch_scc1 L_pl{tag}\n{extra}")
        if not first: return l
        for i in l:
            if i.kind != "label": i.kind = "ctl"; i.wr = set(); i.ws = 0
        return parse(f"s_cmp_lg_u32 s{sT}, 0\ns_cbranch_scc1 L_pe{tag}") + l + parse(f"L_pe{tag}:")
    S["early"] = xs("e0") + (parse(sig + gload([2])) + xdma() if opt.get("gfirst", 1) else xdma() + parse(sig + gload([2]))) + xs("e1") + parse(lanec) + xs("e3") + parse(gprep([2])) + resprep + xs("e4") + \
        parse("s_barrier") + st(1) + ximg() + signal(3) + st(2) + xs("e5") + parse("s_branch L_conv0")
    L = parse(f"""L_late:
s_setprio {opt.get("priolate", 3)}
{mksrd(sW1, 8, 73728)}
{mksrd(sDW, 6, 1728)}
{mksrd(sB1, 10, 768)}
{mksrd(sB2, 14, 192)}
v_subrev_u32 v0, 256, v0
v_lshlrev_b32 v32, 3, v0
s_sub_u32 s71, s{sW}, 4
s_mov_b32 s69, {G2}
s_lshr_b32 s72, s2, 3
s_lshl_b32 s72, s72, 2
s_add_u32 s72, s72, s71
s_mul_i32 s72, s72, 640
v_lshlrev_b32 v33, 7, v17
v_cmp_gt_u32 vcc, 5, v17
v_bfrev_b32 v42, 1
v_cndmask_b32 v33, v42, v33, vcc
v_mul_u32_u24 v52, 1366, v0
v_lshrrev_b32 v52, 16, v52
v_mul_u32_u24 v53, 384, v52
v_lshl_add_u32 v53, v0, 2, v53
buffer_load_dword v34, v53, {srd(sDW)}, 0 offen
buffer_load_dword v35, v53, {srd(sDW)}, 0 offen offset:192
buffer_load_dword v36, v53, {srd(sDW)}, 0 offen offset:384
buffer_load_dwordx2 v[38:39], v32, {srd(sB2)}, 0 offen
buffer_load_dwordx2 v[40:41], v32, {srd(sGA)}, 0 offen
buffer_load_dword v64, v33, {srd(sW1)}, s72 offen
buffer_load_dword v65, v33, {srd(sW2)}, s72 offen
{sig}
{gload(range(3))}
v_bfe_u32 v14, v17, 2, 1
v_bfe_u32 v29, v17, 3, 2
v_lshl_add_u32 v14, v14, 2, v29
v_mul_u32_u24 v14, 768, v14
v_lshl_add_u32 v14, v31, 2, v14
v_and_b32 v29, 3, v17
v_lshl_add_u32 v14, v29, 4, v14
v_lshlrev_b32 v{vN}, 2, v31
v_lshl_add_u32 v{vN}, v29, 4, v{vN}
v_add_u32 v30, 64, v0
v_and_b32 v30, 0x11c, v30
v_cmp_eq_u32 vcc, 0x11c, v30
v_bfrev_b32 v30, 1
v_cndmask_b32 v{vN+1}, v30, v{vN}, vcc
""") + xs("l0") + parse(f"""
{lanec}
v_lshrrev_b32 v52, 1, v52
v_lshlrev_b32 v33, 6, v0
v_lshl_add_u32 v33, v52, 4, v33
v_add_u32 v33, {TAB}, v33
v_cmp_gt_u32 vcc, 144, v0
v_cndmask_b32 v33, v23, v33, vcc
v_and_b32 v52, 3, v0
v_lshl_add_u32 v53, v52, 2, v33
v_lshrrev_b32 v52, 1, v52
v_lshl_add_u32 v52, v52, 2, v33
v_and_b32 v43, 4, v0
v_bfe_u32 v42, v0, 1, 1
v_and_b32 v44, 1, v0
v_lshl_or_b32 v42, v44, 1, v42
v_or_b32 v43, v43, v42
v_lshlrev_b32 v43, 4, v43
v_lshrrev_b32 v42, 3, v0
v_mul_u32_u24 v42, {PBS}, v42
v_add3_u32 v43, v43, v42, s69
v_cmp_gt_u32 vcc, 24, v0
v_cndmask_b32 v43, v23, v43, vcc
v_mov_b32 v44, 0
v_mov_b32 v45, 0
v_mov_b32 v46, 0
v_mov_b32 v47, 0
ds_write_b32 v{vCT}, v45 offset:{FO}
ds_write_b128 v33, v[44:47]
ds_write_b128 v33, v[44:47] offset:16
ds_write_b128 v33, v[44:47] offset:32
ds_write_b128 v33, v[44:47] offset:48
ds_write_b16 v53, v34
ds_write_b16_d16_hi v53, v34 offset:34
ds_write_b16 v52, v35 offset:16
ds_write_b16_d16_hi v52, v35 offset:48
ds_write_b16 v52, v36 offset:24
ds_write_b16_d16_hi v52, v36 offset:56
v_lshlrev_b32 v56, 16, v38
v_and_b32 v57, 0xffff0000, v38
v_lshlrev_b32 v58, 16, v39
v_and_b32 v59, 0xffff0000, v39
v_lshlrev_b32 v60, 16, v40
v_and_b32 v61, 0xffff0000, v40
v_lshlrev_b32 v62, 16, v41
v_and_b32 v63, 0xffff0000, v41
v_mul_f32 v56, v56, v60
v_mul_f32 v57, v57, v61
v_mul_f32 v58, v58, v62
v_mul_f32 v59, v59, v63
ds_write_b128 v43, v[56:59]
{gprep(range(3))}
""") + resprep + parse(f"""
s_mul_i32 s72, s71, {3*6144}
s_mul_i32 s73, s71, {8*192}
s_mul_i32 s74, s71, 12288
v_add_u32 v12, s74, v{vW[0]}
s_cmp_eq_u32 s{sW}, 7
s_cselect_b32 s75, {OOR}, 0
s_mul_i32 s80, s71, 3
""")
    for t in range(3):
        L += parse(f"s_add_u32 s81, s80, {t}\ns_lshr_b32 s82, s81, 1\ns_lshl_b32 s82, s82, 10\ns_and_b32 s81, s81, 1\ns_lshl_b32 s81, s81, 3\ns_add_u32 s{83+t}, s81, s82")
    L += xs("l1") + parse("s_waitcnt vmcnt(0) lgkmcnt(0)\ns_barrier") + xs("l2")
    WL = 16
    R95 = (E, X, E); RB1 = (WR + 16, X + 8, WR + 16); N95 = WR
    def nprep(i): return parse([f"v_xor_b32 v{R95[i]+q}, 0x80008000, v{R95[i]+q}" for q in range(8)]) + xpose(N95, R95[i])
    def uxpose(n):
        i, k, c = units[n]; l = xpose(accs[n], src(units[n]), r16(N95) if k == "w1" else "0")
        if k == "w1" and c == 0: l = nprep(i) + l
        if k == "w1" and c == 2: l += xpose(accs[n], RB1[i], None)
        return l
    def uload(u):
        i, k, c = u
        if k == "w1":
            l = []
            if c == 0: l += parse(f"s_mov_b32 s74, {95*768 + 256*i}") + [I(f"buffer_load_dwordx4 {r4(R95[i]+4*s)}, v{vN}, {srd(sW1)}, s74 offen offset:{128*s}") for s in range(2)]
            if c == 2: l += [I(f"buffer_load_dwordx4 {r4(RB1[i]+4*s)}, v{vN+1}, {srd(sB1)}, 0 offen offset:{256*i+128*s}") for s in range(2)]
            return l + parse(f"s_add_u32 s74, s72, {6144*c + 256*i}") + \
                [I(f"buffer_load_dwordx4 {r4(src(u)+4*s)}, v14, {srd(sW1)}, s74 offen offset:{128*s}") for s in range(2)]
        return parse(f"s_add_u32 s74, s73, {24576*i}") + \
            [I(f"buffer_load_dwordx4 {r4(src(u)+4*s)}, v13, {srd(sW2)}, s74 offen offset:{64*c+32*s}") for s in range(2)]
    AH = opt.get("wahead", 6)
    units = []
    for i in range(3):
        for t in range(3): units.append((i, "w1", t))
        for b in range(3): units.append((i, "w2", b))
    def src(u): return WL + 8 * (units.index(u) % 12)
    accs = [SP if n % 2 == 0 else WL + 96 for n in range(len(units))]
    assert AH <= 10
    P = []
    for u in units[:AH]: P += uload(u)
    P += uxpose(0)
    for n, u in enumerate(units):
        if n + 1 < len(units) and n % 6 != 5: P += uxpose(n + 1)
        if n + AH < len(units): P += uload(units[n + AH])
        if n == opt.get("xlate", 5) and not opt.get("solo"): P += xdma()
        if n == 6: P += poll(3, 4, "i4")
        if n == 12 and not opt.get("solo"): P += poll(3, 8, "i8")
        i, k, c = u; d = accs[n]; dst = src(u)
        if k == "w1":
            P += parse(f"v_add_u32 v15, s{83+c}, v{vW[0]}\ns_add_u32 s{83+c}, s{83+c}, 49152")
            for q in range(4):
                P += parse([f"v_cvt_pk_bf16_f32 v{dst+2*q+h}, v{d+8*h+q}, v{d+8*h+4+q}" for h in range(2)])
                P.append(I(f"ds_write_b64 v15, v[{dst+2*q}:{dst+2*q+1}] offset:{12288*q}"))
        else:
            P += fin_w2(d, dst, c); off = 6144 + 2048 * c
            if (i, c) == (2, 2): P += parse("v_add_u32 v12, s75, v12")
            P += [I(f"ds_write_b128 v12, {r4(dst+4*q)} offset:{off+1024*q}") for q in range(2)]
            if c == 2:
                if i < 2: P += parse("v_add_u32 v12, 49152, v12")
                P += signal(i) + xs(f"l{i+3}" if i < 2 else "l7")
                if i == 1 and not opt.get("solo"): P += ximg() + signal(3) + xs("l5")
                if i < 2: P += uxpose(n + 1)
    L += P
    if opt.get("solo"): L += parse("s_waitcnt lgkmcnt(0)\ns_endpgm")
    L += parse(f"s_setprio {opt.get('prio0', 0)}") + st(1) + st(2)
    S["late"] = L
    def epilogue(fin=False):
        M = []
        for b in range(3):
            for s in range(2):
                a = WR + 4 * (2 * b + s) if b < 2 else RES + 4 * s
                M.append(mm32("f16", ACC + 16 * b, a, G + 4 * s))
        C = []
        if opt.get("st128"):
            sfl = opt.get("sfl", "") if not fin else opt.get("sflf", opt.get("sfl", ""))
            dst = (ACC, ACC + 8, ACC + 32); R = (ACC, ACC + 16, ACC + 32)
            for b in range(3):
                d = ACC + 16 * b
                C.append(parse([f"v_cvt_pk_bf16_f32 v{dst[b]+4*s+q}, v{d+8*s+2*q}, v{d+8*s+2*q+1}" for s in range(2) for q in range(4)] +
                               [f"v_permlane16_swap_b32 v{dst[b]+q}, v{dst[b]+4+q}" for q in range(4)]))
            sto = lambda i: [I(f"buffer_store_dwordx4 {r4(R[i]+4*s)}, v{vO}, {srd(sO)}, s{(sOF, sOF2)[s]} offen offset:{128*i} {sfl}".rstrip()) for s in range(2)]
            dpp = lambda d, x, pat, bm: parse([f"v_mov_b32_dpp v{d+q}, v{x+q} {pat} row_mask:0xf bank_mask:{bm}" for q in range(8)])
            C[1] += parse([f"v_mov_b32 v{R[1]+q}, v{R[0]+q}" for q in range(8)]) + dpp(R[0], dst[1], "row_mirror", "0xc") + sto(0)
            C[2] += dpp(R[1], R[2], "quad_perm:[0,1,2,3]", "0x3") + sto(1) + dpp(R[2], dst[1], "row_mirror", "0x3") + sto(2)
            return M, C
        for b in range(3):
            d = ACC + 16 * b; c = []
            sfl = opt.get("sfl", "") if not fin else opt.get("sflf", opt.get("sfl", ""))
            if opt.get("st64"):
                c += parse([f"v_cvt_pk_bf16_f32 v{d+4*s+q}, v{d+8*s+2*q}, v{d+8*s+2*q+1}" for s in range(2) for q in range(4)])
                c += parse([f"v_permlane16_swap_b32 v{d+q}, v{d+4+q}" for q in range(4)])
                c += [I(f"buffer_store_dwordx4 {r4(d+4*s)}, v{vO}, {srd(sO)}, s{(sOF, sOF2)[s]} offen offset:{64*b} {sfl}".rstrip()) for s in range(2)]
                C.append(c); continue
            for s in range(2):
                c += parse([f"v_cvt_pk_bf16_f32 v{d+4*s+q}, v{d+8*s+2*q}, v{d+8*s+2*q+1}" for q in range(4)])
                c.append(I(f"buffer_store_dwordx4 {r4(d+4*s)}, v{vO}, {srd(sO)}, s{sOF} offen offset:{64*b+32*s} {sfl}".rstrip()))
            C.append(c)
        return M, C
    def plane_ld(g):
        p = g % 2
        a = [I(f"ds_read_b128 {r4(AB[p][h])}, v{vA[p]} offset:{256*g+16*h}") for h in range(2)]
        w = [I(f"ds_write_b128 v{vPW}, {r4(X+4*g)}")]
        b = [I(f"ds_read_b128 {r4(Breg(g, dx))}, v{vPB[p]} offset:{16*dx}") for dx in range(3)]
        return [w + a[0:1] + b[0:1], b[1:2], a[1:2] + b[2:3]]
    def plane_mm(g):
        a = AB[g % 2]; c = Creg(g)
        return [I(f"v_mfma_f32_16x16x32_bf16 {r4(c)}, {r4(a[0])}, {r4(Breg(g, 0))}, 0")] + \
               [I(f"v_smfmac_f32_16x16x32_bf16 {r4(c)}, v[{a[1]+2*dx-2}:{a[1]+2*dx-1}], {r4(Breg(g, dx))}, v{vIDX}") for dx in (1, 2)]
    def resmerge(g):
        return parse([f"v_mov_b32_dpp v{X+4*g-4+r}, v{Breg(g, 1)+r} quad_perm:[0,1,2,3] row_mask:0xc bank_mask:0xf" for r in range(4)])
    def stats(g):
        c = Creg(g); l = []
        if opt.get("pkst"):
            for r in (0, 2):
                p = f"v[{c+r}:{c+r+1}]"
                if g == 0 and r == 0: l += [f"v_pk_mul_f32 v[14:15], {p}, {p}"]
                elif g == 0: l += [f"v_pk_add_f32 v[12:13], v[{c}:{c+1}], {p}", f"v_pk_fma_f32 v[14:15], {p}, {p}, v[14:15]"]
                else: l += [f"v_pk_add_f32 v[12:13], v[12:13], {p}", f"v_pk_fma_f32 v[14:15], {p}, {p}, v[14:15]"]
            if g == 11: l += ["v_add_f32 v12, v12, v13", "v_add_f32 v13, v14, v15"]
            return parse(l)
        for r in range(4):
            if g == 0 and r == 0: l += [f"v_mul_f32 v{vQ}, v{c}, v{c}"]
            elif g == 0 and r == 1: l += [f"v_add_f32 v{vS}, v{c}, v{c+1}", f"v_fmac_f32 v{vQ}, v{c+1}, v{c+1}"]
            else: l += [f"v_add_f32 v{vS}, v{vS}, v{c+r}", f"v_fmac_f32 v{vQ}, v{c+r}, v{c+r}"]
        return parse(l)
    def cbar(k): return poll(k, 4, f"w{k}", k > 0, f"s_setprio {opt.get('prio0', 0)}" if k == 2 else "")
    flat = lambda ll: [x for l in ll for x in l]
    cinit = lambda: [[cread(ACC + 16 * b + 4 * a, PBS * b + 32 * a) for a in range(4)] for b in range(3)]
    def conv(first):
        B = ls(0)
        EM, EC = epilogue()
        if first: EM = []; EC = [[], [], []]
        elif opt.get("stag"): B += parse("s_waitcnt vmcnt(0)")
        B += flat(plane_ld(0))
        p1 = plane_ld(1)
        B += EM[0:2] + p1[0] + EM[2:4] + p1[1] + EM[4:6] + p1[2]
        ci = cinit()
        for g in range(12):
            mm = plane_mm(g)
            nx = plane_ld(g + 2) if g + 2 < 12 else [[], [], []]
            fill = []
            if g < 3: fill += EC[g]
            if g >= 1: fill += stats(g - 1)
            n3 = (len(fill) + 2) // 3
            rm = resmerge(g) if g % 2 else []
            if opt.get("cfill", 1):
                fill = rm + fill; n1 = max(5, (len(fill) + 2) // 3); n2 = n1 + (len(fill) - n1 + 1) // 2
                B += [mm[0]] + fill[:n1] + [mm[1]] + nx[0] + fill[n1:n2] + [mm[2]] + nx[1] + fill[n2:] + nx[2]
            else: B += [mm[0]] + fill[:n3] + [mm[1]] + nx[0] + rm + fill[n3:2 * n3] + [mm[2]] + nx[1] + fill[2 * n3:] + nx[2]
            if g == 2 and not first: B += parse(f"s_add_u32 s{sOF}, s{sOF}, {RS*ROW}\ns_add_u32 s{sOF2}, s{sOF2}, {RS*ROW}")
            if g in (3, 4, 5): B += ci[g - 3]
            if g == 5: B += ls(1)
            if g == 9 and first: B += cbar(0) if not opt.get("pkst") else [I(i.text.replace("v15", "v0")) for i in cbar(0)]
            if g >= 10: B += [wread(0, 3 * (g - 10) + q, WR + 4 * (3 * (g - 10) + q)) for q in range(3)]
        return B
    B = parse("L_mid:")
    B += stats(11) + ls(2)
    B += parse(f"""
v_permlane32_swap_b32 v{vS}, v{vQ}
v_add_f32 v{vS}, v{vS}, v{vQ}
v_mov_b32 v{vQ}, v{vS}
v_permlane32_swap_b32 v{vS}, v{vQ}
v_mul_f32 v{vS}, {hex(f2u(1/96))}, v{vS}
v_mul_f32 v{vQ}, {hex(f2u(1/96))}, v{vQ}
v_fma_f32 v{vQ}, -v{vS}, v{vS}, v{vQ}
v_max_f32 v{vQ}, 0, v{vQ}
v_add_f32 v{vQ}, {hex(f2u(1e-5))}, v{vQ}
v_rsq_f32 v{vRK}, v{vQ}
v_add_u32 v{vXO}, {RS*ROW}, v{vXO}
v_mul_f32 v{vRK}, {hex(f2u(K_))}, v{vRK}
s_cmp_eq_u32 s{sT}, {NT-1}
s_cselect_b32 s{sSTG}, 99, s{sSTG}
v_mul_f32 v{vNB}, -v{vS}, v{vRK}
""")
    for kk in range(6):
        ce, co = Creg(2 * kk), Creg(2 * kk + 1)
        n = [f"v_fma_f32 v{c+r}, v{c+r}, v{vRK}, v{vNB}" for c in (ce, co) for r in range(4)]
        if opt.get("pknorm"): n = [f"v_pk_fma_f32 v[{c+r}:{c+r+1}], v[{c+r}:{c+r+1}], v[14:15], v[14:15] op_sel:[0,0,1] op_sel_hi:[1,0,1]" for c in (ce, co) for r in (0, 2)]
        if kk == 5: n = n + ["s_mov_b32 exec_lo, 0", f"v_mov_b32 v{co+3}, {hex(f2u(KB))}", "s_mov_b32 exec_lo, -1"]
        if 0: n = n[:7] + [n[7], "s_mov_b32 exec_lo, 0", f"v_mov_b32 v{co+3}, {hex(f2u(KB))}", "s_mov_b32 exec_lo, -1"]
        n += [f"v_cvt_pk_bf16_f32 v{ce}, v{ce}, v{ce+1}", f"v_cvt_pk_bf16_f32 v{ce+1}, v{ce+2}, v{ce+3}",
              f"v_cvt_pk_bf16_f32 v{ce+2}, v{co}, v{co+1}", f"v_cvt_pk_bf16_f32 v{ce+3}, v{co+2}, v{co+3}"]
        n = parse(n)
        if kk: n = n[:2] + [mm32("bf16", Y, WR + 4 * (kk - 1), YN + 4 * (kk - 1), "0" if kk == 1 else None), wread(1, kk - 1, WR + 4 * (kk - 1))] + n[2:]
        B += n
    B += [mm32("bf16", Y, WR + 20, YN + 20), wread(1, 5, WR + 20)]
    pre = opt.get("pre", {-1: [1, 3, 5, 7], 0: [9, 11], 1: [0, 2], 2: [4, 6], 3: [8, 10]})
    stag = opt.get("stag")
    def cload(d, planes, tag):
        l = xloads(planes)
        for i in l: i.kind = "ctl"; i.wr = set(); i.ws = 0
        return [I(f"s_cmp_lg_u32 s{sSTG}, {d}"), I(f"s_cbranch_scc1 L_x{tag}")] + l + [I(f"L_x{tag}:")]
    spre = {}
    if stag:
        pre = {}
        rest = [0, 2, 3, 4, 6, 7, 8, 9, 10, 11]
        for d in range(4):
            m = stag[0] + stag[1] * d; r = m + stag[2]; nb = opt.get("restn", 2); q = 10 // nb
            spre.setdefault(m, []).append(cload(d, [1, 5], f"m{d}"))
            for k in range(nb): spre.setdefault(r + k, []).append(cload(d, rest[q*k:q*k+q], f"r{d}_{k}"))
        B += flat(spre.get(-1, []))
    B += xloads(pre.get(-1, []))
    prio = opt.get("prio", {}); cbp = opt.get("cbp", (3, 7))
    def sd(op, d, s): return f"{op}_sdwa v{d}, v{s} dst_sel:WORD_1 dst_unused:UNUSED_PRESERVE src0_sel:WORD_1"
    for j in range(12):
        V = [f"v_cvt_pk_f16_f32 v{U+i}, v{Y+2*i}, v{Y+2*i+1}" for i in range(8)]
        V += [f"v_pk_fma_f16 v{T+i}, v{U+i}, v{U+i}, s{sC}" for i in range(8)]
        V += [f"v_pk_mul_f16 v{T+i}, v{T+i}, v{U+i} neg_lo:[1,0] neg_hi:[1,0]" for i in range(8)]
        V += [f"v_exp_f16 v{E+i}, v{T+i}" for i in range(8)] + [sd("v_exp_f16", E + i, T + i) for i in range(8)]
        V += [f"v_pk_add_f16 v{E+i}, v{E+i}, 1.0 op_sel_hi:[1,0]" for i in range(8)]
        V += [f"v_rcp_f16 v{T+i}, v{E+i}" for i in range(8)] + [sd("v_rcp_f16", T + i, E + i) for i in range(8)]
        V += [f"v_pk_mul_f16 v{G+i}, v{T+i}, v{U+i}" for i in range(8)]
        V = parse(V)
        M = []
        for m in range(6):
            b, s = m % 3, m // 3
            if j == 0: M.append([mm32("bf16", ACC + 16 * b, ID + 4 * s, X + 8 * (2 * b + s))])
            else:
                e = [mm32("f16", ACC + 16 * b, WR + 4 * m, G + 4 * s)]
                if j < 11: e.append(wread(j + 1, m, WR + 4 * m))
                M.append(e)
        if j == 11:
            for m in range(2, 6): M[m].append(wread(11, 6 + m - 2, WR + 4 * (m - 2)))
        else:
            for m in range(6):
                b, s = m % 3, m // 3
                M.append([mm32("bf16", Y, WR + 4 * m, YN + 4 * m, "0" if m == 0 else None), wread(j, 6 + 2 * b + s, WR + 4 * m)])
        first, last = 8, opt.get("last", 352)
        ex = [(first + (last - first) * k / 11, e) for k, e in enumerate(M)]
        if j in pre: ex += [(opt.get('prepos', 300) + opt.get('prestep', 40) * q, xloads([g])) for q, g in enumerate(pre[j])]
        ex += [(opt.get('prepos', 100) + 120 * q, c) for q, c in enumerate(spre.get(j, []))]
        for (tt, jj), p in prio.items():
            if jj == j:
                ex.append((0, [I(f"s_cmp_lg_u32 s{sT}, {tt}"), I(f"s_cbranch_scc1 L_p{tt}_{jj}"), I(f"s_setprio {p}", ws=0), I(f"L_p{tt}_{jj}:")]))
        if opt.get("xm1") and 0 < j: ex += [(60 + 120 * q, [mm32("bf16", SP, YN + 4 * ((q + j) % 6), YN + 4 * q)]) for q in range(3)]
        if opt.get("xm2") and 0 < j: ex += [(60 + 120 * q, [mm32("f16", SP, RES + 4 * ((q + j) & 1), G + 4 * (q & 1))]) for q in range(3)]
        if opt.get("xm3") and 0 < j: ex += [(60 + 60 * q, [I(f"v_mfma_f32_16x16x32_bf16 {r4(SP+4*(q&3))}, {r4(YN+4*((q//2+j)%6))}, {r4(YN+4*(q%6))}, {r4(SP+4*(q&3))}")]) for q in range(6)]
        if opt.get("xop"): ex += [(100 + 30 * q, parse(opt["xop"].format(d=SP+16+q, u=U+q, u1=U+(q+1)%8, y=ACC+q, y1=ACC+q+8))) for q in range(8)]
        if opt.get("xpk"): ex += [(100 + 30 * q, parse(f"v_pk_mul_f16 v{SP+16+q}, v{U+q}, v{U+(q+1)%8}")) for q in range(8)]
        if opt.get("xexp"): ex += [(100 + 30 * q, parse(f"v_exp_f16 v{SP+16+q}, v{U+q}")) for q in range(8)]
        if opt.get("xnop"): ex += [(100 + 30 * q, parse(f"v_mov_b32 v{SP+16+q}, 0")) for q in range(8)]
        B += ls(3 + j) + (cbar(cbp.index(j) + 1) if j in cbp else []) + mix(V, ex)
    B += ls(15) + lsflush()
    for tt in range(4):
        if xs(f"t{tt}"): B += parse(f"s_cmp_lg_u32 s{sT}, {tt}\ns_cbranch_scc1 L_xs{tt}") + xs(f"t{tt}") + parse(f"L_xs{tt}:")
    B += parse(f"s_add_u32 s{sT}, s{sT}, 1\ns_cmp_eq_u32 s{sT}, {NT}\ns_cbranch_scc1 L_final")
    def fake16(B):
        import re
        out = []; c1 = c2 = 0
        for i in B:
            m = re.match(r"v_mfma_f32_32x32x16_(\w+) v\[(\d+):\d+\], v\[(\d+):\d+\], v\[(\d+):\d+\], (.*)", i.text)
            if not m: out.append(i); continue
            ty, d, a, b = m.group(1), int(m.group(2)), int(m.group(3)), int(m.group(4))
            if d == Y:
                k = (b - YN) // 4; o = opt["fake16"]
                for P in range(2):
                    dd = Y + 4 * (2 * (k // 3 if o == 1 else k % 2) + P); bb = YN + 8 * (k % 3 if o == 1 else k // 2) + 4 * P
                    out.append(I(f"v_mfma_f32_16x16x32_{ty} {r4(dd)}, {r4(a)}, {r4(bb)}, {r4(dd)}"))
            else:
                s_ = ((b - G) // 4) if ty == "f16" else (a - ID) // 4
                for P in range(2):
                    dd = d + 8 * s_ + 4 * P; bb = G + 4 * P if ty == "f16" else b
                    out.append(I(f"v_mfma_f32_16x16x32_{ty} {r4(dd)}, {r4(a)}, {r4(bb)}, {r4(dd)}"))
        gap = opt.get("fgap", 0)
        if gap:
            o2 = []; held = []; left = 0; k = 0
            while k < len(out):
                i = out[k]
                if i.kind == "mfma" and k + 1 < len(out) and out[k+1].kind == "mfma" and out[k+1].a == i.a and "16x16" in i.op:
                    o2 += held; o2.append(i); held = [out[k+1]]; k += 2; left = gap
                    if k < len(out) and out[k].kind == "dsr" and out[k].wr == set(i.a): held.append(out[k]); k += 1
                    continue
                if held and (i.kind in ("label", "ctl", "mfma") or (i.wr & held[0].rd) or ((i.rd | i.wr) & held[0].wr)): o2 += held; held = []
                o2.append(i); k += 1
                left -= i.cost
                if held and left <= 0: o2 += held; held = []
            out = o2 + held
        return out
    def ablate(B):
        if opt.get("fake16"): B = fake16(B)
        for key, vs in (("dblw", vW), ("dblc", (vCT,)), ("dblA", vA), ("dblB", vPB)):
            if opt.get(key):
                B2 = []
                for i in B:
                    B2.append(i)
                    if i.kind == "dsr" and any(f"v{v} " in i.text for v in vs): B2.append(I(i.text))
                B = B2
        if opt.get("dblst"): B = [x for i in B for x in ([i, I(i.text)] if i.kind == "vms" else [i])]
        if opt.get("dblld"): B = [x for i in B for x in ([i, i] if i.op.startswith("buffer_load") else [i])]
        if opt.get("dblwr"): B = [x for i in B for x in ([i, I(i.text)] if i.kind == "dsw" else [i])]
        if opt.get("novm"): B = [i for i in B if i.kind not in ("vml", "vms")]
        if opt.get("nost"): B = [i for i in B if i.kind not in ("vms",)]
        if opt.get("nowrd"): B = [i for i in B if not (i.kind == "dsr" and any(f"v{v} " in i.text for v in vW + (vCT,)))]
        return B
    S["conv0"] = parse("L_conv0:") + ablate(conv(True))
    S["mid"] = ablate(B)
    S["conv"] = ablate(conv(False)) + parse("s_branch L_mid")
    EM, EC = epilogue(True)
    F = parse("L_final:") + EM + flat(EC)
    if opt.get("wbend"): F += parse("s_waitcnt vmcnt(0)") + [wbl2()] + parse("s_waitcnt vmcnt(0)")
    if opt.get("ro"):
        wg, wv, sa, sb = opt["ro"]
        F += parse("s_waitcnt vmcnt(0)") + st(7) + parse(f"""s_cmp_lg_u32 s2, {wg}
s_cbranch_scc1 L_end
s_cmp_lg_u32 s{sW}, {wv}
s_cbranch_scc1 L_end
s_sub_u32 s60, s{sa}, s{sb}
s_mul_i32 s60, s60, {10 if opt.get('exrt') else 1}
s_min_u32 s60, s60, 150000
s_add_u32 s60, s60, 10000
L_spin:
s_memrealtime s[62:63]
s_waitcnt lgkmcnt(0)
s_sub_u32 s61, s62, s96
s_cmp_lt_u32 s61, s60
s_cbranch_scc1 L_spin""")
    elif stamp:
        F += parse("s_waitcnt vmcnt(0)") + st(7) + parse(f"""
s_load_dwordx4 s[4:7], s[0:1], 64
s_waitcnt lgkmcnt(0)
{mksrd(sDW, 4, 65536)}
{mksrd(sB1, 6, 1 << 20)}
s_lshl_b32 s60, s2, 3
s_add_u32 s60, s60, s{sW}
s_lshl_b32 s61, s60, 8
s_lshl_b32 s60, s60, 5
v_mov_b32 v17, s60
v_lshrrev_b32 v18, 2, v{vW[0]}
buffer_store_dword v0, v18, {srd(sB1)}, s61 offen
""" + "\n".join((f"s_sub_u32 s61, s{96+k}, s97" if k in (2, 3, 4) else f"s_mov_b32 s61, s{96+k}") + f"\nv_mov_b32 v16, s61\nbuffer_store_dword v16, v17, {srd(sDW)}, 0 offen offset:{4*k}" for k in range(6))
 + "\n" + "\n".join(f"s_sub_u32 s61, s{88+2*k}, s97\nv_mov_b32 v16, s61\nbuffer_store_dword v16, v17, {srd(sDW)}, 0 offen offset:{24+4*k}" for k in range(2)))
    S["final"] = F + parse("L_end:\ns_endpgm")
    if "prioe" in opt: S["head"] = S["head"][:2] + parse(f"s_setprio {opt['prioe']}") + S["head"][2:]
    if opt.get("delay0"):
        S["head"] = parse(f"s_memrealtime s[62:63]\ns_waitcnt lgkmcnt(0)\ns_mov_b32 s60, s62\nL_d0:\ns_memrealtime s[62:63]\ns_waitcnt lgkmcnt(0)\ns_sub_u32 s61, s62, s60\ns_cmp_lt_u32 s61, {opt['delay0']}\ns_cbranch_scc1 L_d0") + S["head"]
    S["head"] = xs("h0") + (parse("s_memrealtime s[76:77]") if opt.get("rt0") else []) + S["head"]
    out, stats_ = resolve(S, [["head", e, "conv0", "mid", "conv", "mid", "conv", "mid", "final"] for e in ("early", "late")])
    return out, stats_

HDR = open("standalone__modern_conv_block_convnext__vision.s.ref").read().split("; Override launch")[0]
def emit(opt, name=KNAME, full=True):
    out, stats_ = gen(opt)
    lines = [l for n in ("head", "early", "late", "conv0", "mid", "conv", "final") for l in out[n]]
    if opt.get("shift4"): lines = ["    s_nop 0"] + lines
    if opt.get("align"):
        import align
        lines, a = align.align(lines, opt["align"] == 2); stats_["align"] = dict(n=a["bad"], waits=a["fixed"], nops=a["nops"], port=a["bytes"], mem=0)
    body = "\n".join(lines)
    if name != KNAME: body = body.replace("L_", f"L_{name}_")
    s = ""
    if full:
        s += HDR + f"; Generated by tools/gen.py (hand-designed schedule, see that file)\n; @launch grid=(256,1,1) block=(512,1,1) lds={LDS}\n"
        s += '.amdgcn_target "amdgcn-amd-amdhsa--gfx950"\n'
    s += f""".text
.globl {name}
.p2align 8
.type {name},@function
{name}:
{body}
.section .rodata,"a"
.p2align 6
.amdhsa_kernel {name}
  .amdhsa_next_free_vgpr 256
  .amdhsa_next_free_sgpr 102
  .amdhsa_accum_offset 256
  .amdhsa_group_segment_fixed_size 0
  .amdhsa_kernarg_size 80
  .amdhsa_user_sgpr_count 2
  .amdhsa_user_sgpr_kernarg_segment_ptr 1
  .amdhsa_system_sgpr_workgroup_id_x 1
.end_amdhsa_kernel
"""
    return s, stats_

DEFAULT = dict(st64=1, sfl='sc0 sc1', stag=(0, 2, 3), cbp=(3, 7), prio0=3, prioe=2, prio={(2, 0): 2, (3, 0): 1, (3, 7): 0})
if __name__ == "__main__":
    if len(sys.argv) > 1:
        import os; os.makedirs("var", exist_ok=True)
        for a in sys.argv[1:]:
            n, o = a.split(":", 1); d = dict(DEFAULT); d.update(eval(o))
            open(f"var/{n}.s", "w").write(emit(d)[0])
        sys.exit(0)
    s, st_ = emit(DEFAULT)
    open("standalone__modern_conv_block_convnext__vision.s", "w").write(s)
    for n, v in st_.items(): print(n, v)
```

```python
import sys, struct, math
from asmdsl import I, parse, resolve, use

KNAME = "standalone__modern_conv_block_convnext__vision_kernel"
def f2u(x): return struct.unpack("<I", struct.pack("<f", x))[0]
def h2u(x): return struct.unpack("<H", struct.pack("<e", x))[0]
A_ = 2 * math.sqrt(2 / math.pi) * math.log2(math.e)
K_ = (A_ * 0.044715) ** (1 / 3)
C_ = A_ / K_
XB = 512 * 512 * 192
ROW = 98304
OOR = 0x10000000
WA, WB = 0, 49152
IMG = 98304; IMGW = 12800; REG = 6400; SUB = 2560
TAB = IMG + 4 * IMGW; DYS = 3072
G2 = TAB + 3 * DYS
LDS = G2 + 512
vDM, vPB, vRS, vA, vW, vCT, vO, vSQ, vTC = 1, 8, 20, 22, (23, 24), 25, 26, (27, 29), 31
ACC, YN, Y, U, T, E, G = (32, 80), (128, 152), (176, 192), 208, 216, 224, (232, 240)
vIDX, vMK, vTO, SC = 248, 250, 251, 252
pS, pT, pN, pD, GK = 232, 234, 236, 224, 176
def Creg(u, g):
    if g % 2 == 0: return YN[u] + 4 * (g >> 1)
    return ([U, U + 4, T, T + 4, E, E + 4], [Y[1], Y[1] + 4, Y[1] + 8, Y[1] + 12, G[1], G[1] + 4])[u][g >> 1]
ID, WR = 192, 200
cAD, cAS, cB, cR, cR2 = 200, 208, 216, 240, 224
sW = 3; sX = 20; sO = 24; sDW = 28; sB1 = 32; sB2 = 36; sGA = 40; sW1 = 44; sW2 = 48
sT, sC, sROW, sCOL, sIMG, sINC = 52, 53, 54, 55, 56, 57
sOF = (80, 81, 82, 83)
KB = 0.46875
POS = {p: ((p // 4 + 1) % 3, p % 4) for p in range(12)}
r4 = lambda r: f"v[{r}:{r+3}]"
a4 = lambda r: f"a[{r}:{r+3}]"
r16 = lambda r: f"v[{r}:{r+15}]"
srd = lambda s: f"s[{s}:{s+3}]"
flat = lambda ll: [x for l in ll for x in l]

def mm32(ty, d, a, b, c=None):
    return I(f"v_mfma_f32_32x32x16_{ty} {r16(d)}, {a}, {b}, {r16(d) if c is None else c}")
def mix(main, extra):
    extra = sorted(extra, key=lambda e: e[0]); out = []; acc = 0; k = 0
    for m in main:
        while k < len(extra) and extra[k][0] <= acc: out += extra[k][1]; k += 1
        out.append(m); acc += m.cost
    for e in extra[k:]: out += e[1]
    return out
def il(*ls):
    out = []
    for k in range(max(map(len, ls))): out += [l[k] for l in ls if k < len(l)]
    return out
def mksrd(s, p, n): return f"s_mov_b32 s{s}, s{p}\ns_mov_b32 s{s+1}, s{p+1}\ns_mov_b32 s{s+2}, {n}\ns_mov_b32 s{s+3}, 0x20000"
def tag(i, rd=(), wr=()): i.rd = i.rd | set(rd); i.wr = i.wr | set(wr); return i
RG = lambda r: ("x", f"img{r}")
RD = lambda r: ("x", f"rd{r}")

def gen(opt):
    S = {}
    stamp = opt.get("stamp")
    h16 = opt.get("h16", 0); T1 = "f16" if h16 else "bf16"; sONE, sK, sKB = 58, 59, 84
    def st(k):
        if not stamp: return []
        if k == 0 and opt.get("rt0"): return parse("s_memtime s[78:79]\ns_waitcnt lgkmcnt(0)\ns_mov_b32 s96, s76\ns_mov_b32 s97, s78")
        if k == 0: return parse("s_memrealtime s[76:77]\ns_memtime s[78:79]\ns_waitcnt lgkmcnt(0)\ns_mov_b32 s96, s76\ns_mov_b32 s97, s78")
        if k == 7: return parse("s_memrealtime s[76:77]\ns_memtime s[78:79]\ns_waitcnt lgkmcnt(0)\ns_mov_b32 s101, s76\ns_mov_b32 s100, s78")
        return parse(f"s_memtime s[78:79]\ns_waitcnt lgkmcnt(0)\ns_mov_b32 s{97+k}, s78")
    def xs(k):
        if not stamp or k not in opt.get("exs", ()): return []
        r = 88 + 2 * opt['exs'].index(k)
        return parse(f"{'s_memrealtime' if opt.get('exrt') else 's_memtime'} s[{r}:{r+1}]\ns_waitcnt lgkmcnt(0)")
    def ls(k, mode=1):
        if stamp != mode: return []
        return parse(f"s_memtime s[78:79]\ns_lshl_b32 m0, s{sT}, 4\ns_add_u32 m0, m0, {k}\ns_waitcnt lgkmcnt(0)\ns_sub_u32 s78, s78, s97\nv_writelane_b32 v255, s78, m0")
    pc = [0]
    def ps():
        if stamp != 3: return []
        pc[0] += 1
        return parse(f"s_memtime s[78:79]\ns_waitcnt lgkmcnt(0)\ns_sub_u32 s78, s78, s97\nv_writelane_b32 v255, s78, {pc[0]-1}")
    def xdma(Gq, reg, fl, ks=range(7)):
        l = []
        for k in ks:
            i = I(f"buffer_load_dword{'x4' if k < 6 else ''} v{vDM+k}, {srd(sX)}, 0 offen offset:{64*Gq} {fl} lds".replace("  ", " "))
            l.append(parse(f"s_add_u32 m0, s{sIMG}, {REG*reg + 1024*k - 64*Gq}") + [tag(i, [RD(reg)], [RG(reg)])])
        return l
    touch = lambda fl: [I(f"buffer_load_dword v{SC+2}, v{vTC}, {srd(sX)}, 0 offen {fl}".rstrip())]
    t = 128
    dmk = ""
    for k in range(7):
        if k == 6: dmk += f"v_lshrrev_b32 v{t}, 4, v{t+1}\nv_add_u32 v{t}, 96, v{t}\nv_bfe_u32 v{t+2}, v{t+1}, 2, 2\n"
        elif k: dmk += f"v_add_u32 v{t}, 16, v{t}\n"
        dmk += f"""v_mul_u32_u24 v{t+3}, 205, v{t}
v_lshrrev_b32 v{t+3}, 11, v{t+3}
v_mad_i32_i24 v{t+4}, v{t+3}, -10, v{t}
v_and_b32 v{t+5}, 1, v{t+3}
v_bfe_u32 v{t+6}, v{t+4}, 2, 1
v_lshl_or_b32 v{t+5}, v{t+5}, 1, v{t+6}
v_xor_b32 v{t+5}, v{t+5}, v{t+2}
v_mad_u32_u24 v{t+3}, v{t+3}, s68, v{t+7}
v_lshl_add_u32 v{t+3}, v{t+5}, 4, v{t+3}
v_mad_u32_u24 v{t+3}, v{t+4}, s69, v{t+3}
v_add_u32 v{t+4}, s65, v{t+4}
v_cmp_gt_u32 vcc, 0x200, v{t+4}
"""
        if k == 6: dmk += f"v_and_b32 v{t+5}, 3, v{t+1}\nv_lshl_add_u32 v{t+3}, v{t+5}, 2, v{t+3}\n"
        dmk += f"v_cndmask_b32 v{vDM+k}, v{t+8}, v{t+3}, vcc\n"
    H = parse(f"""
s_cmp_ge_u32 s2, 256
s_cbranch_scc1 L_end
s_load_dwordx16 s[4:19], s[0:1], 0
v_lshrrev_b32 v{t}, 6, v0
v_and_b32 v{t+1}, 63, v0
v_readfirstlane_b32 s{sW}, v{t}
s_and_b32 s60, s2, 7
s_lshl_b32 s60, s60, 5
s_lshr_b32 s61, s2, 3
s_add_u32 s60, s60, s61
s_lshr_b32 s61, s60, 4
s_and_b32 s60, s60, 15
s_lshl_b32 s{sROW}, s61, 5
s_lshl_b32 s60, s60, 5
s_lshl_b32 s62, s{sW}, 3
s_add_u32 s{sCOL}, s60, s62
s_mul_i32 s61, s{sROW}, {ROW}
s_mul_i32 s62, s{sCOL}, 192
s_add_u32 s63, s61, s62
s_sub_u32 s64, s63, {ROW+192}
s_sub_u32 s65, s{sCOL}, 1
s_mul_i32 s{sIMG}, s{sW}, {IMGW}
s_add_u32 s{sIMG}, s{sIMG}, {IMG}
s_mov_b32 s68, {ROW}
s_movk_i32 s69, 192
v_lshrrev_b32 v{t}, 2, v{t+1}
v_and_b32 v{t+2}, 3, v{t+1}
v_mov_b32 v{t+7}, s64
v_bfrev_b32 v{t+8}, 1
{dmk}
s_cmp_lt_u32 s{sCOL}, 504
s_cselect_b32 s66, 10, 0
v_add_u32 v{t+7}, {9*192+128}, v{t+7}
v_mad_u32_u24 v{t+3}, v{t+1}, s68, v{t+7}
v_cmp_gt_u32 vcc, s66, v{t+1}
v_cndmask_b32 v{vTC}, v{t+8}, v{t+3}, vcc
""")
    ln = t + 1
    H += parse(f"""
v_lshrrev_b32 v{t+10}, 5, v{ln}
v_mul_u32_u24 v{t+11}, 1366, v0
v_lshrrev_b32 v{t+11}, 16, v{t+11}
v_mul_u32_u24 v{t+11}, 384, v{t+11}
v_lshl_add_u32 v{t+11}, v0, 2, v{t+11}
v_lshlrev_b32 v{t+12}, 3, v0
s_lshr_b32 s71, s2, 3
s_lshl_b32 s71, s71, 2
s_add_u32 s71, s71, s{sW}
s_mul_i32 s71, s71, 640
v_lshlrev_b32 v{t+13}, 7, v{ln}
v_cmp_gt_u32 vcc, 5, v{ln}
v_cndmask_b32 v{t+13}, v{t+8}, v{t+13}, vcc
""") + st(0) + parse(f"""
{mksrd(sX, 4, XB)}
{mksrd(sDW, 6, 1728)}
{mksrd(sB2, 14, 192)}
{mksrd(sGA, 16, 192)}
""")
    tabld = parse(f"""
buffer_load_dword v{t+16}, v{t+11}, {srd(sDW)}, 0 offen
buffer_load_dword v{t+17}, v{t+11}, {srd(sDW)}, 0 offen offset:192
buffer_load_dword v{t+18}, v{t+11}, {srd(sDW)}, 0 offen offset:384
buffer_load_dwordx2 v[{t+20}:{t+21}], v{t+12}, {srd(sB2)}, 0 offen
buffer_load_dwordx2 v[{t+22}:{t+23}], v{t+12}, {srd(sGA)}, 0 offen
""")
    dfl = opt.get("dfl", "")
    wsrd = parse(f"{mksrd(sW1, 8, 73728)}\n{mksrd(sW2, 12, 73728)}\n{mksrd(sB1, 10, 768)}")
    wtouch = parse(f"buffer_load_dword v{t+14}, v{t+13}, {srd(sW1)}, s71 offen\nbuffer_load_dword v{t+15}, v{t+13}, {srd(sW2)}, s71 offen")
    if opt.get("b1t"): wtouch += parse(f"v_lshlrev_b32 v{t+19}, 7, v{ln}\nbuffer_load_dword v{t+19}, v{t+19}, {srd(sB1)}, 0 offen")
    q = t + 24
    n, kq, rp, c, par, oor, hh = q, q + 1, q + 2, q + 3, q + 4, q + 5, t + 10
    lanec = f"""
v_mov_b32 v{oor}, {OOR}
v_and_b32 v{n}, 15, v{ln}
v_lshrrev_b32 v{kq}, 4, v{ln}
v_add_u32 v{rp}, 4, v{n}
v_lshrrev_b32 v{rp}, 3, v{rp}
v_mad_i32_i24 v{c}, v{rp}, -4, v{n}
v_and_b32 v{rp}, 1, v{rp}
v_and_b32 v{par}, 1, v{kq}
v_lshlrev_b32 v{q+6}, 1, v{rp}
v_mul_u32_u24 v{q+7}, {ROW}, v{q+6}
v_mad_u32_u24 v{q+7}, v{c}, s69, v{q+7}
v_lshl_add_u32 v{q+7}, v{hh}, 4, v{q+7}
v_lshl_add_u32 v{q+7}, v{par}, 5, v{q+7}
v_add_u32 v{vO}, s63, v{q+7}
v_add_u32 v{q+7}, v{q+6}, v{kq}
v_mad_u32_u24 v{q+7}, v{q+7}, 10, v{c}
"""
    for dx in range(3):
        lanec += f"""v_add_u32 v{q+8}, {dx}, v{c}
v_bfe_u32 v{q+8}, v{q+8}, 2, 1
v_lshl_or_b32 v{q+8}, v{par}, 1, v{q+8}
v_add_u32 v{q+9}, {dx}, v{q+7}
v_lshl_add_u32 v{q+8}, v{q+9}, 2, v{q+8}
v_lshl_add_u32 v{vPB+4*dx}, v{q+8}, 4, s{sIMG}
""" + "".join(f"v_xor_b32 v{vPB+4*dx+i}, {16*i}, v{vPB+4*dx}\n" for i in (1, 2, 3))
    lanec += f"""v_add_u32 v{q+7}, v{q+6}, v{par}
v_mad_u32_u24 v{q+7}, v{q+7}, 10, v{c}
v_add_u32 v{q+7}, 11, v{q+7}
v_add_u32 v{q+8}, 1, v{c}
v_bfe_u32 v{q+8}, v{q+8}, 2, 1
v_lshl_or_b32 v{q+8}, v{par}, 1, v{q+8}
v_xor_b32 v{q+8}, 2, v{q+8}
v_xor_b32 v{q+8}, v{hh}, v{q+8}
v_lshl_add_u32 v{q+8}, v{q+7}, 2, v{q+8}
v_lshl_add_u32 v{vRS}, v{q+8}, 4, s{sIMG}
v_xor_b32 v{vRS+1}, 32, v{vRS}
v_bfe_u32 v{q+6}, v{n}, 2, 1
v_sub_u32 v{q+6}, v{kq}, v{q+6}
v_and_b32 v{q+7}, 3, v{n}
v_mul_u32_u24 v{vIDX}, 17, v{q+7}
v_lshrrev_b32 v{q+8}, 3, v{n}
v_lshl_add_u32 v{q+7}, v{q+8}, 2, v{q+7}
v_lshlrev_b32 v{q+7}, 5, v{q+7}
v_add_u32 v{q+7}, {TAB}, v{q+7}
s_movk_i32 s70, {DYS}
v_cmp_gt_u32 vcc, 3, v{q+6}
v_mad_u32_u24 v{q+7}, v{q+6}, s70, v{q+7}
v_cndmask_b32 v{vA}, v{oor}, v{q+7}, vcc
v_lshlrev_b32 v{vW[0]}, 4, v{ln}
v_add_u32 v{vW[1]}, {WB}, v{vW[0]}
v_lshlrev_b32 v{vCT}, 4, v{hh}
v_add_u32 v{vCT}, {G2}, v{vCT}
v_bfe_u32 v{q+6}, v{ln}, 1, 1
v_bfe_u32 v{q+7}, v{ln}, 3, 2
v_lshl_add_u32 v{q+6}, v{q+7}, 1, v{q+6}
v_bfe_u32 v{q+7}, v{ln}, 2, 1
v_cmp_eq_u32 vcc, v{q+7}, v{hh}
v_and_b32 v{q+8}, 1, v{ln}
v_lshlrev_b32 v{q+8}, 4, v{q+8}
v_mov_b32 v{q+9}, 0x3f80
v_lshlrev_b32 v{q+8}, v{q+8}, v{q+9}
v_cndmask_b32 v{q+6}, 15, v{q+6}, vcc
""" + "\n".join(f"v_cmp_eq_u32 vcc, {r}, v{q+6}\nv_cndmask_b32 v{q+10+r}, 0, v{q+8}, vcc" for r in range(8)) + "\n" + \
        "\n".join(f"v_accvgpr_write_b32 a{ID+r}, v{q+10+r}" for r in range(8)) + f"""
{mksrd(sO, 18, XB)}
s_mov_b32 s{sT}, 0
s_mov_b32 s{sOF[0]}, 0
s_mov_b32 s{sOF[1]}, {ROW}
s_mov_b32 s{sOF[2]}, {4*ROW}
s_mov_b32 s{sOF[3]}, {5*ROW}
s_mov_b32 s{sC}, {h2u(C_) * 0x10001}
s_mov_b32 s{sONE}, 0x3c003c00
s_mov_b32 s{sK}, {hex(f2u(K_))}
s_mov_b32 s{sKB}, {hex(h2u(K_) << 16)}
v_lshlrev_b32 v{vMK}, 4, v{hh}
v_lshrrev_b32 v{vMK}, v{vMK}, -1
"""
    if opt.get("ot") is not None or opt.get("ot0") is not None: lanec += f"""v_mul_u32_u24 v{vTO}, {ROW}, v{ln}
v_add_u32 v{vTO}, s63, v{vTO}
v_cmp_gt_u32 vcc, {opt.get("otn", 8)}, v{ln}
s_nop 0
v_cndmask_b32 v{vTO}, v{oor}, v{vTO}, vcc
"""
    z = q + 12
    tables = f"""
v_lshlrev_b32 v{q+6}, 6, v0
v_add_u32 v{q+6}, {TAB}, v{q+6}
v_cmp_gt_u32 vcc, 144, v0
v_cndmask_b32 v{q+6}, v{oor}, v{q+6}, vcc
v_and_b32 v{q+7}, 3, v0
v_lshl_add_u32 v{q+8}, v{q+7}, 2, v{q+6}
v_lshrrev_b32 v{q+7}, 1, v{q+7}
v_lshl_add_u32 v{q+7}, v{q+7}, 2, v{q+6}
v_and_b32 v{q+9}, 0x1c, v0
v_bfe_u32 v{q+10}, v0, 1, 1
v_and_b32 v{q+11}, 1, v0
v_lshl_or_b32 v{q+10}, v{q+11}, 1, v{q+10}
v_or_b32 v{q+9}, v{q+9}, v{q+10}
v_lshlrev_b32 v{q+9}, 4, v{q+9}
v_add_u32 v{q+9}, {G2}, v{q+9}
v_cmp_gt_u32 vcc, 24, v0
v_cndmask_b32 v{q+9}, v{oor}, v{q+9}, vcc
v_mov_b32 v{z}, 0
v_mov_b32 v{z+1}, 0
v_mov_b32 v{z+2}, 0
v_mov_b32 v{z+3}, 0
ds_write_b128 v{q+6}, {r4(z)}
ds_write_b128 v{q+6}, {r4(z)} offset:16
ds_write_b128 v{q+6}, {r4(z)} offset:32
ds_write_b128 v{q+6}, {r4(z)} offset:48
ds_write_b16 v{q+8}, v{t+16}
ds_write_b16_d16_hi v{q+8}, v{t+16} offset:34
ds_write_b16 v{q+7}, v{t+17} offset:16
ds_write_b16_d16_hi v{q+7}, v{t+17} offset:48
ds_write_b16 v{q+7}, v{t+18} offset:24
ds_write_b16_d16_hi v{q+7}, v{t+18} offset:56
v_lshlrev_b32 v{z+4}, 16, v{t+20}
v_and_b32 v{z+5}, 0xffff0000, v{t+20}
v_lshlrev_b32 v{z+6}, 16, v{t+21}
v_and_b32 v{z+7}, 0xffff0000, v{t+21}
v_lshlrev_b32 v{z+8}, 16, v{t+22}
v_and_b32 v{z+9}, 0xffff0000, v{t+22}
v_lshlrev_b32 v{z+10}, 16, v{t+23}
v_and_b32 v{z+11}, 0xffff0000, v{t+23}
v_mul_f32 v{z+4}, v{z+4}, v{z+8}
v_mul_f32 v{z+5}, v{z+5}, v{z+9}
v_mul_f32 v{z+6}, v{z+6}, v{z+10}
v_mul_f32 v{z+7}, v{z+7}, v{z+11}
ds_write_b128 v{q+9}, {r4(z+4)}
"""
    pl = opt.get("ploop")
    def src(nu, h, s):
        if pl: return a4(WR + 16 * (nu % 3) + 8 * h + 4 * s)
        return a4(16 * nu + 8 * h + 4 * s) if nu < 6 else r4(ACC[0] + 16 * (nu - 6) + 8 * h + 4 * s)
    acc = lambda nu, h: ((80, 112, 32)[nu % 3] if pl else 80 + 32 * (nu % 2)) + 16 * h
    N95, R95, RB1 = 144, 176, 200
    def xpose(d, f, cin=None): return [mm32("bf16", d, f(0), a4(ID), cin), mm32("bf16", d, f(1), a4(ID + 4))]
    def uxpose(w2, nu):
        l = il(*[xpose(acc(nu, h), lambda s: src(nu, h, s), "0" if w2 else r16(N95)) for h in range(2)])
        if not w2 and nu % 3 == 2: l += xpose(acc(nu, 1), lambda s: r4(RB1 + 8 * (nu // 3) + 4 * s))
        return l
    def un95(i): return parse([f"v_xor_b32 v{R95+8*i+e}, 0x80008000, v{R95+8*i+e}" for e in range(8)]) + xpose(N95, lambda s: r4(R95 + 8 * i + 4 * s), "0")
    def uload(w2, nu):
        i, k = divmod(nu, 3); l = []
        if w2:
            if k == 0: l = parse(f"s_add_u32 s74, s72, {24576*i}\ns_add_u32 s75, s72, {24576*i+12288}")
            return l + [I(f"buffer_load_dwordx4 {src(nu, h, s)}, v{pS}, {srd(sW2)}, s{74+s} offen offset:{768*h+64*k}") for h in range(2) for s in range(2)]
        if k == 0: l = parse(f"s_mov_b32 s74, {95*768 + 256*i}") + [I(f"buffer_load_dwordx4 {r4(R95+8*i+4*s)}, v{pN}, {srd(sW1)}, s74 offen offset:{128*s}") for s in range(2)]
        if k == 2: l = [I(f"buffer_load_dwordx4 {r4(RB1+8*i+4*s)}, v{pN+1}, {srd(sB1)}, 0 offen offset:{256*i+128*s}") for s in range(2)]
        return l + parse(f"s_add_u32 s74, s72, {12288*k}\ns_add_u32 s75, s72, {12288*k+6144}") + \
            [I(f"buffer_load_dwordx4 {src(nu, h, s)}, v{pS}, {srd(sW1)}, s{74+h} offen offset:{256*i+128*s}") for h in range(2) for s in range(2)]
    def wmk(w2, d):
        m = opt.get("wmask", (0, 0))[w2]
        return parse([f"v_and_b32 v{d+r}, {hex((0xffff << m & 0xffff) * 0x10001)}, v{d+r}" for r in range(4)]) if m else []
    def ufin(w2, nu):
        i, k = divmod(nu, 3); P = []
        for e in range(4):
            dst = pD + 4 * (e & 1); sr = lambda r, x: acc(nu, r >> 1) + 8 * (r & 1) + 4 * x + e
            if w2:
                pm = lambda e, xs_: parse([f"v_pk_mul_f32 v[{sr(r, x)-e%2}:{sr(r, x)-e%2+1}], v[{sr(r, x)-e%2}:{sr(r, x)-e%2+1}], v[{GK+4*k+(e&2)}:{GK+4*k+(e&2)+1}]" for r in range(4) for x in xs_])
                l = pm(e, (0, 1)) if e % 2 == 0 else []
                l += parse([f"v_cvt_pk_f16_f32 v{dst+r}, v{sr(r, 0)}, v{sr(r, 1)}" for r in range(4)])
                l += wmk(1, dst)
                l.append(I(f"ds_write_b128 v{pT+(e&1)}, {r4(dst)} offset:{6144+2048*k+256*(e>>1)}"))
            else:
                l = parse([f"v_cvt_pk_{T1}_f32 v{dst+r}, v{sr(r, 0)}, v{sr(r, 1)}" for r in range(4)])
                l += wmk(0, dst)
                l.append(I(f"ds_write_b128 v{pT}, {r4(dst)} offset:{12288*e+1024*k}"))
            P.append(l)
        if pl:
            if k == 2: P[3] += parse([f"v_add_u32 v{pT+e}, s67, v{pT+e}" for e in range(1 + w2)] + ["s_sub_u32 s67, 0, s67"])
        elif k == 2 and i < 2: P[3] += parse([f"v_{'subrev' if i == 0 else 'add'}_u32 v{pT+e}, {WB}, v{pT+e}" for e in range(1 + w2)])
        return P
    x = q + 6
    uaddr = [f"""
v_bfe_u32 v{x}, v{ln}, 2, 1
v_bfe_u32 v{x+1}, v{ln}, 3, 2
v_lshl_add_u32 v{x}, v{x}, 2, v{x+1}
v_mul_u32_u24 v{x}, 768, v{x}
v_and_b32 v{x+1}, 3, v{ln}
v_lshl_add_u32 v{pN}, v{hh}, 2, v{x+1}
v_lshlrev_b32 v{pN}, 4, v{pN}
v_add_u32 v{pS}, v{x}, v{pN}
v_and_b32 v{x+1}, 0x5c, v0
v_cmp_eq_u32 vcc, 0x5c, v{x+1}
s_mul_i32 s72, s{sW}, {3*12288}
s_mul_i32 s60, s{sW}, 3072
v_cndmask_b32 v{pN+1}, v{oor}, v{pN}, vcc
v_add_u32 v{pT}, s60, v{vW[1]}
""", f"""
v_bfe_u32 v{x}, v{ln}, 2, 1
v_bfe_u32 v{x+1}, v{ln}, 3, 2
v_lshl_add_u32 v{x+1}, v{x}, 5, v{x+1}
v_lshl_add_u32 v{x+1}, v{hh}, 3, v{x+1}
v_and_b32 v{x+2}, 3, v{ln}
v_xor_b32 v{x+3}, v{hh}, v{x+2}
v_lshlrev_b32 v{x+3}, 4, v{x+3}
v_mad_u32_u24 v{pS}, v{x+1}, s69, v{x+3}
s_sub_u32 s60, s{sW}, 2
s_mul_i32 s72, s60, {16*192}
s_mul_i32 s60, s60, 24576
s_add_u32 s60, s60, {WB}
v_bfe_u32 v{x+1}, v{ln}, 3, 1
v_lshl_add_u32 v{x+3}, v{x+1}, 2, v{x+2}
v_lshl_add_u32 v{x+3}, v{x}, 3, v{x+3}
v_lshlrev_b32 v{pN}, 1, v{x+3}
v_xor_b32 v{pN+1}, 16, v{pN}
v_and_b32 v{x+1}, 15, v{ln}
v_bfe_u32 v{x+2}, v{ln}, 4, 1
v_lshl_add_u32 v{x+2}, v{x+2}, 1, v{hh}
v_lshl_add_u32 v{x+1}, v{x+2}, 5, v{x+1}
v_mul_u32_u24 v{x}, 768, v{x}
v_add_u32 v{x+1}, v{x}, v{x+1}
v_lshl_add_u32 v{pT}, v{x+1}, 4, s60
v_xor_b32 v{pT+1}, 64, v{pT}
""" + "\n".join(f"buffer_load_ushort v{GK+e}, v{pN+(e&1)}, {srd(sGA)}, 0 offen offset:{32*(e>>1)}" for e in range(12))]
    gfin = [f"v_lshlrev_b32 v{GK+e}, 16, v{GK+e}" for e in range(12)] + [f"v_mul_f32 v{GK+e}, {hex(f2u(1/K_))}, v{GK+e}" for e in range(12)]
    bar = lambda: parse("s_waitcnt lgkmcnt(0)\ns_barrier")
    def resid_rd(qs): return [I(f"ds_read_b128 {a4(48*qq+4*f)}, v{vW[1]} offset:{12288*qq+1024*f}") for qq in qs for f in range(12)]
    xa = lambda: flat(xdma(0, 0, dfl)); xb = lambda: flat(xdma(1, 1, dfl)) + touch(dfl)
    n0, nh, xp = opt.get("n0", 3), opt.get("nh", 2), opt.get("xp", 9)
    xt = opt.get("xt")
    xta = parse(f"""v_mul_u32_u24 v{t+2}, 205, v{ln}
v_lshrrev_b32 v{t+2}, 10, v{t+2}
v_mad_i32_i24 v{t+3}, v{t+2}, -5, v{ln}
v_mul_u32_u24 v{t+3}, 384, v{t+3}
v_mad_u32_u24 v{t+3}, v{t+2}, s68, v{t+3}
s_add_u32 s60, s64, 64
v_cmp_gt_u32 vcc, 50, v{ln}
v_add_u32 v{t+3}, s60, v{t+3}
s_nop 0
v_cndmask_b32 v238, v{t+8}, v{t+3}, vcc""") if xt is not None else []
    xtl = lambda: [I(f"buffer_load_dword v239, v238, {srd(sX)}, 0 offen {opt.get('xtf', dfl)}".rstrip())]
    xap = opt.get("xap")
    S["head"] = H + wsrd + wtouch + tabld + (xa() if xap is None else []) + xta + (xtl() if xt == -1 else []) + xs("p0") + parse(lanec) + parse(f"s_cmp_ge_u32 s{sW}, 2\ns_cbranch_scc1 L_prep1")
    xsw = opt.get("xsw")
    S["hxa"] = []; S["head2"] = []; S["prep2"] = []; S["prep3"] = []
    if xsw:
        S["head"] = H + wsrd + wtouch + tabld + parse(f"s_bitcmp1_b32 s2, {xsw[0]}\ns_cbranch_scc1 L_nxa")
        S["hxa"] = xa()
        if len(xsw) > 4: S["head"][-1:] = parse("s_cbranch_scc1 L_prep2")
        S["head2"] = parse("L_nxa:") + xs("p0") + parse(lanec) + parse(f"s_bitcmp1_b32 s2, {xsw[0]}\ns_cbranch_scc1 L_prep2\ns_cmp_ge_u32 s{sW}, 2\ns_cbranch_scc1 L_prep1")
    pc0 = pc[0]
    PP = {}
    for w2 in range(2 if pl else 0):
        def ul(k, first):
            l = []
            if w2:
                if k == 0: l = parse("s_mov_b32 s74, s72\ns_add_u32 s75, s72, 12288" if first else "s_add_u32 s74, s74, 24576\ns_add_u32 s75, s75, 24576")
                return l + [I(f"buffer_load_dwordx4 {src(k, h, s)}, v{pS}, {srd(sW2)}, s{74+s} offen offset:{768*h+64*k}") for h in range(2) for s in range(2)]
            r95 = lambda j: [I(f"buffer_load_dwordx4 {r4(R95+8*j+4*s)}, v{pN}, {srd(sW1)}, s74 offen offset:{128*s}") for s in range(2)]
            if k == 0: l = parse(f"s_mov_b32 s73, 0\ns_mov_b32 s74, {95*768}") + r95(0) if first else parse("s_add_u32 s72, s72, 256\ns_add_u32 s73, s73, 256")
            if k == 2: l = [I(f"buffer_load_dwordx4 {r4(RB1+4*s)}, v{pN+1}, {srd(sB1)}, s73 offen offset:{128*s}") for s in range(2)]
            l += parse(f"s_add_u32 s74, s72, {12288*k}\ns_add_u32 s75, s72, {12288*k+6144}") + \
                [I(f"buffer_load_dwordx4 {src(k, h, s)}, v{pS}, {srd(sW1)}, s{74+h} offen offset:{128*s}") for h in range(2) for s in range(2)]
            if k == 2: l += parse(f"s_add_u32 s74, s73, {95*768+256}\ns_min_u32 s74, s74, {95*768+512}") + r95(1)
            return l
        sset = lambda k: [src(k, h, s) for h in range(2) for s in range(2)] + ([r4(RB1), r4(RB1 + 4)] if k == 2 and not w2 else []) + ([r4(R95 + 8), r4(R95 + 12)] if k == 2 and not w2 else [])
        xbp = opt.get("xbp", "loop")
        P = parse(f"L_prep{w2}:") + parse(uaddr[w2]) + flat(ul(k, 1) for k in range(nh)) + parse(tables) + flat(ul(k, 1) for k in range(nh, 3))
        P += (xtl() if xt == 0 else []) + (xb() if xbp == "pre" else []) + parse(f"s_mov_b32 s70, 0\ns_mov_b32 s67, {hex(-WB & 0xffffffff)}")
        P += xs("p1") + st(1) + (parse(gfin) if w2 else un95(0)) + uxpose(w2, 0) + ul(0, 0) + [use(*sset(1))]
        S[f"prep{w2}"] = P; rr = resid_rd((0, 1, 2, 3)); it = [[], [], []]
        def sec(n, l, its): S[n] = l; [it[i].append(n) for i in its]; PP.setdefault(w2, []).append(n)
        for k in range(3):
            nx = uxpose(w2, (k + 1) % 3); f = ufin(w2, k)
            for e in range(4):
                m = nx[e:e+1] if len(nx) < 6 else (nx[0:2], nx[2:4], nx[4:5], nx[5:6])[e]
                l = (parse(f"L_pl{w2}:") if k == 0 and e == 0 else []) + m[:1] + f[e][:2] + m[1:] + f[e][2:]
                if k == 1 and e == 3 and not w2: l += un95(1)
                if e & 1:
                    sec(f"v{w2}{k}{e}", l + parse(f"s_cmp_lg_u32 s70, 1\ns_cbranch_scc1 L_sr{w2}{k}{e}"), (0, 1, 2))
                    sec(f"r{w2}{k}{e}", rr[16*k+8*(e>>1):16*k+8*(e>>1)+8], (1,)); l = parse(f"L_sr{w2}{k}{e}:")
                if e == 3 and k < 2:
                    sec(f"u{w2}{k}{e}", l + parse(f"s_cmp_eq_u32 s70, 2\ns_cbranch_scc1 L_sl{w2}{k}"), (0, 1, 2))
                    sec(f"l{w2}{k}", ul(k + 1, 0), (0, 1)); l = parse(f"L_sl{w2}{k}:") + [use(*sset((k + 2) % 3))]
                sec(f"w{w2}{k}{e}", l, (0, 1, 2))
        sec(f"e{w2}", parse(f"s_cmp_ge_u32 s70, 1\ns_cbranch_scc1 L_px{w2}"), (0, 1, 2))
        sec(f"l{w2}2", ul(0, 0) + [use(*sset(1))], (0,))
        sec(f"b{w2}", parse(f"L_pb{w2}:\ns_add_u32 s70, s70, 1") + bar() + parse(f"s_branch L_pl{w2}"), (0,))
        sec(f"y{w2}", parse(f"L_px{w2}:\ns_cmp_eq_u32 s70, 2\ns_cbranch_scc1 L_pe{w2}"), (1, 2))
        sec(f"x{w2}", (xb() if xbp == "loop" else []) + [use(*sset(1))] + xs("p4") + parse(f"s_branch L_pb{w2}"), (1,)); it[1].append(f"b{w2}")
        sec(f"z{w2}", parse(f"L_pe{w2}:") + (xb() if xbp == "post" else []) + xs("p2") + (parse("s_branch L_conv0") if w2 == 0 else []), (2,))
        PP[w2, "path"] = flat(it)
    for pv in range(0 if pl else 4 if xsw else 2):
        pc[0] = pc0; w2 = pv & 1
        if pv == 2: _, xap, n0, xp = xsw[:4]
        ld = lambda nu: (xtl() if nu == xt else []) + (xa() if nu == xap else []) + (xb() if nu == xp else []) + (uload(w2, nu) if nu < 9 else [])
        P = parse(f"L_prep{pv}:") + (parse(f"s_cmp_ge_u32 s{sW}, 2\ns_cbranch_scc1 L_prep3") if pv == 2 else []) + parse(uaddr[w2]) + flat(ld(nu) for nu in range(nh)) + parse(tables) + flat(ld(nu) for nu in range(nh, n0))
        if pv >= 2 and len(xsw) > 4:
            ua = uaddr[w2].strip().split("\n"); ub = []
            if not w2:
                ub = [y for y in ua if "s60" in y]; ua = [y.replace(f"v{oor},", f"v{t+8},") for y in ua if "s60" not in y]
            P = parse(f"L_prep{pv}:") + (parse(f"s_cmp_ge_u32 s{sW}, 2\ns_cbranch_scc1 L_prep3") if pv == 2 else []) + parse(ua) + flat(ld(nu) for nu in range(xsw[4])) + \
                xs("p0") + parse(lanec) + parse(ub) + flat(ld(nu) for nu in range(xsw[4], xsw[5])) + parse(tables) + flat(ld(nu) for nu in range(xsw[5], n0))
        P += xs("p1") + st(1) + ps() + (parse(gfin) if w2 else un95(0)) + uxpose(w2, 0); rr = resid_rd((0, 2, 3, 1)); rk = 0
        for nu in range(9):
            nx = uxpose(w2, nu + 1) if nu < 8 else []
            if nu == 3: P += ps() + bar() + xs("p3") + ps()
            if nu == 6: P += rr[rk:] + ps() + bar() + xs("p4") + ps()
            f = ufin(w2, nu); l = ld(nu + n0) if nu + n0 <= 9 else []
            if nu % 3 == 1 and nu < 6 and not w2: l += un95(nu // 3 + 1)
            for e in range(4):
                r = []
                if 3 <= nu < 6: r = rr[rk:rk+3]; rk += 3
                m = nx[e:e+1] if len(nx) < 6 else (nx[0:2], nx[2:4], nx[4:5], nx[5:6])[e]
                P += m[:1] + f[e][:2] + m[1:] + f[e][2:] + r + l[len(l)*e//4:len(l)*(e+1)//4]
            P += ps()
        S[f"prep{pv}"] = P + xs("p2") + (parse("s_branch L_conv0") if pv != 1 else [])
    def res(p, f): return a4(48 * POS[p][1] + 4 * f)
    sfl = opt.get("sfl", "")
    def epi_mm(u): return [mm32("f16", ACC[u] + 16 * b, res(11, 6 + 2 * b + s), r4(G[u] + 4 * s)) for s in range(2) for b in range(3)]
    def epi(u, b, fl):
        d = ACC[u] + 16 * b
        return parse([f"v_cvt_pk_bf16_f32 v{d+4*s+e}, v{d+8*s+2*e}, v{d+8*s+2*e+1}" for s in range(2) for e in range(4)] +
                     [f"v_permlane16_swap_b32 v{d+e}, v{d+4+e}" for e in range(4)] +
                     [f"buffer_store_dwordx4 {r4(d+4*s)}, v{vO}, {srd(sO)}, s{sOF[2*u+s]} offen offset:{64*b} {fl}".rstrip() for s in range(2)])
    greg = lambda g: (0, 1, 0)[g >> 2]
    def Bop(g, dx, u, first):
        if g % 2 == 0: return a4(cB + 8 * dx + 4 * u)
        return r4([Y[0], Y[0] + 4, Y[0] + 8, Y[0] + 12, G[0], G[0] + 4][2 * dx + u])
    def rdB(g, dx, u, first):
        if g > 11: return []
        i = I(f"ds_read_b128 {Bop(g, dx, u, first)}, v{vPB+4*dx+(g&3)} offset:{REG*greg(g)+SUB*u}")
        return [tag(i, [RG(greg(g))], [RD(greg(g))])]
    rdAD = lambda g: [I(f"ds_read_b128 {a4(cAD+4*(g&1))}, v{vA} offset:{256*g}")] if g < 12 else []
    rdAS = lambda g: [I(f"ds_read_b128 {a4(cAS+4*(g&1))}, v{vA} offset:{256*g+16}")] if g < 12 else []
    def rdR(b, cR=cR): return [tag(I(f"ds_read_b128 {a4(cR+8*s+4*u)}, v{vRS+s} offset:{REG*greg(4*b)+SUB*u}"), [RG(greg(4*b))], [RD(greg(4*b))]) for s in range(2) for u in range(2)]
    def mmR(b, cR=cR): return [mm32("bf16", ACC[1] + 16 * b, a4(ID), a4(cR + 4), r16(ACC[0] + 16 * b)), mm32("bf16", ACC[0] + 16 * b, a4(ID), a4(cR)),
                        mm32("bf16", ACC[1] + 16 * b, a4(ID + 4), a4(cR + 12)), mm32("bf16", ACC[0] + 16 * b, a4(ID + 4), a4(cR + 8))]
    cinit = lambda b: [I(f"ds_read_b128 {r4(ACC[0]+16*b+4*a)}, v{vCT} offset:{128*b+32*a}") for a in range(4)]
    def cmm(g, dx, u, first):
        cc = r4(Creg(u, g)); bb = Bop(g, dx, u, first)
        if dx == 0: return I(f"v_mfma_f32_16x16x32_bf16 {cc}, {a4(cAD+4*(g&1))}, {bb}, 0")
        a = cAS + 4 * (g & 1) + 2 * dx - 2
        return I(f"v_smfmac_f32_16x16x32_bf16 {cc}, a[{a}:{a+1}], {bb}, v{vIDX}")
    def stats(u, g):
        cc = Creg(u, g); vS, vQ = vSQ[u], vSQ[u] + 1; l = []
        for r in range(4):
            if g == 0 and r == 0: l += [f"v_mul_f32 v{vQ}, v{cc}, v{cc}"]
            elif g == 0 and r == 1: l += [f"v_add_f32 v{vS}, v{cc}, v{cc+1}", f"v_fmac_f32 v{vQ}, v{cc+1}, v{cc+1}"]
            else: l += [f"v_add_f32 v{vS}, v{vS}, v{cc+r}", f"v_fmac_f32 v{vQ}, v{cc+r}, v{cc+r}"]
        return parse(l)
    def cvt16(u, g):
        cc = Creg(u, g); d = Creg(u, g & ~1) + 2 * (g & 1)
        return parse([f"v_cvt_pk{'rtz' if opt.get('rtz', 0) & 2 else ''}_f16_f32 v{d+e}, v{cc+2*e}, v{cc+2*e+1}" for e in range(2)])
    def dots(u, g):
        d = Creg(u, g & ~1) + 2 * (g & 1); vS, vQ = vSQ[u], vSQ[u] + 1; c = lambda r, e: 0 if g == 0 and e == 0 else f"v{r}"
        return parse([x for e in range(2) for x in (f"v_dot2_f32_f16 v{vQ}, v{d+e}, v{d+e}, {c(vQ, e)}", f"v_dot2_f32_f16 v{vS}, v{d+e}, s{sONE}, {c(vS, e)}")])
    early = opt.get("early"); dmid = opt.get("dmid", 0)
    pl = lambda g: rdAD(g) + rdB(g, 0, 0, 0) + rdB(g, 0, 1, 0) + rdAS(g) + flat(rdB(g, dx, u, 0) for dx in (1, 2) for u in range(2))
    def conv(first, fl=""):
        B = ls(0) + ls(0, 4) + ls(0, 5) + (ps() if first else [])
        EM = [] if first else epi_mm(1)
        ea_ = early and not first
        if ea_: B += EM[3:4]
        else: B += pl(0) + EM[0:2] + pl(1)[:4] + EM[2:3] + pl(1)[4:]
        X = {g: [[], [], []] for g in range(12)}
        for g in range(1, 12):
            if h16: X[g][0] += cvt16(0, g - 1); X[g][opt.get("cvb", 2)] += cvt16(1, g - 1)
            else: X[g][0] += stats(0, g - 1); X[g][1] += stats(1, g - 1)
        if ea_: X[0][0] += EM[4:5] + cinit(0); X[0][1] += EM[5:6]
        else:
            X[0][0] += EM[3:4]; X[0][1] += EM[4:5]; X[0][2] += EM[5:6]
            X[1][2] += rdR(0)
        d2 = xdma(2, 0, opt.get("dfl0", dfl) if first else opt.get("dfl2", ""))
        def weave(v, dm):
            if not v: return flat(dm)
            o = []; n = len(v) // len(dm)
            for k, d in enumerate(dm): o += d[:1] + v[n*k:n*k+1] + d[1:] + v[n*k+1:n*k+n]
            return o + v[n*len(dm):]
        if first:
            c0, cn = opt.get("c0d", (8, 1))
            for k in range(0, 7, cn): g, j = divmod(c0 + k // cn, 3); X[g][j] = weave(X[g][j], d2[k:k+cn]) if len(X[g][j]) >= cn else X[g][j] + flat(d2[k:k+cn])
        else:
            e = {(1, b): epi(1, b, fl) for b in range(3)}
            val = e[1, 0][:12] + e[1, 1][:12] + e[1, 2][:12]
            if ea_:
                X[0][1] += val[:8]; X[0][2] += val[8:12]; X[1][1] += val[12:16]; X[1][2] += val[16:24]
                dp = opt.get("dp", (0, 2, 4, 6, 8, 10, 12))
                X[2][0] = weave(X[2][0], d2[0:1]); X[2][1] = weave(val[24:28], d2[1:2]); X[2][2] = weave(X[2][2] + val[28:], d2[2:4])
                X[3][0] = weave(X[3][0], d2[4:5]); X[3][1] = weave(X[3][1], d2[5:6]); X[3][2] = weave(X[3][2], d2[6:7])
            else:
                X[2][2] += weave(val[:24], d2[0:3]); X[3][0] = weave(X[3][0], d2[3:4]); X[3][1] = weave(X[3][1], d2[4:5]); X[3][2] += weave(val[24:], d2[5:7])
            for k, sl in enumerate(opt.get("bst", (12, 15, 18, 22, 26, 30))): X[sl // 3][sl % 3] += e[1, k >> 1][12 + (k & 1):13 + (k & 1)]
            X[11][1] += parse([f"s_add_u32 s{s}, s{s}, {8*ROW}" for s in sOF])
        if h16 or opt.get("rlate"):
            X[10][0] += rdR(2, cR2)[:0] if ea_ else cinit(0); X[11][0] += rdR(2, cR2)
        else:
            X[5][1] += cinit(0); m = mmR(0)
            X[6][1] += m[0:1]; X[6][2] += m[1:2]; X[7][0] += m[2:3]; X[7][1] += m[3:4]; X[7][2] += rdR(1)
            X[8][0] += cinit(1); m = mmR(1)
            X[9][0] += m[0:1]; X[9][1] += m[1:2]; X[9][2] += m[2:3]; X[10][0] += m[3:4]; X[10][1] += rdR(2)
            X[11][0] += cinit(2)
        for g in range(12):
            op = lambda g, dx: [Bop(g, dx, u, first) for u in range(2)]
            B += [cmm(g, 0, 0, first)] + rdB(g + 2, 0, 0, first) + [cmm(g, 0, 1, first)] + rdAD(g + 2) + rdB(g + 2, 0, 1, first) + X[g][0]
            B += [cmm(g, 1, 0, first)] + rdB(g + 2, 1, 0, first) + [cmm(g, 1, 1, first)] + rdB(g + 2, 1, 1, first) + X[g][1]
            B += [cmm(g, 2, 0, first)] + rdB(g + 2, 2, 0, first) + [cmm(g, 2, 1, first)]
            if g < 11: B += [use(*op(g + 1, 0), *op(g + 1, 1), *op(g + 1, 2), a4(cAD + 4 * (~g & 1)), a4(cAS + 4 * (~g & 1)), *([r16(ACC[0])] if ea_ and g == 0 else []))]
            B += rdB(g + 2, 2, 1, first) + rdAS(g + 2) + X[g][2]
            if h16 == 1 and g: B += il(dots(0, g - 1), dots(1, g - 1))
            if h16 == 2 and g == dmid: B += flat(il(dots(0, k), dots(1, k)) for k in range(g))
            if g == opt.get("lsp", 5): B += ls(1)
            B += ls(1 + g, 4)
            if first: B += xs(f"c{g}") + ps()
        if first and opt.get("ot0"): B += [I(f"buffer_load_dword v{SC+1}, v{vTO}, {srd(sO)}, 0 offen {opt.get('otf', '')}".rstrip())]
        if first:
            B += bar() + st(2) + xs("m0") + ps()
        return B
    uses = [(0, f) for f in range(6)]
    for p in range(8): uses += ([(p + 1, f) for f in range(6)] if p < 7 else []) + [(p, 6 + 2 * b + s) for s in range(2) for b in range(3)]
    def wread(k):
        if k >= len(uses): return []
        p, f = uses[k]; gi, qq = POS[p]
        return [I(f"ds_read_b128 {a4(WR+4*(k%6))}, v{vW[gi-1]} offset:{12288*qq+1024*f}")]
    def frag(p, f):
        if not POS[p][0]: return res(p, f), []
        k = uses.index((p, f)); wk = opt.get("wstep", 2)
        w = [use(*[a4(WR + 4 * (j % 6)) for j in range(k + 1, min(k + 1 + wk, len(uses)))])] if k % wk == wk - 1 else []
        return a4(WR + 4 * (k % 6)), w + wread(k + 6)
    B = parse("L_mid:") + ([] if h16 else stats(0, 11) + stats(1, 11) + ls(2) + ls(13, 4))
    def lnfin(u):
        vS, vQ = vSQ[u], vSQ[u] + 1
        return parse(f"""
v_permlane32_swap_b32 v{vS}, v{vQ}
v_add_f32 v{vS}, v{vS}, v{vQ}
v_mov_b32 v{vQ}, v{vS}
v_permlane32_swap_b32 v{vS}, v{vQ}
v_mul_f32 v{vS}, {hex(f2u(1/96))}, v{vS}
v_mul_f32 v{vQ}, {hex(f2u(1/96))}, v{vQ}
v_fma_f32 v{vQ}, -v{vS}, v{vS}, v{vQ}
v_max_f32 v{vQ}, 0, v{vQ}
v_add_f32 v{vQ}, {hex(f2u(1e-5))}, v{vQ}
v_rsq_f32 v{vQ}, v{vQ}
""" + (f"""v_fma_mixlo_f16 v{vQ}, v{vQ}, s{sK}, 0
v_fma_mixhi_f16 v{vQ}, -v{vS}, v{vQ}, 0 op_sel_hi:[0,1,0]""" if h16 else f"""v_mul_f32 v{vQ}, {hex(f2u(K_))}, v{vQ}
v_mul_f32 v{vS}, -v{vS}, v{vQ}"""))
    nxt = parse(f"s_cmp_eq_u32 s{sT}, 3\ns_cselect_b32 s{sINC}, 0x40000000, {8*ROW}") + parse([f"v_add_u32 v{r}, s{sINC}, v{r}" for r in list(range(vDM, vDM + 7)) + [vTC]])
    if not h16: B += il(lnfin(0), lnfin(1), flat(wread(k) for k in range(6)) + [], nxt)
    g1 = lambda p, m, u, a: mm32(T1, Y[u], a, r4(YN[u] + 4 * m), "0" if m == 0 else None)
    def norm(u, kk):
        vS, vQ = vSQ[u], vSQ[u] + 1
        ce, co = Creg(u, 2 * kk), Creg(u, 2 * kk + 1)
        l = [f"v_fma_f32 v{cc+r}, v{cc+r}, v{vQ}, v{vS}" for cc in (ce, co) for r in range(4)]
        if kk == 5: l = l + ["s_mov_b32 exec_lo, 0", f"v_mov_b32 v{co+3}, {hex(f2u(KB))}", "s_mov_b32 exec_lo, -1"]
        l += [f"v_cvt_pk_bf16_f32 v{ce}, v{ce}, v{ce+1}", f"v_cvt_pk_bf16_f32 v{ce+1}, v{ce+2}, v{ce+3}",
              f"v_cvt_pk_bf16_f32 v{ce+2}, v{co}, v{co+1}", f"v_cvt_pk_bf16_f32 v{ce+3}, v{co+2}, v{co+3}"]
        return parse(l)
    ring = lambda p, f: a4(WR + 4 * (uses.index((p, f)) % 6))
    if h16:
        def norm(u, kk):
            p = vSQ[u] + 1; r = YN[u] + 4 * kk
            l = [f"v_pk_fma_f16 v{r+e}, v{r+e}, v{p}, v{p} op_sel:[0,0,1] op_sel_hi:[1,0,1]" for e in ((3, 0, 1, 2) if kk == 5 else range(4))]
            if kk == 5: l = l[:3] + [f"v_bfi_b32 v{r+3}, v{vMK}, v{r+3}, s{sKB}"] + l[3:]
            return parse(l)
        B += il(nxt, flat(wread(k) for k in range(6))) + il(cvt16(0, 11), cvt16(1, 11))
        for g in ([11] if h16 == 1 else range(dmid, 12)): B += il(dots(0, g), dots(1, g))
        B += ls(2) + ls(13, 4)
        m = mmR(0); ci = cinit(1) + cinit(2); lf = il(lnfin(0), lnfin(1))
        B += [use(r16(ACC[0]), *[a4(c + 4 * f) for c in (cR, cR2) for f in range(4)], *[ring(0, f) for f in range(6)])]
        B += m[:1] + ci[:2] + mix(lf, [(24, m[1:2]), (48, m[2:3]), (72, m[3:4])] + [(8 + 16 * k, [x]) for k, x in enumerate(ci[2:])]) + rdR(1)
        n1 = flat(norm(1, kk) for kk in range(6))
        for kk in range(6):
            l = norm(0, kk); m = [g1(0, kk - 1, 0, ring(0, kk - 1))] if kk else [use(*[ring(0, f) for f in range(6)])]
            B += n1[2 * kk:2 * kk + 2] + m + l if kk else m + l
        B += n1[0:2] + [g1(0, 5, 0, ring(0, 5))] + n1[12:]
    for u in range(0 if h16 else 2):
        for kk in range(6):
            l = norm(u, kk); m = []
            if u == 0 and kk: m = [g1(0, kk - 1, 0, ring(0, kk - 1))]
            if u == 1 and kk == 0: m = [g1(0, 5, 0, ring(0, 5))]
            if u == 1 and kk >= 4: m = [g1(0, kk - 4, 1, ring(0, kk - 4))] + wread(kk + 2)
            if u == 1 and 1 <= kk < 4: m = mmR(2)[kk:kk + 1]
            if u == 0 and kk == 0: m = mmR(2)[0:1] + [use(*[ring(0, f) for f in range(6)])]
            B += l[:2] + m + l[2:]
    def sd(op, d, s): return f"{op}_sdwa v{d}, v{s} dst_sel:WORD_1 dst_unused:UNUSED_PRESERVE src0_sel:WORD_1"
    def gelu(u, split=False):
        cvt = [f"v_cvt_pk{'rtz' if opt.get('rtz', 0) & 1 else ''}_f16_f32 v{U+i}, v{Y[u]+2*i}, v{Y[u]+2*i+1}" for i in range(8)]
        fma = [f"v_pk_fma_f16 v{T+i}, v{U+i}, v{U+i}, s{sC}" for i in range(8)]
        mul = [f"v_pk_mul_f16 v{T+i}, v{T+i}, v{U+i} neg_lo:[1,0] neg_hi:[1,0]" for i in range(8)]
        el = [f"v_exp_f16 v{E+i}, v{T+i}" for i in range(8)]; eh = [sd("v_exp_f16", E + i, T + i) for i in range(8)]
        ad = [f"v_pk_add_f16 v{E+i}, v{E+i}, 1.0 op_sel_hi:[1,0]" for i in range(8)]
        rl = [f"v_rcp_f16 v{T+i}, v{E+i}" for i in range(8)]; rh = [sd("v_rcp_f16", T + i, E + i) for i in range(8)]
        mg = [f"v_pk_mul_f16 v{G[u]+i}, v{T+i}, v{U+i}" for i in range(8)]
        if opt.get("gord", 0) == 0: return parse(cvt + fma + mul + el + eh + ad + rl + rh + mg)
        h = lambda l, k: l[4 * k:4 * k + 4]
        if split: return parse([h(l, k) for k in range(2) for l in (cvt, fma, mul, el, eh, ad, rl, rh, mg)])
        return parse(cvt + h(fma, 0) + h(mul, 0) + il(h(el, 0), h(fma, 1)) + il(h(eh, 0), h(mul, 1)) + h(el, 1) + il(h(eh, 1), h(ad, 0)) +
                     h(rl, 0) + il(h(rh, 0), h(ad, 1)) + h(rl, 1) + il(h(rh, 1), h(mg, 0)) + h(mg, 1))
    pf = xdma(0, 0, opt.get("xfl", "")) + xdma(1, 1, opt.get("xfl", "")) + [touch(opt.get("xfl", ""))]
    pp = opt.get("pfpos", range(15))
    g2 = lambda p, u, b, s, a: mm32("f16", ACC[u] + 16 * b, a, r4(G[u] + 4 * s))
    slots = [(p, u) for p in range(8) for u in range(2)] + [(p, u) for u in range(2) for p in range(8, 12)]
    def slot(j, fl, tg=''):
        p, u = slots[j]; B = []; ea = {b: epi(0, b, fl) for b in range(3)}
        if j % 2 == 0: B += ls(3 + j // 2)
        if j == 16: B += ls(15, 5)
        for tt in range(4):
            if xs(f"s{tt}_{j}"): B += parse(f"s_cmp_lg_u32 s{sT}, {tt}\ns_cbranch_scc1 L_xs{tg}{tt}_{j}") + xs(f"s{tt}_{j}") + parse(f"L_xs{tg}{tt}_{j}:")
        if j < 2: B += ls(14 + j, 4)
        M = []; f0, l0 = opt.get("mpos", ((0, 372), (0, 372)))[u]
        if j == 0 and h16:
            M = [[g1(0, m, 1, ring(0, m))] + wread(m + 6) for m in range(6)]; r = [[x] for x in mmR(2, cR2) + mmR(1)[:2]]
            M = M[:4] + il(M[4:], r[:2]) + r[2:]; M[-1].append(use(ring(1, 0), ring(1, 1)))
        elif j == 0: M = [[g1(0, m, 1, ring(0, m))] + wread(m + 6) for m in range(2, 6)]; M[-1].insert(1, use(ring(1, 0), ring(1, 1))); l0 = 300
        elif j < 15 and u == 0:
            for s in range(2):
                for b in range(3):
                    a, post = frag(p - 1, 6 + 2 * b + s); M += [[g2(p - 1, 0, b, s, a)], [g2(p - 1, 1, b, s, a)] + post]
        elif j < 15:
            for m in range(6):
                a, post = frag(p + 1, m); M += [[g1(p + 1, m, 0, a)], [g1(p + 1, m, 1, a)] + post]
            if j == 1 and h16: M = M + [mmR(1)[2:3], mmR(1)[3:4]]; l0 = opt.get("l1", 400)
        else:
            p2, u2 = slots[j - 1]
            m2 = [[g2(p2, u2, b, s, ring(7, 6 + 2 * b + s) if p2 == 7 else res(p2, 6 + 2 * b + s))] for s in range(2) for b in range(3)]
            if j == 15:
                for k in (0, 2): m2[k].append(use(*[ring(7, 6 + 2 * (x % 3) + x // 3) for x in range(k + 1, k + 4)]))
            if j < 23:
                p1, u1 = slots[j + 1]; m1 = [[g1(p1, m, u1, res(p1, m))] for m in range(6)]
                M = [m2[0], m1[0], m2[1], m1[1], m2[2], m1[2], m2[3], m1[3], m1[4], m1[5], m2[4], m2[5]]
            else: M = m2
        if opt.get("wadj"):
            M = [[x for x in e if x.kind != "use"] for e in M]
        ex = [(f0 + (l0 - f0) * k / (len(M) - 1), e) for k, e in enumerate(M)]
        if opt.get("wadj"):
            wa, wb = opt["wadj"]
            if 1 <= j <= 15: ex += [(wa, [use(*[a4(WR + 4 * f) for f in (3, 4, 5)])])]
            if j < 15: ex += [(wb, [use(*[a4(WR + 4 * f) for f in (0, 1, 2)])])]
            if j == 0 and h16: ex += [(64, [use(*[a4(c + 4 * f) for c in (cR, cR2) for f in range(4)], r16(ACC[0] + 16), r16(ACC[0] + 32))])]
        pq = opt.get("pq", (146, 154))
        ex += [(pq[0], pf[k][:-1]) for k in range(15) if pp[k] == j] + [(pq[1], pf[k][-1:]) for k in range(15) if pp[k] == j]
        for b, (jv, pv, (j0, p0), (j1, p1_)) in enumerate(opt.get("ast", ((21, 40, (21, 200), (21, 380)), (22, 40, (22, 200), (22, 380)), (22, 240, (23, 100), (23, 300))))):
            if j == jv: ex += [(pv + 8 * k, [x]) for k, x in enumerate(ea[b][:12])]
            if j == j0: ex += [(p0, ea[b][12:13])]
            if j == j1: ex += [(p1_, ea[b][13:14])]
        if j == opt.get("ot"): ex += [(pq[1] + 60, [I(f"buffer_load_dword v{SC+1}, v{vTO}, {srd(sO)}, s{sOF[0]} offen {opt.get('otf', '')}".rstrip())])]
        if early:
            pr = pl(0) + rdR(0) + pl(1)
            ex += [(q_, [x]) for x, (j_, q_) in zip(pr, opt.get("epos", [(19 + k // 7, 50 + 50 * (k % 7)) for k in range(14)] + [(21, 220 + 28 * k) for k in range(6)])) if j_ == j]
            if j == 21: ex += [(168, [use(*[r for x in pr[:14] for r in x.wr if r[0] != "x"])])]
            if j == 23:
                ex += [(64, [use(*[r for x in pr for r in x.wr if r[0] != "x"])])]
                ex = [(q_ * 0.5 if e[0].kind == "mfma" else q_, e) for q_, e in ex] + [(232 + 60 * b, epi_mm(1)[b:b+1]) for b in range(3)]
        B += mix(gelu(u, early and j == 23), ex)
        return B
    for j in range(21): B += slot(j, sfl)
    def tail(fl, tg):
        B = flat(slot(j, fl, tg) for j in (21, 22, 23)) + ls(15)
        for tt in range(4):
            if xs(f"t{tt}"): B += parse(f"s_cmp_lg_u32 s{sT}, {tt}\ns_cbranch_scc1 L_xs{tg}{tt}") + xs(f"t{tt}") + parse(f"L_xs{tg}{tt}:")
        return B + parse(f"s_add_u32 s{sT}, s{sT}, 1")
    padi = xs("pa") + parse([opt.get("padop", "v_mov_b32_e64 v253, v253")] * opt.get("pad", 0)) + xs("pb")
    S["conv0"] = parse("L_conv0:") + padi + conv(True)
    npl = opt.get("nplain", 0)
    S["mid"] = B + (parse(f"s_cmp_ge_u32 s{sT}, {npl}\ns_cbranch_scc1 L_tail") if npl else [])
    S["conva"] = tail(opt.get("sfl0", ""), "a") + conv(False, opt.get("sfl0b", opt.get("sfl0", ""))) + parse("s_branch L_mid") if npl else []
    S["tail"] = parse("L_tail:") + tail(sfl, "") + parse(f"s_cmp_eq_u32 s{sT}, 4\ns_cbranch_scc1 L_final")
    S["conv"] = parse("L_conv:") + conv(False, sfl) + parse("s_branch L_mid")
    EM = epi_mm(1); fl = opt.get("sflf", sfl)
    F = parse("L_final:") + [EM[k] for k in ((3, 4, 5) if early else (0, 3, 1, 4, 2, 5))] + flat(epi(1, b, fl) for b in range(3))
    if opt.get("ro"):
        wg, wv, sa, sb = opt["ro"]
        F += parse("s_waitcnt vmcnt(0)") + st(7) + parse(f"""s_cmp_lg_u32 s2, {wg if wg >= 0 else 's2'}
s_cbranch_scc1 L_end
s_cmp_lg_u32 s{sW}, {wv if wv >= 0 else 's'+str(sW)}
s_cbranch_scc1 L_end
s_sub_u32 s60, s{sa}, s{sb}
s_mul_i32 s60, s60, {10 if opt.get('exrt') else 1}
s_min_u32 s60, s60, 150000
s_add_u32 s60, s60, 10000
L_spin:
s_memrealtime s[62:63]
s_waitcnt lgkmcnt(0)
s_sub_u32 s61, s62, s96
s_cmp_lt_u32 s61, s60
s_cbranch_scc1 L_spin""")
    elif stamp:
        F += parse("s_waitcnt vmcnt(0)") + st(7) + parse(f"""
s_load_dwordx4 s[4:7], s[0:1], 64
s_waitcnt lgkmcnt(0)
{mksrd(sDW, 4, 65536)}
{mksrd(sB1, 6, 1 << 20)}
s_lshl_b32 s60, s2, 3
s_add_u32 s60, s60, s{sW}
s_lshl_b32 s61, s60, 8
s_lshl_b32 s60, s60, 5
v_mov_b32 v17, s60
v_lshrrev_b32 v18, 2, v{vW[0]}
buffer_store_dword v255, v18, {srd(sB1)}, s61 offen
""" + "\n".join((f"s_sub_u32 s61, s{96+k}, s97" if k in (2, 3, 4) else f"s_mov_b32 s61, s{96+k}") + f"\nv_mov_b32 v16, s61\nbuffer_store_dword v16, v17, {srd(sDW)}, 0 offen offset:{4*k}" for k in range(6))
 + "\n" + "\n".join(f"s_sub_u32 s61, s{88+2*k}, s97\nv_mov_b32 v16, s61\nbuffer_store_dword v16, v17, {srd(sDW)}, 0 offen offset:{24+4*k}" for k in range(2)))
    S["final"] = F + parse("L_end:\ns_endpgm")
    S["head"] = (parse("s_memrealtime s[76:77]") if opt.get("rt0") else []) + S["head"]
    out, stats_ = resolve(S, [["head"] + (["hxa", "head2"] if pr < "prep2" else [] if len(xsw) > 4 else ["head2"]) + [pr] + PP.get((int(pr[-1]), "path"), []) + ["conv0", "mid"] + a + ["mid"] + b + ["mid", "tail", "final"] for pr in ("prep0", "prep1", "prep2", "prep3")[:4 if xsw else 2] for a, b in (((["conva"], ["conva"]), (["conva"], ["tail", "conv"]), (["tail", "conv"], ["tail", "conv"])) if npl else ((["tail", "conv"], ["tail", "conv"]),))])
    for w2 in range(2):
        for n in PP.get(w2, []):
            out[f'prep{w2}'] += out.pop(n); q_ = stats_.pop(n)
            for k in q_: stats_[f'prep{w2}'][k] += q_[k]
    return out, stats_

HDR = open("standalone__modern_conv_block_convnext__vision.s.ref").read().split("; Override launch")[0]
BLOCK, NVGPR = 256, 512
def emit(opt, name=KNAME, full=True):
    out, stats_ = gen(opt)
    lines = [l for n in ("head", "hxa", "head2", "prep0", "prep2", "prep3", "prep1", "conv0", "mid", "conva", "tail", "conv", "final") for l in out[n]]
    if opt.get("align"):
        import align
        lines, a = align.align(lines, opt["align"] == 2); stats_["align"] = dict(n=a["bad"], waits=a["fixed"], nops=a["nops"], port=a["bytes"], mem=0)
    body = "\n".join(lines)
    if name != KNAME: body = body.replace("L_", f"L_{name}_")
    s = ""
    if full:
        s += HDR + f"; Generated by tools/gen2.py (hand-designed schedule, see that file)\n; @launch grid=(256,1,1) block=({BLOCK},1,1) lds={LDS}\n"
        s += '.amdgcn_target "amdgcn-amd-amdhsa--gfx950"\n'
    s += f""".text
.globl {name}
.p2align 8
.type {name},@function
{name}:
{body}
.section .rodata,"a"
.p2align 6
.amdhsa_kernel {name}
  .amdhsa_next_free_vgpr {NVGPR}
  .amdhsa_next_free_sgpr 102
  .amdhsa_accum_offset 256
  .amdhsa_group_segment_fixed_size 0
  .amdhsa_kernarg_size 80
  .amdhsa_user_sgpr_count 2
  .amdhsa_user_sgpr_kernarg_segment_ptr 1
  .amdhsa_system_sgpr_workgroup_id_x 1
.end_amdhsa_kernel
"""
    return s, stats_

DEFAULT = dict(sfl='sc0 sc1', gord=1, dfl='', b1t=1, n0=5, h16=2, early=1, bst=(19, 22, 25, 28, 31, 34), dmid=5, wadj=(176, 336), mpos=((4, 364), (4, 364)), rtz=3)
if __name__ == "__main__":
    if len(sys.argv) > 1:
        import os; os.makedirs("var", exist_ok=True)
        for a in sys.argv[1:]:
            n, o = a.split(":", 1); d = dict(DEFAULT); d.update(eval(o))
            s, st_ = emit(d); open(f"var/{n}.s", "w").write(s)
            print(n, {k: (v['n'], v['waits'], v['nops'], v['port'], v['mem']) for k, v in st_.items()})
        sys.exit(0)
    s, st_ = emit(DEFAULT)
    open("standalone__modern_conv_block_convnext__vision.s", "w").write(s)
    for n, v in st_.items(): print(n, v)
```

```python
import sys, struct, math
from asmdsl import I, parse, resolve, use
import sched

KNAME = "standalone__modern_conv_block_convnext__vision_kernel"
def f2u(x): return struct.unpack("<I", struct.pack("<f", x))[0]
def h2u(x): return struct.unpack("<H", struct.pack("<e", x))[0]
A_ = 2 * math.sqrt(2 / math.pi) * math.log2(math.e)
K_ = (A_ * 0.044715) ** (1 / 3)
C_ = A_ / K_
XB = 512 * 512 * 192
ROW = 98304
OOR = 0x10000000
WA, WB = 0, 40960
IMG = 90112; IMGW = 12800; REG = 6400; SUB = 2560
TAB = IMG + 4 * IMGW; DYS = 3072
G2 = TAB + 3 * DYS
LUT = G2 + 384
LDS = 163840
vDM, vPB, vIDX, vMK, vRS, vA, vW, vCT, vO, vSQ, vTC = 1, 8, 16, 17, 20, 22, (23, 24), 25, 26, (27, 29), 31
ACC, YN, Y, U, T, E, G = (32, 80), (128, 152), (176, 192), 208, 216, 224, (232, 240)
SC = 252
pS, pT, pN, pD, GK = 232, 234, 236, 224, 176
def Creg(u, g): return YN[u] + 4 * (g >> 1) if g % 2 == 0 else E + 4 * u
cAD, cAS, cR = Y[1], Y[1] + 8, (ACC[0] + 16, U, G[0])
SPC, ID, WR = 192, 224, 232
sW = 3; sX = 20; sO = 24; sDW = 28; sB1 = 32; sB2 = 36; sGA = 40; sW1 = 44; sW2 = 48
sT, sC, sROW, sCOL, sIMG, sINC, sONE, sK = 52, 53, 54, 55, 56, 57, 58, 59
sOF = (80, 81, 82, 83)
sKB, sLUT = 84, 85
POS = {p: ((p // 4 + 1) % 3, p % 4) for p in range(12)}
r4 = lambda r: f"v[{r}:{r+3}]"
a4 = lambda r: f"a[{r}:{r+3}]"
r16 = lambda r: f"v[{r}:{r+15}]"
srd = lambda s: f"s[{s}:{s+3}]"
flat = lambda ll: [x for l in ll for x in l]

def mm32(ty, d, a, b, c=None):
    return I(f"v_mfma_f32_32x32x16_{ty} {r16(d)}, {a}, {b}, {r16(d) if c is None else c}")
def mix(main, extra):
    extra = sorted(extra, key=lambda e: e[0]); out = []; acc = 0; k = 0
    for m in main:
        while k < len(extra) and extra[k][0] <= acc: out += extra[k][1]; k += 1
        out.append(m); acc += m.cost
    for e in extra[k:]: out += e[1]
    return out
def il(*ls):
    out = []
    for k in range(max(map(len, ls))): out += [l[k] for l in ls if k < len(l)]
    return out
def mksrd(s, p, n): return f"s_mov_b32 s{s}, s{p}\ns_mov_b32 s{s+1}, s{p+1}\ns_mov_b32 s{s+2}, {n}\ns_mov_b32 s{s+3}, 0x20000"
def tag(i, rd=(), wr=()): i.rd = i.rd | set(rd); i.wr = i.wr | set(wr); return i
RG = lambda r: ("x", f"img{r}")
RD = lambda r: ("x", f"rd{r}")

def gen(opt):
    S = {}
    stamp = opt.get("stamp")
    def st(k):
        if not stamp: return []
        if k == 0 and opt.get("rt0"): return parse("s_waitcnt lgkmcnt(0)\ns_mov_b32 s96, s76\ns_mov_b32 s97, s78")
        if k == 0: return parse("s_memrealtime s[76:77]\ns_memtime s[78:79]\ns_waitcnt lgkmcnt(0)\ns_mov_b32 s96, s76\ns_mov_b32 s97, s78")
        if k == 7: return parse("s_memrealtime s[76:77]\ns_memtime s[78:79]\ns_waitcnt lgkmcnt(0)\ns_mov_b32 s101, s76\ns_mov_b32 s100, s78")
        return parse(f"s_memtime s[78:79]\ns_waitcnt lgkmcnt(0)\ns_mov_b32 s{97+k}, s78")
    def xs(k):
        if not stamp or k not in opt.get("exs", ()): return []
        r = 88 + 2 * opt['exs'].index(k)
        return parse(f"{'s_memrealtime' if opt.get('exrt') else 's_memtime'} s[{r}:{r+1}]\ns_waitcnt lgkmcnt(0)")
    def ls(k, mode=1):
        if stamp != mode: return []
        return parse(f"s_memtime s[78:79]\ns_lshl_b32 m0, s{sT}, 4\ns_add_u32 m0, m0, {k}\ns_waitcnt lgkmcnt(0)\ns_sub_u32 s78, s78, s97\nv_writelane_b32 v255, s78, m0")
    SQ = [60, 62, 64, 66, 68, 70, 72, 74, 76, 78, 86, 88, 90, 92, 94]
    def lq(k):
        if stamp != 1: return None
        i = I("s_mov_b32 s60, s60"); i.text = f"s_memtime s[{SQ[k]}:{SQ[k]+1}]"; i.rd = set(); i.wr = set(); return i
    def lqf():
        if stamp != 1: return []
        return [lq(14)] + parse(f"s_waitcnt lgkmcnt(0)\ns_lshl_b32 m0, s{sT}, 4\ns_sub_u32 m0, m0, 16") + flat(parse(f"s_sub_u32 s{r}, s{r}, s97\nv_writelane_b32 v255, s{r}, m0\ns_add_u32 m0, m0, 1") for r in SQ)
    pc = [0]
    def ps():
        if stamp != 3: return []
        pc[0] += 1
        return parse(f"s_memtime s[78:79]\ns_waitcnt lgkmcnt(0)\ns_sub_u32 s78, s78, s97\nv_writelane_b32 v255, s78, {pc[0]-1}")
    def xdma(Gq, reg, fl, ks=range(7)):
        l = []
        for k in ks:
            i = I(f"buffer_load_dword{'x4' if k < 6 else ''} v{vDM+k}, {srd(sX)}, 0 offen offset:{64*Gq} {fl} lds".replace("  ", " "))
            l.append(parse(f"s_add_u32 m0, s{sIMG}, {REG*reg + 1024*k - 64*Gq}") + [tag(i, [RD(reg)], [RG(reg)])])
        return l
    touch = lambda fl: [I(f"buffer_load_dword v{SC+2}, v{vTC}, {srd(sX)}, 0 offen {fl}".rstrip())]
    t = 128
    dmk = ""
    for k in range(7):
        if k == 6: dmk += f"v_lshrrev_b32 v{t}, 4, v{t+1}\nv_add_u32 v{t}, 96, v{t}\nv_bfe_u32 v{t+2}, v{t+1}, 2, 2\n"
        elif k: dmk += f"v_add_u32 v{t}, 16, v{t}\n"
        dmk += f"""v_mul_u32_u24 v{t+3}, 205, v{t}
v_lshrrev_b32 v{t+3}, 11, v{t+3}
v_mad_i32_i24 v{t+4}, v{t+3}, -10, v{t}
v_bfe_u32 v{t+5}, v{t+3}, 1, 1
v_bfe_u32 v{t+6}, v{t+4}, 2, 1
v_lshl_or_b32 v{t+5}, v{t+5}, 1, v{t+6}
v_xor_b32 v{t+5}, v{t+5}, v{t+2}
v_mad_u32_u24 v{t+3}, v{t+3}, s68, v{t+7}
v_lshl_add_u32 v{t+3}, v{t+5}, 4, v{t+3}
v_mad_u32_u24 v{t+3}, v{t+4}, s69, v{t+3}
v_add_u32 v{t+4}, s65, v{t+4}
v_cmp_gt_u32 vcc, 0x200, v{t+4}
"""
        if k == 6: dmk += f"v_and_b32 v{t+5}, 3, v{t+1}\nv_lshl_add_u32 v{t+3}, v{t+5}, 2, v{t+3}\n"
        dmk += f"v_cndmask_b32 v{vDM+k}, v{t+8}, v{t+3}, vcc\n"
    cpf = f"""s_getpc_b64 s[60:61]
L_pc:
v_lshlrev_b32 v18, 7, v0
v_add_u32 v20, 256, v18
v_add_u32 v18, L_end-L_pc-32640, v18
v_mov_b32 v19, s61
v_mov_b32 v21, s61
v_add_co_u32 v20, vcc, s60, v20
v_addc_co_u32 v21, vcc, 0, v21, vcc
v_add_co_u32 v18, vcc, s60, v18
v_addc_co_u32 v19, vcc, 0, v19, vcc
v_cmp_gt_u32 vcc, (L_end-L_pc-32640-256+127)/128, v0
s_and_saveexec_b64 s[62:63], vcc
s_cbranch_execz L_cpf
global_load_dword v250, v[20:21], off
L_cpf:
s_mov_b64 exec, s[62:63]
global_load_dword v251, v[18:19], off
""" if opt.get("cpf") else ""
    cpf2 = lambda k: parse("global_load_dword v251, v[18:19], off") if opt.get("cpf", 0) & k else []
    H = parse(f"""
s_cmp_ge_u32 s2, 256
s_cbranch_scc1 L_end
s_load_dwordx16 s[4:19], s[0:1], 0
v_lshrrev_b32 v{t}, 6, v0
v_and_b32 v{t+1}, 63, v0
v_readfirstlane_b32 s{sW}, v{t}
{cpf}s_and_b32 s60, s2, 7
s_lshl_b32 s60, s60, 5
s_lshr_b32 s61, s2, 3
s_add_u32 s60, s60, s61
s_lshr_b32 s61, s60, 4
s_and_b32 s60, s60, 15
s_lshl_b32 s{sROW}, s61, 5
s_lshl_b32 s60, s60, 5
s_lshl_b32 s62, s{sW}, 3
s_add_u32 s{sCOL}, s60, s62
s_mul_i32 s61, s{sROW}, {ROW}
s_mul_i32 s62, s{sCOL}, 192
s_add_u32 s63, s61, s62
s_sub_u32 s64, s63, {ROW+192}
s_sub_u32 s65, s{sCOL}, 1
s_mul_i32 s{sIMG}, s{sW}, {IMGW}
s_add_u32 s{sIMG}, s{sIMG}, {IMG}
s_mov_b32 s68, {ROW}
s_movk_i32 s69, 192
v_lshrrev_b32 v{t}, 2, v{t+1}
v_and_b32 v{t+2}, 3, v{t+1}
v_mov_b32 v{t+7}, s64
v_bfrev_b32 v{t+8}, 1
{dmk}
s_cmp_lt_u32 s{sCOL}, 504
s_cselect_b32 s66, 10, 0
v_add_u32 v{t+7}, {9*192+128}, v{t+7}
v_mad_u32_u24 v{t+3}, v{t+1}, s68, v{t+7}
v_cmp_gt_u32 vcc, s66, v{t+1}
v_cndmask_b32 v{vTC}, v{t+8}, v{t+3}, vcc
""")
    ln = t + 1
    H += parse(f"""
v_lshrrev_b32 v{t+10}, 5, v{ln}
v_mul_u32_u24 v{t+11}, 1366, v0
v_lshrrev_b32 v{t+11}, 16, v{t+11}
v_mul_u32_u24 v{t+11}, 384, v{t+11}
v_lshl_add_u32 v{t+11}, v0, 2, v{t+11}
v_lshlrev_b32 v{t+12}, 3, v0
s_lshr_b32 s71, s2, 3
s_lshl_b32 s71, s71, 2
s_add_u32 s71, s71, s{sW}
s_mul_i32 s71, s71, 640
v_lshlrev_b32 v{t+13}, 7, v{ln}
v_cmp_gt_u32 vcc, 5, v{ln}
v_cndmask_b32 v{t+13}, v{t+8}, v{t+13}, vcc
""") + st(0) + parse(f"""
{mksrd(sX, 4, XB)}
{mksrd(sDW, 6, 1728)}
{mksrd(sB2, 14, 192)}
{mksrd(sGA, 16, 192)}
""")
    tabld = parse(f"""
buffer_load_dword v{t+16}, v{t+11}, {srd(sDW)}, 0 offen
buffer_load_dword v{t+17}, v{t+11}, {srd(sDW)}, 0 offen offset:192
buffer_load_dword v{t+18}, v{t+11}, {srd(sDW)}, 0 offen offset:384
buffer_load_dwordx2 v[{t+20}:{t+21}], v{t+12}, {srd(sB2)}, 0 offen
buffer_load_dwordx2 v[{t+22}:{t+23}], v{t+12}, {srd(sGA)}, 0 offen
""")
    dfl = opt.get("dfl", "")
    wsrd = parse(f"{mksrd(sW1, 8, 73728)}\n{mksrd(sW2, 12, 73728)}\n{mksrd(sB1, 10, 768)}")
    wtouch = parse(f"buffer_load_dword v{t+14}, v{t+13}, {srd(sW1)}, s71 offen\nbuffer_load_dword v{t+15}, v{t+13}, {srd(sW2)}, s71 offen")
    if opt.get("b1t"): wtouch += parse(f"v_lshlrev_b32 v{t+19}, 7, v{ln}\nbuffer_load_dword v{t+19}, v{t+19}, {srd(sB1)}, 0 offen")
    q = t + 24
    n, kq, rp, c, par, oor, hh = q, q + 1, q + 2, q + 3, q + 4, q + 5, t + 10
    lanec = f"""
v_mov_b32 v{oor}, {OOR}
v_and_b32 v{n}, 15, v{ln}
v_lshrrev_b32 v{kq}, 4, v{ln}
v_add_u32 v{rp}, 4, v{n}
v_lshrrev_b32 v{rp}, 3, v{rp}
v_mad_i32_i24 v{c}, v{rp}, -4, v{n}
v_and_b32 v{rp}, 1, v{rp}
v_and_b32 v{par}, 1, v{kq}
v_lshlrev_b32 v{q+6}, 1, v{rp}
v_mul_u32_u24 v{q+7}, {ROW}, v{q+6}
v_mad_u32_u24 v{q+7}, v{c}, s69, v{q+7}
v_lshl_add_u32 v{q+7}, v{hh}, 4, v{q+7}
v_lshl_add_u32 v{q+7}, v{par}, 5, v{q+7}
v_add_u32 v{vO}, s63, v{q+7}
"""
    def pixaddr(d, row, col, fhi, x=None):
        return f"""v_add_u32 v{q+7}, v{q+6}, {row}
v_add_u32 v{q+8}, {col}, v{c}
v_mad_u32_u24 v{q+7}, v{q+7}, 10, v{q+8}
v_bfe_u32 v{q+8}, v{q+8}, 2, 1
v_lshl_or_b32 v{q+8}, v{fhi}, 1, v{q+8}
""" + (f"v_xor_b32 v{q+8}, v{x}, v{q+8}\n" if x else "") + f"""v_lshl_add_u32 v{q+8}, v{q+7}, 2, v{q+8}
v_lshl_add_u32 v{d}, v{q+8}, 4, s{sIMG}
"""
    lanec += f"v_xor_b32 v{q+9}, v{rp}, v{hh}\n" + pixaddr(vPB, f"v{kq}", 0, q + 9)
    lanec += f"v_add_u32 v{q+10}, 1, v{par}\n" + pixaddr(vPB + 4, f"v{hh}", f"v{q+10}", rp)
    lanec += "".join(f"v_xor_b32 v{vPB+4*d+i}, {16*i}, v{vPB+4*d}\n" for d in range(2) for i in (1, 2, 3))
    lanec += f"v_xor_b32 v{q+9}, v{rp}, v{par}\n" + pixaddr(vRS, f"v{q+10}", 1, q + 9, hh)
    lanec += f"""v_xor_b32 v{vRS+1}, 32, v{vRS}
v_bfe_u32 v{q+6}, v{n}, 2, 1
v_sub_u32 v{q+6}, v{kq}, v{q+6}
v_and_b32 v{q+7}, 3, v{n}
v_mul_u32_u24 v{vIDX}, 0x1111, v{q+7}
v_lshrrev_b32 v{q+8}, 3, v{n}
v_lshl_add_u32 v{q+7}, v{q+8}, 2, v{q+7}
v_lshlrev_b32 v{q+7}, 5, v{q+7}
v_add_u32 v{q+7}, {TAB}, v{q+7}
s_movk_i32 s70, {DYS}
v_cmp_gt_u32 vcc, 3, v{q+6}
v_mad_u32_u24 v{q+7}, v{q+6}, s70, v{q+7}
v_cndmask_b32 v{vA}, v{oor}, v{q+7}, vcc
v_lshlrev_b32 v{vW[0]}, 4, v{ln}
v_add_u32 v{vW[1]}, {WB}, v{vW[0]}
v_lshlrev_b32 v{vCT}, 4, v{hh}
v_add_u32 v{vCT}, {G2}, v{vCT}
v_bfe_u32 v{q+6}, v{ln}, 1, 1
v_bfe_u32 v{q+7}, v{ln}, 3, 2
v_lshl_add_u32 v{q+6}, v{q+7}, 1, v{q+6}
v_bfe_u32 v{q+7}, v{ln}, 2, 1
v_cmp_eq_u32 vcc, v{q+7}, v{hh}
v_and_b32 v{q+8}, 1, v{ln}
v_lshlrev_b32 v{q+8}, 4, v{q+8}
v_mov_b32 v{q+9}, 0x3f80
v_lshlrev_b32 v{q+8}, v{q+8}, v{q+9}
v_cndmask_b32 v{q+6}, 15, v{q+6}, vcc
""" + "\n".join(f"v_cmp_eq_u32 vcc, {r}, v{q+6}\nv_cndmask_b32 v{q+10+r}, 0, v{q+8}, vcc" for r in range(8)) + "\n" + \
        "\n".join(f"v_accvgpr_write_b32 a{ID+r}, v{q+10+r}" for r in range(8)) + f"""
{mksrd(sO, 18, XB)}
s_mov_b32 s{sT}, 0
s_mov_b32 s{sOF[0]}, 0
s_mov_b32 s{sOF[1]}, {ROW}
s_mov_b32 s{sOF[2]}, {4*ROW}
s_mov_b32 s{sOF[3]}, {5*ROW}
s_mov_b32 s{sC}, {h2u(C_) * 0x10001}
s_mov_b32 s{sONE}, 0x3c003c00
s_mov_b32 s{sLUT}, {LUT}
s_mov_b32 s86, {hex((0xffff << opt.get("ymask", 0) & 0xffff) * 0x10001)}
s_mov_b32 s{sK}, {hex(f2u(K_))}
s_mov_b32 s{sKB}, {hex(h2u(K_) << 16)}
v_lshlrev_b32 v{vMK}, 4, v{hh}
v_lshrrev_b32 v{vMK}, v{vMK}, -1
"""
    z = q + 12
    tables = f"""
v_lshlrev_b32 v{q+6}, 6, v0
v_add_u32 v{q+6}, {TAB}, v{q+6}
v_cmp_gt_u32 vcc, 144, v0
v_cndmask_b32 v{q+6}, v{oor}, v{q+6}, vcc
v_and_b32 v{q+7}, 3, v0
v_lshl_add_u32 v{q+8}, v{q+7}, 2, v{q+6}
v_lshrrev_b32 v{q+7}, 1, v{q+7}
v_lshl_add_u32 v{q+7}, v{q+7}, 2, v{q+6}
v_and_b32 v{q+9}, 0x1c, v0
v_bfe_u32 v{q+10}, v0, 1, 1
v_and_b32 v{q+11}, 1, v0
v_lshl_or_b32 v{q+10}, v{q+11}, 1, v{q+10}
v_or_b32 v{q+9}, v{q+9}, v{q+10}
v_lshlrev_b32 v{q+9}, 4, v{q+9}
v_add_u32 v{q+9}, {G2}, v{q+9}
v_cmp_gt_u32 vcc, 24, v0
v_cndmask_b32 v{q+9}, v{oor}, v{q+9}, vcc
v_mov_b32 v{z}, 0
v_mov_b32 v{z+1}, 0
v_mov_b32 v{z+2}, 0
v_mov_b32 v{z+3}, 0
ds_write_b128 v{q+6}, {r4(z)}
ds_write_b128 v{q+6}, {r4(z)} offset:16
ds_write_b128 v{q+6}, {r4(z)} offset:32
ds_write_b128 v{q+6}, {r4(z)} offset:48
ds_write_b16 v{q+8}, v{t+16}
ds_write_b16_d16_hi v{q+8}, v{t+16} offset:34
ds_write_b16 v{q+7}, v{t+17} offset:16
ds_write_b16_d16_hi v{q+7}, v{t+17} offset:48
ds_write_b16 v{q+7}, v{t+18} offset:24
ds_write_b16_d16_hi v{q+7}, v{t+18} offset:56
v_lshlrev_b32 v{z+4}, 16, v{t+20}
v_and_b32 v{z+5}, 0xffff0000, v{t+20}
v_lshlrev_b32 v{z+6}, 16, v{t+21}
v_and_b32 v{z+7}, 0xffff0000, v{t+21}
v_lshlrev_b32 v{z+8}, 16, v{t+22}
v_and_b32 v{z+9}, 0xffff0000, v{t+22}
v_lshlrev_b32 v{z+10}, 16, v{t+23}
v_and_b32 v{z+11}, 0xffff0000, v{t+23}
v_mul_f32 v{z+4}, v{z+4}, v{z+8}
v_mul_f32 v{z+5}, v{z+5}, v{z+9}
v_mul_f32 v{z+6}, v{z+6}, v{z+10}
v_mul_f32 v{z+7}, v{z+7}, v{z+11}
ds_write_b128 v{q+9}, {r4(z+4)}
"""
    def lutb(rs):
        L = []
        for n_, r in enumerate(rs):
            b = 80 + 8 * n_
            L.append(f"""v_add_u32 v{b}, {hex(0x10001000 * r)}, v{SC}
v_cvt_f32_f16 v{b+1}, v{b}
v_cvt_f32_f16_sdwa v{b+2}, v{b} dst_sel:DWORD dst_unused:UNUSED_PAD src0_sel:WORD_1
v_fma_f32 v{b+3}, v{b+1}, v{b+1}, s73
v_fma_f32 v{b+4}, v{b+2}, v{b+2}, s73
v_mul_f32 v{b+3}, -v{b+1}, v{b+3}
v_mul_f32 v{b+4}, -v{b+2}, v{b+4}
v_exp_f32 v{b+3}, v{b+3}
v_exp_f32 v{b+4}, v{b+4}
v_add_f32 v{b+3}, 1.0, v{b+3}
v_add_f32 v{b+4}, 1.0, v{b+4}
v_rcp_f32 v{b+3}, v{b+3}
v_rcp_f32 v{b+4}, v{b+4}
v_mul_f32 v{b+3}, v{b+1}, v{b+3}
v_mul_f32 v{b+4}, v{b+2}, v{b+4}
v_cvt_pk_{opt.get("g2t", "f16")}_f32 v{b}, v{b+3}, v{b+4}""".split("\n") + ([f"v_add_u32 v{b}, 0x40004, v{b}", f"v_and_b32 v{b}, 0xfff8fff8, v{b}"] if opt.get("gmask") else []))
        return il(*L) + [f"ds_write_b32 v{SC+1}, v{80+8*n_} offset:{1024*r}" for n_, r in enumerate(rs)]
    lut = parse(f"""s_mov_b32 s73, {hex(f2u(C_))}
v_mul_u32_u24 v{SC}, 0x100010, v0
v_add_u32 v{SC}, 0xc0004, v{SC}
v_lshlrev_b32 v{SC+1}, 2, v0
v_add_u32 v{SC+1}, {LUT}, v{SC+1}""")
    luts = [parse(lutb(rs)) for rs in ((0, 1, 2, 3), (4, 5, 6), (7, 8, 9), (10, 11, 12))]; luts[0] = lut + luts[0]
    def src(nu, h, s): return a4(16 * nu + 8 * h + 4 * s) if nu < 6 else r4(ACC[0] + 16 * (nu - 6) + 8 * h + 4 * s)
    acc = lambda nu, h: 80 + 32 * (nu % 2) + 16 * h
    N95, R95, RB1, pE = 144, 176, 200, 238
    def xpose(d, f, cin=None): return [mm32("bf16", d, f(0), a4(ID), cin), mm32("bf16", d, f(1), a4(ID + 4))]
    def uxpose(w2, nu):
        l = il(*[xpose(acc(nu, h), lambda s: src(nu, h, s), "0" if w2 else r16(N95)) for h in range(2)])
        if not w2 and nu % 3 == 2: l += xpose(acc(nu, 1), lambda s: r4(RB1 + 8 * (nu // 3) + 4 * s))
        return l
    def un95(i): return parse([f"v_xor_b32 v{R95+8*i+e}, 0x80008000, v{R95+8*i+e}" for e in range(8)]) + xpose(N95, lambda s: r4(R95 + 8 * i + 4 * s), "0")
    def uload(w2, nu):
        i, k = divmod(nu, 3); l = []
        if w2:
            if k == 0: l = parse(f"s_add_u32 s74, s72, {24576*i}\ns_add_u32 s75, s72, {24576*i+12288}")
            return l + [I(f"buffer_load_dwordx4 {src(nu, h, s)}, v{pS}, {srd(sW2)}, s{74+s} offen offset:{768*h+64*k}") for h in range(2) for s in range(2)]
        if k == 0: l = parse(f"s_mov_b32 s74, {95*768 + 256*i}") + [I(f"buffer_load_dwordx4 {r4(R95+8*i+4*s)}, v{pN}, {srd(sW1)}, s74 offen offset:{128*s}") for s in range(2)]
        if k == 2: l = [I(f"buffer_load_dwordx4 {r4(RB1+8*i+4*s)}, v{pN+1}, {srd(sB1)}, 0 offen offset:{256*i+128*s}") for s in range(2)]
        return l + parse(f"s_add_u32 s74, s72, {12288*k}\ns_add_u32 s75, s72, {12288*k+6144}") + \
            [I(f"buffer_load_dwordx4 {src(nu, h, s)}, v{pS}, {srd(sW1)}, s{74+h} offen offset:{256*i+128*s}") for h in range(2) for s in range(2)]
    def wmk(d, w2):
        m = opt.get("wmask", (0, 0))[w2]
        return parse([f"v_add_u32 v{d+r}, {hex((1 << m - 1) * 0x10001)}, v{d+r}" for r in range(4)] + [f"v_and_b32 v{d+r}, {hex((0xffff << m & 0xffff) * 0x10001)}, v{d+r}" for r in range(4)]) if m else []
    def ufin(w2, nu):
        i, k = divmod(nu, 3); P = []
        for e in range(4):
            dst = pD + 4 * (e & 1); sr = lambda r, x: acc(nu, r >> 1) + 8 * (r & 1) + 4 * x + e
            if w2:
                pm = lambda e, xs_: parse([f"v_pk_mul_f32 v[{sr(r, x)-e%2}:{sr(r, x)-e%2+1}], v[{sr(r, x)-e%2}:{sr(r, x)-e%2+1}], v[{GK+4*k+(e&2)}:{GK+4*k+(e&2)+1}]" for r in range(4) for x in xs_])
                l = pm(e, (0, 1)) if e % 2 == 0 else []
                l += parse([f"v_cvt_pk_{opt.get('g2t', 'f16')}_f32 v{dst+r}, v{sr(r, 0)}, v{sr(r, 1)}" for r in range(4)])
                l += wmk(dst, 1)
                l.append(I(f"ds_write_b128 v{pT+(e&1)}, {r4(dst)} offset:{(0 if nu == 5 else 6144+2048*k)+256*(e>>1)}"))
            else:
                l = parse([f"v_cvt_pk_f16_f32 v{dst+r}, v{sr(r, 0)}, v{sr(r, 1)}" for r in range(4)])
                l += wmk(dst, 0)
                l.append(I(f"ds_write_b128 v{pT}, {r4(dst)} offset:{(10240 if i == 1 else 12288)*e+1024*k}"))
            P.append(l)
        if w2:
            if nu == 2: P[3] += parse([f"v_add_u32 v{pT+e}, v{pE}, v{pT+e}" for e in range(2)])
            if nu == 4: P[3] += parse([f"v_add_u32 v{pT+e}, v{pE+1}, v{pT+e}" for e in range(2)] + [f"v_add_u32 v{pE}, v{pE}, v{pE+1}"])
            if nu == 5: P[3] += parse([f"v_sub_u32 v{pT+e}, v{pT+e}, v{pE}" for e in range(2)])
        elif k == 2 and i < 2: P[3] += parse([f"v_{'subrev' if i == 0 else 'add'}_u32 v{pT}, {WB}, v{pT}"])
        return P
    x = q + 6
    uaddr = [f"""
v_bfe_u32 v{x}, v{ln}, 2, 1
v_bfe_u32 v{x+1}, v{ln}, 3, 2
v_lshl_add_u32 v{x}, v{x}, 2, v{x+1}
v_mul_u32_u24 v{x}, 768, v{x}
v_and_b32 v{x+1}, 3, v{ln}
v_lshl_add_u32 v{pN}, v{hh}, 2, v{x+1}
v_lshlrev_b32 v{pN}, 4, v{pN}
v_add_u32 v{pS}, v{x}, v{pN}
v_and_b32 v{x+1}, 0x5c, v0
v_cmp_eq_u32 vcc, 0x5c, v{x+1}
s_mul_i32 s72, s{sW}, {3*12288}
s_mul_i32 s60, s{sW}, 3072
v_cndmask_b32 v{pN+1}, v{oor}, v{pN}, vcc
v_add_u32 v{pT}, s60, v{vW[1]}
""", f"""
v_bfe_u32 v{x}, v{ln}, 2, 1
v_bfe_u32 v{x+1}, v{ln}, 3, 2
v_lshl_add_u32 v{x+1}, v{x}, 5, v{x+1}
v_lshl_add_u32 v{x+1}, v{hh}, 3, v{x+1}
v_and_b32 v{x+2}, 3, v{ln}
v_xor_b32 v{x+3}, v{hh}, v{x+2}
v_lshlrev_b32 v{x+3}, 4, v{x+3}
v_mad_u32_u24 v{pS}, v{x+1}, s69, v{x+3}
s_sub_u32 s60, s{sW}, 2
s_mul_i32 s72, s60, {16*192}
s_mul_i32 s60, s60, 24576
s_add_u32 s60, s60, {WB}
v_bfe_u32 v{x+1}, v{ln}, 3, 1
v_lshl_add_u32 v{x+3}, v{x+1}, 2, v{x+2}
v_lshl_add_u32 v{x+3}, v{x}, 3, v{x+3}
v_lshlrev_b32 v{pN}, 1, v{x+3}
v_xor_b32 v{pN+1}, 16, v{pN}
v_and_b32 v{x+1}, 15, v{ln}
v_bfe_u32 v{x+2}, v{ln}, 4, 1
v_lshl_add_u32 v{x+2}, v{x+2}, 1, v{hh}
v_lshl_add_u32 v{x+1}, v{x+2}, 5, v{x+1}
v_lshlrev_b32 v{pE}, 11, v{x}
v_mul_u32_u24 v{x}, 768, v{x}
v_add_u32 v{x+1}, v{x}, v{x+1}
v_lshl_add_u32 v{pT}, v{x+1}, 4, s60
v_xor_b32 v{pT+1}, 64, v{pT}
s_lshl_b32 s60, s{sW}, 12
s_add_u32 s60, s60, {WB-8192}
v_add_u32 v{pE}, s60, v{pE}
v_sub_u32 v{pE}, 0, v{pE}
v_and_b32 v{pE+1}, 16, v{ln}
v_lshlrev_b32 v{pE+1}, 7, v{pE+1}
""" + "\n".join(f"buffer_load_ushort v{GK+e}, v{pN+(e&1)}, {srd(sGA)}, 0 offen offset:{32*(e>>1)}" for e in range(12))]
    gfin = [f"v_lshlrev_b32 v{GK+e}, 16, v{GK+e}" for e in range(12)] + [f"v_mul_f32 v{GK+e}, {hex(f2u(1/K_))}, v{GK+e}" for e in range(12)]
    bar = lambda: parse("s_waitcnt lgkmcnt(0)\ns_barrier")
    def resid_rd(qs): return [I(f"ds_read_b128 {a4(48*qq+4*f)}, v{vW[1]} offset:{12288*qq+1024*f}") for qq in qs for f in range(12)]
    xa = lambda: flat(xdma(0, 0, dfl)); xb = lambda: flat(xdma(1, 1, dfl)) + touch(dfl)
    n0, nh, xp = opt.get("n0", 3), opt.get("nh", 2), opt.get("xp", 9)
    spc_rd = [I(f"ds_read_b128 {a4(SPC+8*p+4*h)}, v{vW[0]} offset:{10240*p+3072*h}") for p in range(4) for h in range(2)]
    po = opt.get("po")
    S["head"] = H + ps() + wsrd + wtouch + tabld + ([] if po else xa() + xs("p0") + ps() + parse(lanec) + ps()) + parse(f"s_cmp_ge_u32 s{sW}, 2\ns_cbranch_scc1 L_prep1")
    pc0 = pc[0]
    for w2 in range(2):
        pc[0] = pc0; b1_, b2_ = (3, 5) if w2 else (4, 6)
        ld = lambda nu: (xb() if nu == xp else []) + (uload(w2, nu) if nu < 9 else [])
        if po:
            ua = uaddr[w2].strip().split("\n"); ub = []; ug = [y for y in ua if y.startswith("buffer")]; ua = [y for y in ua if y not in ug]
            if not w2: ub = [y for y in ua if "s60" in y]; ua = [y.replace(f"v{oor},", f"v{t+8},") for y in ua if "s60" not in y]
            it = {"lane": parse(lanec) + parse(ub), "tab": parse(tables), "g": parse(ug), "t": touch(dfl), "s": None}
            it.update({f"u{k}": uload(w2, k) for k in range(9)}); it.update({f"l{k}": luts[k] for k in range(4)})
            for n_, Gq in (("a", 0), ("b", 1)): it.update({f"{n_}{k}": x for k, x in enumerate(xdma(Gq, Gq, dfl))})
            P = parse(f"L_prep{w2}:") + parse(ua); late = {}; cur = P
            for x in po.split():
                if x[0] == "p": cur = late.setdefault(int(x[1:]), []); continue
                cur += ps() if x == "s" else it.pop(x)
            assert list(it) == ["s"], it
            ld = lambda nu: late.get(nu - n0, [])
        else: P = parse(f"L_prep{w2}:") + parse(uaddr[w2]) + flat(ld(nu) for nu in range(nh)) + ps() + parse(tables) + ps() + flat(ld(nu) for nu in range(nh, n0)) + ps() + flat(luts)
        P += xs("p1") + st(1) + ps() + (parse(gfin) if w2 else un95(0)) + uxpose(w2, 0); rr = resid_rd((0, 2, 3)) + spc_rd + resid_rd((1,)); rk = 0
        for nu in range(9):
            nx = uxpose(w2, nu + 1) if nu < 8 else []
            if nu == b1_: P += ps() + bar() + xs("p3") + ps()
            if nu == b2_: P += rr[rk:] + ps() + bar() + xs("p4") + ps()
            f = ufin(w2, nu); l = ld(nu + n0) if nu + n0 <= 9 or po else []
            if nu % 3 == 1 and nu < 6 and not w2: l += un95(nu // 3 + 1)
            for e in range(4):
                r = []
                if b1_ <= nu < b2_: r = rr[rk:min(rk+6, 44)]; rk += len(r)
                m = nx[e:e+1] if len(nx) < 6 else (nx[0:2], nx[2:4], nx[4:5], nx[5:6])[e]
                P += m[:1] + f[e][:2] + m[1:] + f[e][2:] + r + l[len(l)*e//4:len(l)*(e+1)//4]
            P += ps()
        S[f"prep{w2}"] = P + xs("p2") + (parse("s_branch L_conv0") if w2 == 0 else [])
    def res(p, f): return a4(48 * POS[p][1] + 4 * f)
    sfl = opt.get("sfl", "")
    sw = (lambda a, b: (b, a)) if opt.get("swp") else (lambda a, b: (a, b)); GT = opt.get("gt", "f16")
    g1 = lambda p, m, u, a: mm32(GT, Y[u], *sw(a, r4(YN[u] + 4 * m)), "0" if m == 0 else None)
    g2 = lambda p, u, b, s, a: mm32(opt.get("g2t", GT), ACC[u] + 16 * b, *sw(a, r4(G[u] + 4 * s)))
    def split16(l):
        if not opt.get("m16"): return l
        o = []
        for i in l:
            if i.kind != "mfma" or "16x16" in i.op or f"a[{ID}" in i.text or f"a[{ID+4}" in i.text: o.append(i); continue
            d = min(r[1] for r in i.wr); b = i.b[0][1]; a = i.text.split(", ")[1]; ty = i.op.split("_")[-1]
            for h in range(2):
                if d in Y: u = Y.index(d); m = (b - YN[u]) // 4; dd = d + 4 * (2 * (m & 1) + h); bb = YN[u] + 4 * (2 * (m >> 1) + h); cc = "0" if m < 2 else r4(dd)
                else: u = int(d >= ACC[1]); rb = (d - ACC[u]) // 8 + (b - G[u]) // 4; dd = ACC[u] + 4 * (2 * rb + h); bb = G[u] + 4 * h; cc = r4(dd)
                x = I(f"v_mfma_f32_16x16x32_{ty} {r4(dd)}, {a}, {r4(bb)}, {cc}"); x.rd |= {r for r in i.rd if r[0] == "x"}; o.append(x)
        return o
    def epi_mm(u): return [g2(11, u, b, s, res(11, 6 + 2 * b + s)) for s in range(2) for b in range(3)]
    def epi(u, b, fl):
        d = ACC[u] + 16 * b
        return parse([f"v_cvt_pk_bf16_f32 v{d+4*s+e}, v{d+8*s+2*e}, v{d+8*s+2*e+1}" for s in range(2) for e in range(4)] +
                     [f"v_permlane16_swap_b32 v{d+e}, v{d+4+e}" for e in range(4)] +
                     [f"buffer_store_dwordx4 {r4(d+4*s)}, v{vO}, {srd(sO)}, s{sOF[2*u+s]} offen offset:{64*b} {fl}".rstrip() for s in range(2)])
    greg = lambda g: (0, 1, 0)[g >> 2]
    def Bop(g, j, u):
        if g % 2 == 0: return "a", WR + 12 * u + 4 * j
        return "v", ((Y[0], Y[0] + 4, Y[0] + 8), (Y[0] + 12, G[0], G[0] + 4))[u][j]
    opd = lambda fr, n=4: f"{fr[0]}[{fr[1]}:{fr[1]+n-1}]"
    def rdB(g, j, u):
        if g > 11: return []
        i = I(f"ds_read_b128 {opd(Bop(g, j, u))}, v{vPB+(4 if j else 0)+((g&3)^(2 if j == 2 else 0))} offset:{REG*greg(g)+SUB*u+(1280 if j == 2 else 0)}")
        return [tag(i, [RG(greg(g))], [RD(greg(g))])]
    rdAD = lambda g: [I(f"ds_read_b128 {r4(cAD+4*(g&1))}, v{vA} offset:{256*g}")] if g < 12 else []
    rdAS = lambda g: [I(f"ds_read_b128 {r4(cAS+4*(g&1))}, v{vA} offset:{256*g+16}")] if g < 12 else []
    def rdR(b):
        l = [tag(I(f"ds_read_b128 {r4(cR[b]+8*s+4*u)}, v{vRS+s} offset:{REG*greg(4*b)+SUB*u}"), [RG(greg(4*b))], [RD(greg(4*b))]) for s in range(2) for u in (1, 0)]
        for i in l: i.conf = 2
        return l
    def mmR(b): return [mm32("bf16", ACC[1] + 16 * b, a4(ID), r4(cR[b] + 4), r16(ACC[0] + 16 * b)), mm32("bf16", ACC[0] + 16 * b, a4(ID), r4(cR[b])),
                        mm32("bf16", ACC[1] + 16 * b, a4(ID + 4), r4(cR[b] + 12)), mm32("bf16", ACC[0] + 16 * b, a4(ID + 4), r4(cR[b] + 8))]
    cinit = lambda b: [I(f"ds_read_b128 {r4(ACC[0]+16*b+4*a)}, v{vCT} offset:{128*b+32*a}") for a in range(4)]
    def cmm(g, j, u):
        cc = r4(Creg(u, g))
        if j == 0: return I(f"v_mfma_f32_16x16x32_bf16 {cc}, {r4(cAD+4*(g&1))}, {opd(Bop(g, 0, u))}, 0")
        return I(f"v_smfmac_f32_16x16x64_bf16 {cc}, {r4(cAS+4*(g&1))}, {opd(Bop(g, 1, u), 8)}, v{vIDX}")
    def cvt16(u, g):
        cc = Creg(u, g); d = Creg(u, g & ~1) + 2 * (g & 1)
        return parse([f"v_cvt_pkrtz_f16_f32 v{d+e}, v{cc+2*e}, v{cc+2*e+1}" for e in range(2)])
    def dots(u, g):
        d = Creg(u, g & ~1) + 2 * (g & 1); vS, vQ = vSQ[u], vSQ[u] + 1; c = lambda r, e: 0 if g == 0 and e == 0 else f"v{r}"
        return parse([x for e in range(2) for x in (f"v_dot2_f32_f16 v{vQ}, v{d+e}, v{d+e}, {c(vQ, e)}", f"v_dot2_f32_f16 v{vS}, v{d+e}, s{sONE}, {c(vS, e)}")])
    DOT = ("x", "dot")
    def dbatch(gs):
        l = flat(il(dots(0, g), dots(1, g)) for g in gs)
        if l: tag(l[0], [DOT]); tag(l[-1], (), [DOT])
        return l
    def fence(l):
        for i in l:
            if i.kind == "mfma" or i.op.startswith("v_dot"):
                if i.kind == "mfma": tag(i, [DOT])
        return l
    plB = lambda g: [x for j in range(3) for u in range(2) for x in rdB(g, j, u)]
    spc = lambda p, f: p < 4 and f in (0, 3)
    uses = [(0, f) for f in range(6)]
    for p in range(8): uses += ([(p + 1, f) for f in range(6)] if p < 7 else []) + [(p, 6 + 2 * b + s) for s in range(2) for b in range(3)]
    uses = [x for x in uses if not spc(*x)]
    def wread(k):
        if k >= len(uses): return []
        p, f = uses[k]
        return [I(f"ds_read_b128 {a4(WR+4*(k%6))}, v{vW[p//4]} offset:{10240*p+1024*{10: 0, 11: 3}.get(f, f) if p < 4 else 12288*(p-4)+1024*f}")]
    def frag(p, f):
        if p >= 8: return res(p, f), []
        if spc(p, f): return a4(SPC + 8 * p + 4 * (f == 3)), []
        k = uses.index((p, f)); return a4(WR + 4 * (k % 6)), wread(k + 6)
    db = opt.get("db", (3, 6, 9))
    def place(X, pos, items):
        for q_, x in zip(pos, items): X.setdefault(q_, []).extend(x if isinstance(x, list) else [x])
    def conv(first, fl=""):
        B = []; X = {}; V = {}
        d2 = xdma(2, 0, opt.get("dfl0", dfl) if first else opt.get("dfl2", ""))
        if first: B += rdAD(0) + rdAS(0) + plB(0) + rdAD(1) + rdAS(1) + plB(1) + rdR(0) + cinit(0)
        else:
            EM = epi_mm(1); ci = cinit(0); e = [epi(1, b, fl) for b in range(3)]
            place(X, opt.get("emp", (7, 9, 11)), EM[3:])
            place(X, opt.get("ci0", (12, 13, 14, 15)), ci)
            place(V, opt.get("epv", (2, 4, 5)), [e[b][:12] for b in range(3)])
            place(X, opt.get("bst", (15, 16, 28, 32, 36, 40)), [e[k >> 1][12 + (k & 1)] for k in range(6)])
            place(X, [45], [parse([f"s_add_u32 s{s}, s{s}, {8*ROW}" for s in sOF])])
        place(X, opt.get("dp", (7, 8, 9, 10, 11, 12, 13)), d2)
        place(X, opt.get("rp", (17, 19, 21, 23)), mmR(0))
        place(X, opt.get("r1p", (16, 18, 20, 22)), rdR(1))
        place(X, opt.get("cip", (36, 37, 38, 39, 40, 41, 42, 43)), cinit(1) + cinit(2))
        place(X, (44, 44, 45, 45, 46, 47), [wread(k) for k in range(6)])
        dn = 0
        for g in range(12):
            x = lambda k: X.get(4 * g + k, [])
            if g: B += il(cvt16(0, g - 1), cvt16(1, g - 1))
            B += V.get(g, [])
            B += [cmm(g, 0, 0)] + rdB(g + 2, 0, 0) + x(0) + [cmm(g, 0, 1)] + rdB(g + 2, 0, 1) + rdAD(g + 2) + x(1)
            B += [cmm(g, 1, 0)] + rdB(g + 2, 1, 0) + rdB(g + 2, 2, 0) + x(2) + [cmm(g, 1, 1)] + rdB(g + 2, 1, 1) + rdB(g + 2, 2, 1) + rdAS(g + 2) + x(3)
            if g in db: B += dbatch(range(dn, g)); dn = g
        for i in B:
            if i.kind == "mfma": i.cap = opt.get("ccap", 6)
        return fence(B)
    def lnfin(u):
        vS, vQ = vSQ[u], vSQ[u] + 1
        return parse(f"""
v_permlane32_swap_b32 v{vS}, v{vQ}
v_add_f32 v{vS}, v{vS}, v{vQ}
v_mov_b32 v{vQ}, v{vS}
v_permlane32_swap_b32 v{vS}, v{vQ}
v_mul_f32 v{vS}, {hex(f2u(1/96))}, v{vS}
v_mul_f32 v{vQ}, {hex(f2u(1/96))}, v{vQ}
v_fma_f32 v{vQ}, -v{vS}, v{vS}, v{vQ}
v_max_f32 v{vQ}, 0, v{vQ}
v_add_f32 v{vQ}, {hex(f2u(1e-5))}, v{vQ}
v_rsq_f32 v{vQ}, v{vQ}
v_fma_mixlo_f16 v{vQ}, v{vQ}, s{sK}, 0
v_fma_mixhi_f16 v{vQ}, -v{vS}, v{vQ}, 0 op_sel_hi:[0,1,0]""")
    nxt = parse(f"s_cmp_eq_u32 s{sT}, 3\ns_cselect_b32 s{sINC}, 0x40000000, {8*ROW}") + parse([f"v_add_u32 v{r}, s{sINC}, v{r}" for r in list(range(vDM, vDM + 7)) + [vTC]])
    def norm(u, kk):
        p = vSQ[u] + 1; r = YN[u] + 4 * kk
        l = [f"v_pk_fma_f16 v{r+e}, v{r+e}, v{p}, v{p} op_sel:[0,0,1] op_sel_hi:[1,0,1]" for e in ((3, 0, 1, 2) if kk == 5 else range(4))]
        if opt.get("ymask"): l += [f"v_and_b32 v{r+e}, s86, v{r+e}" for e in range(4 if kk < 5 else 3)]
        if kk == 5: l = l[:3] + [f"v_bfi_b32 v{r+3}, v{vMK}, v{r+3}, s{sKB}"] + l[3:]
        return parse(l)
    B = il(cvt16(0, 11), cvt16(1, 11)) + nxt + dbatch(range(max(db), 12)) + il(lnfin(0), lnfin(1)); m = mmR(1); r = rdR(2)
    B += [m[0]] + r[:2] + [m[1]] + r[2:] + m[2:]
    for kk in range(6): B += norm(0, kk) + [g1(0, kk, 0, frag(0, kk)[0])]
    B += flat(norm(1, kk) for kk in range(6))
    LN = fence(B)
    def sd(op, d, s): return f"{op}_sdwa v{d}, v{s} dst_sel:WORD_1 dst_unused:UNUSED_PRESERVE src0_sel:WORD_1"
    pool = list(range(U, U + 24)) + opt.get("pool", []); pk = [0]
    def take():
        pk[0] += 1; return pool[(pk[0] - 1) % len(pool)]
    def gelu(u, L):
        X = [i for i in range(8) if i not in L]
        V = gelu_(u, L, X)
        if not opt.get("pool"): return V
        m = {}
        for i in L + X:
            m[T + i] = take(); m[E + i] = take(); m[U + i] = m[T + i] if i in L else take()
        import re
        return [parse([re.sub(r"\bv(\d+)\b", lambda z: f"v{m.get(int(z.group(1)), int(z.group(1)))}", i.text) for i in l]) for l in V]
    def gelu_(u, L, X):
        cvt = [f"v_cvt_pkrtz_f16_f32 v{U+i}, v{Y[u]+2*i}, v{Y[u]+2*i+1}" for i in L + X]
        sh = [f"v_pk_lshrrev_b16 v{T+i}, 3, v{U+i} op_sel_hi:[0,1]" for i in L]
        ma = [x for i in L for x in (f"v_mad_u32_u16 v{E+i}, v{T+i}, 2, s{sLUT}", f"v_mad_u32_u16 v{T+i}, v{T+i}, 2, s{sLUT} op_sel:[1,0,0,0]")]
        ga = [x for i in L for x in (f"ds_read_u16 v{E+i}, v{E+i}", f"ds_read_u16_d16_hi v{T+i}, v{T+i}")]
        fma = [f"v_pk_fma_f16 v{T+i}, v{U+i}, v{U+i}, s{sC}" for i in X]
        mul = [f"v_pk_mul_f16 v{T+i}, v{T+i}, v{U+i} neg_lo:[1,0] neg_hi:[1,0]" for i in X]
        el = [f"v_exp_f16 v{E+i}, v{T+i}" for i in X]; eh = [sd("v_exp_f16", E + i, T + i) for i in X]
        ad = [f"v_pk_add_f16 v{E+i}, v{E+i}, 1.0 op_sel_hi:[1,0]" for i in X]
        rl = [f"v_rcp_f16 v{T+i}, v{E+i}" for i in X]; rh = [sd("v_rcp_f16", T + i, E + i) for i in X]
        fin = [f"v_or_b32 v{G[u]+i}, v{E+i}, v{T+i}" if i in L else f"v_pk_mul_f16 v{G[u]+i}, v{T+i}, v{U+i}" for i in L + X]
        if opt.get("g2t") == "bf16":
            rh += [f"v_fma_mix_f32 v{E+i}, v{T+i}, v{U+i}, 0 op_sel_hi:[1,1,0]" for i in X] + [f"v_fma_mix_f32 v{T+i}, v{T+i}, v{U+i}, 0 op_sel:[1,1,0] op_sel_hi:[1,1,0]" for i in X]
            fin = fin[:len(L)] + [f"v_cvt_pk_bf16_f32 v{G[u]+i}, v{E+i}, v{T+i}" for i in X]
        v1 = cvt + sh + ma
        if opt.get("vch"):
            c_ = opt["vch"]; v1 = [x for k in range(0, 8, c_) for x in cvt[k:k+c_] + sh[k:k+c_] + ma[2*k:2*k+2*c_]]
            if u == 1 or opt.get("vc1"): v1 = cvt[:c_] + sh[:c_] + cvt[c_:] + [x for x in v1 if x not in cvt and x not in sh[:c_]]
        return parse(v1), parse(ga), parse(fma + mul + el + eh + ad + rl + rh), parse(fin)
    pf = xdma(1, 1, opt.get("xfl", "")) + xdma(0, 0, opt.get("xfl", "")) + [touch(opt.get("xfl", ""))]
    pp = opt.get("pfpos", [(j, 6) for j in range(15)])
    slots = [(p, u) for p in range(8) for u in range(2)] + [(p, u) for u in range(2) for p in range(8, 12)]
    ea = [epi(0, b, sfl) for b in range(3)]
    XS = {}; XV = {}
    place(XS, pp, pf)
    place(XS, opt.get("ast", ((21, 4), (21, 10), (22, 4), (22, 10), (23, 1), (23, 5))), [ea[k >> 1][12 + (k & 1)] for k in range(6)])
    place(XV, opt.get("asv", (21, 21, 22)), [ea[b][:12] for b in range(3)])
    place(XS, opt.get("epos", [(19, 1 + 2 * k) for k in range(6)] + [(21, 1 + 2 * k) for k in range(6)] + [(23, k) for k in (0, 1, 2, 3, 4, 5, 6, 7)]), plB(0) + plB(1) + rdAD(0) + rdAS(0) + rdAD(1) + rdAS(1) + rdR(0))
    place(XS, [(23, 7)], [parse(f"s_add_u32 s{sT}, s{sT}, 1\ns_cmp_eq_u32 s{sT}, 4")])
    nl = opt.get("nl", [4] * 24)
    def slot(j):
        p, u = slots[j]; M = []
        if j == 0:
            for m in range(6): a, post = frag(0, m); M.append([g1(0, m, 1, a)] + post)
            M += [[x] for x in mmR(2)]
        elif j < 15 and u == 0:
            for s in range(2):
                for b in range(3):
                    a, post = frag(p - 1, 6 + 2 * b + s); M += [[g2(p - 1, 0, b, s, a)], [g2(p - 1, 1, b, s, a)] + post]
        elif j < 15:
            for m in range(6):
                a, post = frag(p + 1, m); M += [[g1(p + 1, m, 0, a)], [g1(p + 1, m, 1, a)] + post]
            if opt.get("chain"): c_ = opt["chain"]; M = [M[2 * (k + i) + h] for k in range(0, 6, c_) for h in range(2) for i in range(c_)]
        else:
            p2, u2 = slots[j - 1]
            m2 = [[g2(p2, u2, b, s, frag(p2, 6 + 2 * b + s)[0])] for s in range(2) for b in range(3)]
            if j < 23:
                p1, u1 = slots[j + 1]; m1 = [[g1(p1, m, u1, res(p1, m))] for m in range(6)]
                M = [(m2 + m1)[k] for k in opt.get("mord", (0, 6, 1, 7, 2, 8, 3, 9, 10, 11, 4, 5))]
            else: M = m2
        if 0 < j < 15 and opt.get("lead"):
            a_, b_ = M[0::2], M[1::2]; k_ = opt["lead"]; M = a_[:k_] + il(a_[k_:], b_[:6-k_]) + b_[6-k_:] if False else a_[:k_] + [x for z in range(6) for x in (b_[z:z+1] + a_[z+k_:z+k_+1])]
        n_ = nl[j]; L = list(range(n_)) if j == 23 or opt.get("lo", 1) else list(range(8 - n_, 8))
        V1, ga, V2, fin = gelu(u, L)
        g0, gr = opt.get("gpos", (1, 1.0))
        if opt.get("gfree"):
            for x in ga: x.free = 1
        for k, x in enumerate(ga): M[min(len(M) - 1, int(g0 + k * gr * (len(M) / 12 if len(M) < 12 else 1)))].append(x)
        if j == 23:
            em = epi_mm(1)[:3]; M += [fin[:4] + [em[0]], [em[1]], [em[2]]]; fin = fin[4:]
            assert n_ >= 4
        B = V1 + XV.get(j, [])
        if j % 2 == 0: M[0].insert(1, lq(2 + j // 2))
        for k, e in enumerate(M): B += [x for x in e if x] + XS.get((j, k), [])
        return B + V2 + fin
    sp = opt.get("sp", {})
    mid = LN + flat(slot(j) for j in range(24))
    def run(l, t):
        o, tm, t = sched.schedule(split16(l), t, **sp); return o, tm, t
    c0, tc0, _ = run(conv(True), None)
    cv = conv(False, sfl); t_ = None
    for it in range(2):
        t0 = t_.tv if t_ else 0
        oc, tc, t_ = run(cv, t_); t1 = t_.tv
        om, tm, t_ = run(mid, t_); t2 = t_.tv
    model = dict(conv=t1 - t0, mid=t2 - t1, tile=t2 - t0)
    if opt.get("dump"):
        for x, y in list(zip(tc, oc)) + list(zip(tm, om)): print(f"{x-t0:6d} {y.text}")
    if stamp == 1:
        tt = [0, t1 - t0] + [x - t0 for x, y in zip(tm, om) if y.text.startswith("s_memtime")] + [t2 - t0]
        print("model", [b - a for a, b in zip(tt, tt[1:])])
    abl = opt.get("abl", ())
    def cls(i):
        x = i.text
        if i.kind == "dsr": return "gat" if "u16" in x else "wrd" if f"v{vW[0]} " in x or f"v{vW[1]} " in x else "crd"
        if i.kind == "mfma": return "cmm" if "16x16" in x else "res" if f"a[{ID}" in x or f"a[{ID+4}" in x else "g1" if ("v", Y[0]) in i.wr or ("v", Y[1]) in i.wr else "g2"
        if i.kind == "valu": return "tr" if i.trans else "adr" if "mad_u32_u16" in x or "lshrrev_b16" in x else "dot" if "dot2" in x else "pk" if "v_pk_" in x else "cvt" if "cvt" in x else "val"
        return i.kind
    def ablate(o, tm):
        z = [(i, t) for i, t in zip(o, tm) if cls(i) not in abl]
        if opt.get("pad"):
            z = [y for k, (i, t) in enumerate(z) for y in ([(i, t), (I(f"s_nop {opt['pad'][1]}"), t)] if i.kind == "valu" and k % opt["pad"][0] == 0 else [(i, t)])]
        return [a for a, b in z], [b for a, b in z]
    oc, tc = ablate(oc, tc); om, tm = ablate(om, tm)
    carry = lambda l: {r for i in l if i.kind in ("dsr", "vmd") for r in i.wr}
    S["conv0"] = parse("L_conv0:") + [x for x in [lq(0)] if x] + ls(0, 5) + ps() + cpf2(4) + sched.hoist(c0, tc0, sp) + cpf2(2) + ps() + bar() + st(2) + xs("m0") + ps() + parse("s_branch L_mid")
    S["conv"] = parse("L_conv:") + [x for x in [lq(0)] if x] + ls(0, 5) + sched.hoist(oc, tc, sp, carry(mid))
    xt_ = flat(parse(f"s_cmp_lg_u32 s{sT}, {tt}\ns_cbranch_scc1 L_xs{tt}") + xs(f"t{tt}") + parse(f"L_xs{tt}:") for tt in range(4) if xs(f"t{tt}"))
    S["mid"] = parse("L_mid:") + xt_ + [x for x in [lq(1)] if x] + ls(15, 5) + sched.hoist(om, tm, sp, carry(cv)) + lqf() + (parse(f"s_cmp_eq_u32 s{sT}, 4") if stamp == 1 else []) + parse("s_cbranch_scc0 L_conv")
    EM = epi_mm(1); fl = opt.get("sflf", sfl)
    F = parse("L_final:") + EM[3:] + flat(epi(1, b, fl) for b in range(3))
    if opt.get("ro"):
        wg, wv, sa, sb = opt["ro"]
        F += parse("s_waitcnt vmcnt(0)") + st(7) + parse(f"""s_cmp_lg_u32 s2, {wg if wg >= 0 else 's2'}
s_cbranch_scc1 L_end
s_cmp_lg_u32 s{sW}, {wv if wv >= 0 else 's'+str(sW)}
s_cbranch_scc1 L_end
s_sub_u32 s60, s{sa}, s{sb}
s_mul_i32 s60, s60, {10 if opt.get('exrt') else 1}
s_min_u32 s60, s60, 150000
s_add_u32 s60, s60, 10000
L_spin:
s_memrealtime s[62:63]
s_waitcnt lgkmcnt(0)
s_sub_u32 s61, s62, s96
s_cmp_lt_u32 s61, s60
s_cbranch_scc1 L_spin""")
    elif stamp:
        F += parse("s_waitcnt vmcnt(0)") + st(7) + parse(f"""
s_load_dwordx4 s[4:7], s[0:1], 64
s_waitcnt lgkmcnt(0)
{mksrd(sDW, 4, 65536)}
{mksrd(sB1, 6, 1 << 20)}
s_lshl_b32 s60, s2, 3
s_add_u32 s60, s60, s{sW}
s_lshl_b32 s61, s60, 8
s_lshl_b32 s60, s60, 5
v_mov_b32 v17, s60
v_lshrrev_b32 v18, 2, v{vW[0]}
buffer_store_dword v255, v18, {srd(sB1)}, s61 offen
""" + "\n".join((f"s_sub_u32 s61, s{96+k}, s97" if k in (2, 3, 4) else f"s_mov_b32 s61, s{96+k}") + f"\nv_mov_b32 v16, s61\nbuffer_store_dword v16, v17, {srd(sDW)}, 0 offen offset:{4*k}" for k in range(6))
 + "\n" + "\n".join(f"s_sub_u32 s61, s{88+2*k}, s{96 if opt.get('exrt') else 97}\nv_mov_b32 v16, s61\nbuffer_store_dword v16, v17, {srd(sDW)}, 0 offen offset:{24+4*k}" for k in range(2)))
    S["final"] = F + parse("L_end:\ns_endpgm")
    S["head"] = (parse("s_memrealtime s[76:77]\ns_memtime s[78:79]") if opt.get("rt0") else []) + S["head"]
    out, stats_ = resolve(S, [["head", pr, "conv0", "mid", "conv", "mid", "conv", "mid", "final"] for pr in ("prep0", "prep1")])
    tt, st_, mk = sched.simulate(out["conv"] + out["mid"], sp)
    stats_["model"] = dict(n=model["conv"], waits=model["mid"], nops=model["tile"], port=tt, mem=st_)
    if mk: print("sim  ", [b - a for a, b in zip(mk, mk[1:])])
    return out, stats_

HDR = open("standalone__modern_conv_block_convnext__vision.s.ref").read().split("; Override launch")[0]
BLOCK, NVGPR = 256, 512
def emit(opt, name=KNAME, full=True):
    out, stats_ = gen(opt)
    lines = [l for n in ("head", "prep0", "prep1", "conv0", "conv", "mid", "final") for l in out[n]]
    if opt.get("align"):
        import align
        lines, a = align.align(lines, opt["align"] == 2); stats_["align"] = dict(n=a["bad"], waits=a["fixed"], nops=a["nops"], port=a["bytes"], mem=0)
    body = "\n".join(lines)
    if name != KNAME: body = body.replace("L_", f"L_{name}_")
    s = ""
    if full:
        s += HDR + f"; Generated by tools/gen3.py (hand-designed schedule, see that file)\n; @launch grid=(256,1,1) block=({BLOCK},1,1) lds={LDS}\n"
        s += '.amdgcn_target "amdgcn-amd-amdhsa--gfx950"\n'
    s += f""".text
.globl {name}
.p2align 8
.type {name},@function
{name}:
{body}
.section .rodata,"a"
.p2align 6
.amdhsa_kernel {name}
  .amdhsa_next_free_vgpr {NVGPR}
  .amdhsa_next_free_sgpr 102
  .amdhsa_accum_offset 256
  .amdhsa_group_segment_fixed_size 0
  .amdhsa_kernarg_size 80
  .amdhsa_user_sgpr_count 2
  .amdhsa_user_sgpr_kernarg_segment_ptr 1
  .amdhsa_system_sgpr_workgroup_id_x 1
.end_amdhsa_kernel
"""
    return s, stats_

DEFAULT = dict(sfl='sc0 sc1', dfl='', b1t=1, n0=5, cpf=1, g2t='bf16', nl=[6]*24, sp={'vlat': 700}, po='a0 a1 a2 a3 a4 a5 a6 lane l0 l1 l2 l3 g u0 u1 tab u2 u3 u4 p0 u5 p1 u6 p2 u7 p3 u8 p4 b0 b1 b2 b3 b4 b5 b6 t')
if __name__ == "__main__":
    if len(sys.argv) > 1:
        import os; os.makedirs("var", exist_ok=True)
        for a in sys.argv[1:]:
            n, o = a.split(":", 1); d = dict(DEFAULT); d.update(eval(o))
            s, st_ = emit(d); open(f"var/{n}.s", "w").write(s)
            print(n, {k: (v['n'], v['waits'], v['nops'], v['port'], v['mem']) for k, v in st_.items()})
        sys.exit(0)
    s, st_ = emit(DEFAULT)
    open("standalone__modern_conv_block_convnext__vision.s", "w").write(s)
    for n, v in st_.items(): print(n, v)
```

```python
import sys, struct, math
from asmdsl import I, parse, resolve, use
import sched

KNAME = "standalone__modern_conv_block_convnext__vision_kernel"
def f2u(x): return struct.unpack("<I", struct.pack("<f", x))[0]
def h2u(x): return struct.unpack("<H", struct.pack("<e", x))[0]
A_ = 2 * math.sqrt(2 / math.pi) * math.log2(math.e)
K_ = 0.46875
C_ = A_ / K_; A3 = A_ * 0.044715 / K_ ** 3
XB = 512 * 512 * 192
ROW = 98304
OOR = 0x10000000
WA, WB = 0, 40960
IMG = 90112; IMGW = 12800; REG = 6400; SUB = 2560
TAB = IMG + 4 * IMGW; DYS = 3072
G2 = TAB + 3 * DYS
LUT = G2 + 384
LDS = 163840
vID = 18
vDM, vPB, vIDX, vMK, vRS, vA, vW, vCT, vO, vSQ, vTC = 1, 8, 16, 17, 20, 22, (23, 24), 25, 26, (27, 29), 31
ACC, YN, Y, U, T, E, G = (32, 80), (128, 152), (176, 192), 208, 216, 224, (232, 240)
SC = 252; vSM = (248, 252)
pS, pT, pN, pE, pD, GK, ID = 232, 234, 236, 238, 224, 176, 240
def Creg(u, g): return YN[u] + 4 * (g >> 1) if g % 2 == 0 else E + 4 * u
cAD, cAS, cR = Y[1], Y[1] + 8, (ACC[0] + 16, U, G[0])
SPC, ONES, WR = 192, 228, 232
sW = 3; sX = 20; sO = 24; sDW = 28; sB1 = 32; sB2 = 36; sGA = 40; sW1 = 44; sW2 = 48
sT, sC, sROW, sCOL, sIMG, sINC, sONE, sK = 52, 53, 54, 55, 56, 57, 58, 59
sOF = (80, 81, 82, 83)
sKB, sLUT, sKK, sPC, sVO = 84, 85, 86, 94, 54
POS = {p: ((p // 4 + 1) % 3, p % 4) for p in range(12)}
r4 = lambda r: f"v[{r}:{r+3}]"
a4 = lambda r: f"a[{r}:{r+3}]"
r16 = lambda r: f"v[{r}:{r+15}]"
srd = lambda s: f"s[{s}:{s+3}]"
flat = lambda ll: [x for l in ll for x in l]

def mm32(ty, d, a, b, c=None):
    return I(f"v_mfma_f32_32x32x16_{ty} {r16(d)}, {a}, {b}, {r16(d) if c is None else c}")
def mm16(ty, d, a, b, c=None): return I(f"v_mfma_f32_16x16x32_{ty} {r4(d)}, {a}, {b}, {r4(d) if c is None else c}")
def mix(main, extra):
    extra = sorted(extra, key=lambda e: e[0]); out = []; acc = 0; k = 0
    for m in main:
        while k < len(extra) and extra[k][0] <= acc: out += extra[k][1]; k += 1
        out.append(m); acc += m.cost
    for e in extra[k:]: out += e[1]
    return out
def il(*ls):
    out = []
    for k in range(max(map(len, ls))): out += [l[k] for l in ls if k < len(l)]
    return out
def mksrd(s, p, n): return f"s_mov_b32 s{s}, s{p}\ns_mov_b32 s{s+1}, s{p+1}\ns_mov_b32 s{s+2}, {n}\ns_mov_b32 s{s+3}, 0x20000"
def tag(i, rd=(), wr=()): i.rd = i.rd | set(rd); i.wr = i.wr | set(wr); return i
RG = lambda r: ("x", f"img{r}")
RD = lambda r: ("x", f"rd{r}")

def gen(opt):
    S = {}
    uni = opt.get("uni")
    stamp = opt.get("stamp"); T1 = opt.get("g1t", "f16"); sm = opt.get("sm", 1); sw1 = opt.get("sw1", 1)
    def st(k):
        if not stamp: return []
        if k == 0 and opt.get("rt0"): return parse("s_waitcnt lgkmcnt(0)\ns_mov_b32 s96, s76\ns_mov_b32 s97, s78")
        if k == 0: return parse("s_memrealtime s[76:77]\ns_memtime s[78:79]\ns_waitcnt lgkmcnt(0)\ns_mov_b32 s96, s76\ns_mov_b32 s97, s78")
        if k == 7: return parse("s_memrealtime s[76:77]\ns_memtime s[78:79]\ns_waitcnt lgkmcnt(0)\ns_mov_b32 s101, s76\ns_mov_b32 s100, s78")
        return parse(f"s_memtime s[78:79]\ns_waitcnt lgkmcnt(0)\ns_mov_b32 s{97+k}, s78")
    AG = opt.get("ag", ("p1", "p2", "t0", "c1", "t1", "c2", "t3"))
    AR = (36, 38, 40, 42, 88, 90, 92)
    def xs(k):
        if stamp == 6: return parse(f"{'s_memtime' if opt.get('cyc') else 's_memrealtime'} s[{AR[AG.index(k)]}:{AR[AG.index(k)]+1}]\ns_waitcnt lgkmcnt(0)") if k in AG else []
        if not stamp or k not in opt.get("exs", ()): return []
        r = 88 + 2 * opt['exs'].index(k)
        return parse(f"{'s_memrealtime' if opt.get('exrt') else 's_memtime'} s[{r}:{r+1}]\ns_waitcnt lgkmcnt(0)")
    def ls(k, mode=1):
        if stamp != mode: return []
        i = I("s_mov_b32 s60, s60"); i.text = f"s_memtime s[{60+k//15*2}:{61+k//15*2}]"; i.rd = set(); i.wr = set()
        if k == 0: return [i]
        return [i]
    SQ = [60, 62, 64, 66, 68, 70, 72, 74, 76, 78, 36, 38, 40, 42, 44]
    def lq(k):
        if stamp != 1: return None
        i = I("s_mov_b32 s60, s60"); i.text = f"s_memtime s[{SQ[k]}:{SQ[k]+1}]"; i.rd = set(); i.wr = set(); return i
    def lqf():
        if stamp == 5: return parse(f"s_waitcnt lgkmcnt(0)\nv_accvgpr_read_b32 v255, a224\ns_lshl_b32 m0, s{sT}, 4\ns_sub_u32 m0, m0, 16\ns_sub_u32 s60, s60, s97\nv_writelane_b32 v255, s60, m0\ns_add_u32 m0, m0, 15\ns_sub_u32 s62, s62, s97\nv_writelane_b32 v255, s62, m0\nv_accvgpr_write_b32 a224, v255")
        if stamp != 1: return []
        return [lq(14)] + parse(f"s_waitcnt lgkmcnt(0)\nv_accvgpr_read_b32 v255, a224\ns_lshl_b32 m0, s{sT}, 4\ns_sub_u32 m0, m0, 16") + flat(parse(f"s_sub_u32 s{r}, s{r}, s97\nv_writelane_b32 v255, s{r}, m0\ns_add_u32 m0, m0, 1") for r in SQ) + parse("v_accvgpr_write_b32 a224, v255")
    pc = [0]
    def ps():
        if stamp != 3: return []
        pc[0] += 1
        return parse(f"s_memtime s[78:79]\ns_waitcnt lgkmcnt(0)\ns_sub_u32 s78, s78, s97\nv_writelane_b32 v255, s78, {pc[0]-1}")
    def xdma(Gq, reg, fl, ks=range(7)):
        l = []
        for k in ks:
            i = I(f"buffer_load_dword{'x4' if k < 6 else ''} v{vDM+k}, {srd(sX)}, 0 offen offset:{64*Gq} {fl} lds".replace("  ", " "))
            l.append(parse(f"s_add_u32 m0, s{sIMG}, {REG*reg + 1024*k - 64*Gq}") + [tag(i, [RD(reg)], [RG(reg)])])
        return l
    touch = lambda fl: [I(f"buffer_load_dword v{SC+2}, v{vTC}, {srd(x)}, 0 offen {fl}".rstrip()) for x in ((sX, sO) if opt.get("ot") else (sX,))]
    t = 128
    ln = t + 1; hh = t + 10; tt, tp, tc = t + 2, t + 3, t + 4
    def dma_addr(d, x, y): return f"""v_lshrrev_b32 v{x}, 11, v{tt}
v_subrev_u32 v{y}, s65, v{tt}
v_mad_u32_u24 v{x}, v{x}, s68, v{tp}
v_and_b32 v{y}, 0x7ff, v{y}
v_cmp_gt_u32 vcc, s66, v{y}
v_lshrrev_b32 v{y}, 7, v{tt}
v_and_b32 v{y}, 32, v{y}
v_xad_u32 v{x}, v{tc}, v{y}, v{x}
v_cndmask_b32 v{d}, v{t+8}, v{x}, vcc
"""
    step = f"v_add_u32 v{tt}, {16*205}, v{tt}\nv_add_u32 v{tp}, {16*192}, v{tp}\n"
    first = f"""v_lshrrev_b32 v{tp}, 2, v{ln}
v_mul_u32_u24 v{tt}, 205, v{tp}
v_mul_u32_u24 v{tp}, 192, v{tp}
v_add_u32 v{tp}, s64, v{tp}
"""
    last = f"""v_lshrrev_b32 v{tp}, 4, v{ln}
v_add_u32 v{tp}, 96, v{tp}
v_mul_u32_u24 v{tt}, 205, v{tp}
v_mul_u32_u24 v{tp}, 192, v{tp}
v_add_u32 v{tp}, s64, v{tp}
v_lshlrev_b32 v{t+5}, 2, v{ln}
v_and_b32 v{t+5}, 63, v{t+5}
""" + dma_addr(vDM + 6, t + 6, t + 7).replace(f"v{tc},", f"v{t+5},")
    cpf = f"""s_getpc_b64 s[62:63]
L_pc:
v_min_u32 v18, 2, v{ln}
s_lshr_b32 s71, s2, 3
s_lshl2_add_u32 s71, s71, s{sW}
v_mad_u32_u24 v18, s71, 3, v18
v_min_u32 v18, (L_last-L_pc)/128, v18
v_lshlrev_b32 v18, 1, v18
v_mad_u64_u32 v[18:19], vcc, v18, 64, s[62:63]
global_load_dword v251, v[18:19], off
"""
    cpa = parse(f"""s_getpc_b64 s[{sPC}:{sPC+1}]
L_pd:
s_lshl_b32 s60, s{sW}, 10
s_add_u32 s60, s60, {'L_last-3968' if uni else 'L_final'}-L_pd
s_add_u32 s{sPC}, s{sPC}, s60
s_addc_u32 s{sPC+1}, s{sPC+1}, 0""")
    cpl = lambda: parse(f"""v_and_b32 v254, 0x70, v{vW[0]}
v_mad_u64_u32 v[254:255], vcc, v254, 8, s[{sPC}:{sPC+1}]""") + [I("global_load_dword v254, v[254:255], off")]
    H = parse(f"""
s_cmp_ge_u32 s2, 256
s_cbranch_scc1 L_end
s_load_dwordx16 s[4:19], s[0:1], 0
v_readfirstlane_b32 s{sW}, v0
v_and_b32 v{ln}, 63, v0
s_and_b32 s60, s2, 7
s_lshr_b32 s61, s2, 7
s_lshl1_add_u32 s60, s60, s61
s_lshr_b32 s{sW}, s{sW}, 6
{cpf}s_bfe_u32 s61, s2, 0x40003
s_lshl2_add_u32 s{sCOL}, s61, s{sW}
s_mul_i32 s60, s60, {32*ROW}
s_mul_i32 s61, s{sCOL}, 1536
s_add_u32 s63, s60, s61
s_sub_u32 s64, s63, {ROW+192}
s_movk_i32 s65, 0
s_movk_i32 s66, 2048
s_cmp_eq_u32 s{sCOL}, 0
s_cmovk_i32 s65, 100
s_cmovk_i32 s66, 1948
s_cmp_eq_u32 s{sCOL}, 63
s_cmovk_i32 s66, 1800
s_mul_i32 s{sIMG}, s{sW}, {IMGW}
s_add_u32 s{sIMG}, s{sIMG}, {IMG}
s_mov_b32 s68, {ROW-1920}
{first}v_lshlrev_b32 v{tc}, 4, v0
v_and_b32 v{t+5}, 16, v0
v_bitop3_b32 v{tc}, v{tc}, v{t+5}, 48 bitop3:0x28
v_bfrev_b32 v{t+8}, 1
""") + st(0) + parse(mksrd(sX, 4, XB))
    dfl = opt.get("dfl", "")
    def xloop(pv):
        dm = tag(I(f"buffer_load_dwordx4 v{t+6}, {srd(sX)}, 0 offen {dfl} lds".replace("  ", " ")), [RD(0)], [RG(0)])
        S[f"xl{pv}"] = parse(f"L_xl{pv}:") + parse(dma_addr(t + 6, t + 6, t + 7)) + parse(step) + [dm] + parse(f"s_add_u32 m0, m0, 1024\ns_sub_u32 s70, s70, 1\ns_cbranch_scc0 L_xl{pv}")
        return parse(f"s_mov_b32 m0, s{sIMG}\ns_movk_i32 s70, {opt.get('xn', 6) - 1}")
    dmk = parse(first + step.join(dma_addr(vDM + k, t + 6, t + 7) for k in range(6)) + f"""s_cmp_lt_u32 s{sCOL}, 63
s_cselect_b32 s66, 10, 0
s_add_u32 s64, s64, {9*192+128}
v_mul_u32_u24 v{t+6}, {ROW}, v{ln}
v_add_u32 v{t+6}, s64, v{t+6}
v_cmp_gt_u32 vcc, s66, v{ln}
v_cndmask_b32 v{vTC}, v{t+8}, v{t+6}, vcc
""")
    wta = parse(f"""s_mulk_i32 s71, 640
v_lshlrev_b32 v{t+13}, 7, v{ln}
v_cmp_gt_u32 vcc, 5, v{ln}
v_cndmask_b32 v{t+13}, v{t+8}, v{t+13}, vcc
""")
    taba = parse(f"""v_lshrrev_b32 v{hh}, 5, v{ln}
s_movk_i32 s69, 192
v_mul_u32_u24 v{t+11}, 1366, v0
v_lshrrev_b32 v{t+11}, 16, v{t+11}
v_mul_u32_u24 v{t+11}, 384, v{t+11}
v_lshl_add_u32 v{t+11}, v0, 2, v{t+11}
v_lshlrev_b32 v{t+12}, 3, v0
{mksrd(sDW, 6, 1728)}
{mksrd(sB2, 14, 192)}
{mksrd(sGA, 16, 192)}
{mksrd(sB1, 10, 768)}
""")
    tabld = parse(f"""
buffer_load_dword v{t+16}, v{t+11}, {srd(sDW)}, 0 offen
buffer_load_dword v{t+17}, v{t+11}, {srd(sDW)}, 0 offen offset:192
buffer_load_dword v{t+18}, v{t+11}, {srd(sDW)}, 0 offen offset:384
buffer_load_dwordx2 v[{t+20}:{t+21}], v{t+12}, {srd(sB2)}, 0 offen
buffer_load_dwordx2 v[{t+22}:{t+23}], v{t+12}, {srd(sGA)}, 0 offen
""")
    wsrd = parse(f"{mksrd(sW1, 8, 73728)}\n{mksrd(sW2, 12, 73728)}")
    wtouch = parse(f"buffer_load_dword v{t+14}, v{t+13}, {srd(sW1)}, s71 offen\nbuffer_load_dword v{t+15}, v{t+13}, {srd(sW2)}, s71 offen")
    if 0: wtouch += parse(f"v_lshlrev_b32 v{t+19}, 7, v{ln}\nbuffer_load_dword v{t+19}, v{t+19}, {srd(sB1)}, 0 offen")
    q = t + 24
    n, kq, rp, c, par, oor = q, q + 1, q + 2, q + 3, q + 4, q + 5
    lanec = f"""
v_mov_b32 v{oor}, {OOR}
v_and_b32 v{n}, 15, v{ln}
v_lshrrev_b32 v{kq}, 4, v{ln}
v_add_u32 v{rp}, 4, v{n}
v_lshrrev_b32 v{rp}, 3, v{rp}
v_mad_i32_i24 v{c}, v{rp}, -4, v{n}
v_and_b32 v{rp}, 1, v{rp}
v_and_b32 v{par}, 1, v{kq}
v_lshlrev_b32 v{q+6}, 1, v{rp}
v_mul_u32_u24 v{q+7}, {ROW}, v{q+6}
v_mad_u32_u24 v{q+7}, v{c}, s69, v{q+7}
v_lshl_add_u32 v{q+7}, v{kq}, 4, v{q+7}
v_add_u32 v{vO}, s63, v{q+7}
{f"v_xor_b32 v{vO}, 0x80000000, v{vO}" if uni else ""}
s_mov_b32 s{sVO}, {0x80000000 if uni else 8*ROW}
"""
    def pixaddr(d, row, col, fhi, x=None):
        return f"""v_add_u32 v{q+7}, {row}, v{q+6}
v_add_u32 v{q+8}, {col}, v{c}
v_mad_u32_u24 v{q+7}, v{q+7}, 10, v{q+8}
v_bfe_u32 v{q+8}, v{q+7}, 2, 1
v_lshl_or_b32 v{q+8}, v{fhi}, 1, v{q+8}
""" + (f"v_xor_b32 v{q+8}, v{x}, v{q+8}\n" if x else "") + f"""v_lshl_add_u32 v{q+8}, v{q+7}, 2, v{q+8}
v_lshl_add_u32 v{d}, v{q+8}, 4, s{sIMG}
"""
    lanec += f"v_xor_b32 v{q+9}, v{rp}, v{hh}\n" + pixaddr(vPB, f"v{kq}", 0, q + 9)
    lanec += f"v_add_u32 v{q+10}, 1, v{par}\n" + pixaddr(vPB + 4, f"v{hh}", f"v{q+10}", rp)
    lanec += "".join(f"v_xor_b32 v{vPB+4*d+i}, {16*i}, v{vPB+4*d}\n" for d in range(2) for i in (1, 2, 3))
    lanec += pixaddr(vRS, 1, 1, rp, kq) + f"v_xor_b32 v{q+9}, 1, v{rp}\n" + pixaddr(vRS + 1, 2, 1, q + 9, kq)
    lanec += f"""v_bfe_u32 v{q+6}, v{n}, 2, 1
v_sub_u32 v{q+6}, v{kq}, v{q+6}
v_and_b32 v{q+7}, 3, v{n}
v_mul_u32_u24 v{vIDX}, 0x1111, v{q+7}
v_lshrrev_b32 v{q+8}, 3, v{n}
v_lshl_add_u32 v{q+7}, v{q+8}, 2, v{q+7}
v_lshlrev_b32 v{q+7}, 5, v{q+7}
v_add_u32 v{q+7}, {TAB}, v{q+7}
s_movk_i32 s70, {DYS}
v_cmp_gt_u32 vcc, 3, v{q+6}
v_mad_u32_u24 v{q+7}, v{q+6}, s70, v{q+7}
v_cndmask_b32 v{vA}, v{oor}, v{q+7}, vcc
v_lshlrev_b32 v{vW[0]}, 4, v{ln}
v_add_u32 v{vW[1]}, {WB}, v{vW[0]}
v_lshlrev_b32 v{vCT}, 5, v{kq}
v_add_u32 v{vCT}, {G2}, v{vCT}
v_and_b32 v{q+8}, 1, v{ln}
v_lshlrev_b32 v{q+8}, 4, v{q+8}
v_mov_b32 v{q+9}, 0x3f80
v_lshlrev_b32 v{q+8}, v{q+8}, v{q+9}
v_bfe_u32 v{q+6}, v{ln}, 1, 1
v_bfe_u32 v{q+7}, v{ln}, 3, 2
v_lshl_add_u32 v{q+7}, v{q+7}, 1, v{q+6}
v_bfe_u32 v{q+9}, v{ln}, 2, 1
v_xor_b32 v{q+9}, v{q+9}, v{hh}
v_lshl_add_u32 v{q+7}, v{q+9}, 3, v{q+7}
v_lshlrev_b32 v{q+7}, v{q+7}, 1
v_lshrrev_b32 v{q+9}, 2, v{n}
v_xor_b32 v{q+9}, v{q+9}, v{kq}
v_lshl_add_u32 v{q+6}, v{q+9}, 1, v{q+6}
v_lshlrev_b32 v{q+6}, v{q+6}, 1
""" + "".join(f"v_bfe_i32 v{d+r}, v{o}, {r}, 1\n" for d, o, k in ((ID, q + 7, 8), (vID, q + 6, 2)) for r in range(k)) + \
        "".join(f"v_and_b32 v{d+r}, v{q+8}, v{d+r}\n" for d, k in ((ID, 8), (vID, 2)) for r in range(k)) + f"""{mksrd(sO, 18, XB)}
s_mov_b32 s{sT}, 0
s_mov_b32 s{sOF[0]}, 0
s_mov_b32 s{sOF[1]}, {ROW}
s_mov_b32 s{sOF[2]}, {4*ROW}
s_mov_b32 s{sOF[3]}, {5*ROW}
s_mov_b32 s{sC}, {h2u(C_) * 0x10001}
s_mov_b32 s{sONE}, 0x3c003c00
s_mov_b32 s{sLUT}, {LUT}
s_mov_b32 s{sKK}, {hex(h2u(K_) * 0x10001)}
s_mov_b32 s87, {hex((0xffff << opt.get("ymask", 0) & 0xffff) * 0x10001)}
s_mov_b32 s{sKB}, {hex(h2u(K_) << 16 if T1 == "f16" else f2u(K_))}
v_lshrrev_b32 v{q+6}, 2, v{n}
v_xor_b32 v{q+6}, v{q+6}, v{kq}
v_bfe_i32 v{q+6}, v{q+6}, 0, 1
v_bfi_b32 v{q+6}, v{q+6}, 0, s{sONE}
""" + "".join(f"v_accvgpr_write_b32 a{ONES+r}, v{q+6}\n" for r in range(4)) + (f"""v_and_b32 v{vMK}, v{hh}, v{kq}
v_lshlrev_b32 v{vMK}, 4, v{vMK}
""" if sw1 else f"v_lshlrev_b32 v{vMK}, 4, v{hh}\n") + f"v_lshrrev_b32 v{vMK}, v{vMK}, -1\n"
    z = q + 12
    tables = f"""
v_lshlrev_b32 v{q+6}, 6, v0
v_add_u32 v{q+6}, {TAB}, v{q+6}
v_cmp_gt_u32 vcc, 144, v0
v_cndmask_b32 v{q+6}, v{oor}, v{q+6}, vcc
v_and_b32 v{q+7}, 3, v0
v_lshl_add_u32 v{q+8}, v{q+7}, 2, v{q+6}
v_lshrrev_b32 v{q+7}, 1, v{q+7}
v_lshl_add_u32 v{q+7}, v{q+7}, 2, v{q+6}
v_lshlrev_b32 v{q+9}, 4, v0
v_add_u32 v{q+9}, {G2}, v{q+9}
v_cmp_gt_u32 vcc, 24, v0
v_cndmask_b32 v{q+9}, v{oor}, v{q+9}, vcc
v_mov_b32 v{z}, 0
v_mov_b32 v{z+1}, 0
v_mov_b32 v{z+2}, 0
v_mov_b32 v{z+3}, 0
ds_write_b128 v{q+6}, {r4(z)}
ds_write_b128 v{q+6}, {r4(z)} offset:16
ds_write_b128 v{q+6}, {r4(z)} offset:32
ds_write_b128 v{q+6}, {r4(z)} offset:48
ds_write_b16 v{q+8}, v{t+16}
ds_write_b16_d16_hi v{q+8}, v{t+16} offset:34
ds_write_b16 v{q+7}, v{t+17} offset:16
ds_write_b16_d16_hi v{q+7}, v{t+17} offset:48
ds_write_b16 v{q+7}, v{t+18} offset:24
ds_write_b16_d16_hi v{q+7}, v{t+18} offset:56
v_lshlrev_b32 v{z+4}, 16, v{t+20}
v_and_b32 v{z+5}, 0xffff0000, v{t+20}
v_lshlrev_b32 v{z+6}, 16, v{t+21}
v_and_b32 v{z+7}, 0xffff0000, v{t+21}
v_lshlrev_b32 v{z+8}, 16, v{t+22}
v_and_b32 v{z+9}, 0xffff0000, v{t+22}
v_lshlrev_b32 v{z+10}, 16, v{t+23}
v_and_b32 v{z+11}, 0xffff0000, v{t+23}
v_mul_f32 v{z+4}, v{z+4}, v{z+8}
v_mul_f32 v{z+5}, v{z+5}, v{z+9}
v_mul_f32 v{z+6}, v{z+6}, v{z+10}
v_mul_f32 v{z+7}, v{z+7}, v{z+11}
ds_write_b128 v{q+9}, {r4(z+4)}
"""
    def lutb(rs):
        L = []; W = []
        for n_, r in enumerate(rs):
            b = 160 + 8 * n_; two = lambda f: [f(b + 1, b + 3, b + 5), f(b + 2, b + 4, b + 6)]
            l = [f"v_add_u32 v{b}, {hex(0x10001000 * r)}, v{SC}", f"v_cvt_f32_f16 v{b+1}, v{b}", f"v_cvt_f32_f16_sdwa v{b+2}, v{b} dst_sel:DWORD dst_unused:UNUSED_PAD src0_sel:WORD_1"]
            if r < 5:
                for f in (lambda u, a, e: f"v_mul_f32 v{a}, {hex(f2u(A3))}, v{u}", lambda u, a, e: f"v_fma_f32 v{a}, v{a}, v{u}, s73", lambda u, a, e: f"v_mul_f32 v{a}, -v{u}, v{a}",
                          lambda u, a, e: f"v_exp_f32 v{e}, v{a}", lambda u, a, e: f"v_fma_f32 v{a}, v{e}, s{sK}, s{sK}", lambda u, a, e: f"v_rcp_f32 v{a}, v{a}",
                          lambda u, a, e: f"v_mul_f32 v{a}, v{u}, v{a}", lambda u, a, e: f"v_mul_f32 v{e}, -v{e}, v{a}"): l += two(f)
                l += [f"v_cvt_pk_bf16_f32 v{b+7}, v{b+5}, v{b+6}"]; W.append(f"ds_write_b32 v{SC+1}, v{b+7} offset:{8192+1024*r}")
            else: l += two(lambda u, a, e: f"v_mul_f32 v{a}, {hex(f2u(1 / K_))}, v{u}")
            L.append(l + [f"v_cvt_pk_bf16_f32 v{b}, v{b+3}, v{b+4}"]); W.append(f"ds_write_b32 v{SC+1}, v{b} offset:{1024*r}")
        return il(*L) + W
    lut = parse(f"""s_mov_b32 s73, {hex(f2u(C_))}
s_mov_b32 s{sK}, {hex(f2u(K_))}
v_mul_u32_u24 v{SC}, 0x100010, v0
v_add_u32 v{SC}, 0xc0004, v{SC}
v_lshlrev_b32 v{SC+1}, 2, v0
v_add_u32 v{SC+1}, {LUT}, v{SC+1}""")
    luts = [parse(lutb(rs)) for rs in ((0, 1), (2, 3), (4, 5), (6, 7))]; luts[0] = lut + luts[0]
    def src(nu, h, s): return a4(16 * nu + 8 * h + 4 * s) if nu < 6 else r4(ACC[0] + 16 * (nu - 6) + 8 * h + 4 * s)
    acc = lambda nu, h: 80 + 32 * (nu % 3) + 16 * h
    N95, R95, RB1, RG_ = (208, 192, 208), 176, WR, 208
    def xpose(d, f, cin=None): return [mm32("bf16", d, f(0), r4(ID), cin), mm32("bf16", d, f(1), r4(ID + 4))]
    def uxpose(w2, nu):
        l = il(*[xpose(acc(nu, h), lambda s: src(nu, h, s), "0" if w2 else r16(N95[nu // 3])) for h in range(2)])
        if not w2 and nu % 3 == 2: l += xpose(acc(nu, 1), lambda s: a4(RB1 + 4 * (nu // 3)))[1:]
        return l
    def un95(i): return parse([f"v_xor_b32 v{R95+4*i+e}, 0x80008000, v{R95+4*i+e}" for e in range(4)]) + xpose(N95[i], lambda s: r4(R95 + 4 * i), "0")
    def uload(w2, nu):
        i, k = divmod(nu, 3); l = []
        if w2:
            if k == 0: l = parse(f"s_mov_b32 s74, {24576*i}\ns_mov_b32 s75, {24576*i+6144}")
            return l + [I(f"buffer_load_dwordx4 {src(nu, h, s)}, v{pS}, {srd(sW2)}, s{74+s} offen offset:{1536*h+64*k}") for h in range(2) for s in range(2)]
        return l + parse(f"s_mov_b32 s74, {24576*k}\ns_mov_b32 s75, {24576*k+12288}") + \
            [I(f"buffer_load_dwordx4 {src(nu, h, s)}, v{pS+h}, {srd(sW1)}, s{74+s} offen offset:{256*i}") for h in range(2) for s in range(2)]
    def wmk(d, w2):
        m = opt.get("wmask", 0) * (1 - w2)
        return parse([f"v_add_u32 v{d+r}, {hex((1 << m - 1) * 0x10001)}, v{d+r}" for r in range(4)] + [f"v_and_b32 v{d+r}, {hex((0xffff << m & 0xffff) * 0x10001)}, v{d+r}" for r in range(4)]) if m else []
    def ufin(w2, nu):
        i, k = divmod(nu, 3); P = []
        for e in range(4):
            dst = pD + 4 * (e & 1); sr = lambda r, x: acc(nu, r >> 1) + 8 * (r & 1) + 4 * x + e
            l = []
            if w2 and e % 2 == 0: l = parse([f"v_pk_mul_f32 v[{sr(r, x)}:{sr(r, x)+1}], v[{sr(r, x)}:{sr(r, x)+1}], v[{GK+4*k+e}:{GK+4*k+e+1}]" for r in range(4) for x in range(2)])
            l += parse([f"v_cvt_pk_{'bf16' if w2 else T1}_f32 v{dst+r}, v{sr(r, 0)}, v{sr(r, 1)}" for r in range(4)]) + wmk(dst, w2)
            if w2: l.append(I(f"ds_write_b128 v{pT+(e&1)}, {r4(dst)} offset:{6144+2048*k+128*(e>>1)}"))
            else: l.append(I(f"ds_write_b128 v{pT}, {r4(dst)} offset:{(10240 if i == 1 else 12288)*(e>>1)+1024*(2*k+(e&1))}"))
            P.append(l)
        if k == 2 and i < 2:
            P[3] += parse([f"v_{'sub' if i == 0 else 'add'}_u32 v{pT+e}, v{pT+e}, v{pE}" for e in range(1 + w2)])
        return P
    x = q + 6
    rowx = f"""
v_bfe_u32 v{x}, v{ln}, 2, 1
v_bfe_u32 v{x+1}, v{ln}, 3, 2
v_lshl_add_u32 v{x+1}, v{x}, 2, v{x+1}
v_and_b32 v{x+2}, 3, v{ln}
"""
    uaddr = [rowx + f"""v_lshl_add_u32 v{pN}, v{hh}, 2, v{x+2}
s_lshl_b32 s60, s{sW}, 7
v_lshl_add_u32 v{pN}, v{pN}, 4, s60
v_mul_u32_u24 v{x+1}, 768, v{x+1}
v_add_u32 v{pS}, v{x+1}, v{pN}
v_add_u32 v{pS+1}, 6144, v{pS}
v_and_b32 v{x+1}, 0x1c, v{ln}
v_cmp_eq_u32 vcc, 0x1c, v{x+1}
s_mov_b32 s72, {95*768}
s_mul_i32 s60, s{sW}, 24576
s_add_u32 s60, s60, {WB}
v_cndmask_b32 v{pN+1}, v{t+8}, v{pN}, vcc
v_lshl_add_u32 v{pT}, v{ln}, 4, s60
s_lshl_b32 s60, s{sW}, 12
s_add_u32 s60, s60, {WB}
v_mov_b32 v{pE}, s60
""" + "\n".join(f"buffer_load_dwordx4 {r4(R95+4*i)}, v{pN}, {srd(sW1)}, s72 offen offset:{256*i}\nbuffer_load_dwordx4 {a4(RB1+4*i)}, v{pN+1}, {srd(sB1)}, 0 offen offset:{256*i}" for i in range(3)), rowx + f"""v_lshl_add_u32 v{x+1}, v{hh}, 4, v{x+1}
s_lshl_b32 s60, s{sW}, 6
s_sub_u32 s60, s60, 128
v_add_u32 v{x+1}, s60, v{x+1}
v_xor_b32 v{pN}, v{hh}, v{x+2}
v_lshlrev_b32 v{pN}, 4, v{pN}
v_mad_u32_u24 v{pS}, v{x+1}, s69, v{pN}
s_lshl_b32 s60, s{sW}, 1
s_sub_u32 s60, s60, 4
v_add_u32 v{x+1}, s60, v{x}
v_lshlrev_b32 v{pE}, 11, v{x+1}
v_add_u32 v{pE}, {WB+2048}, v{pE}
v_mul_u32_u24 v{x+1}, 768, v{x+1}
v_lshl_add_u32 v{x+1}, v{x}, 2, v{x+1}
v_add_u32 v{x+1}, v{x+2}, v{x+1}
v_bfe_u32 v{x+2}, v{ln}, 3, 1
v_lshl_add_u32 v{x+1}, v{x+2}, 6, v{x+1}
v_lshrrev_b32 v{x+2}, 4, v{ln}
v_lshl_add_u32 v{x+1}, v{x+2}, 4, v{x+1}
v_lshlrev_b32 v{x+1}, 4, v{x+1}
v_add_u32 v{pT}, {WB}, v{x+1}
v_xor_b32 v{pT+1}, 64, v{pT}
""" + "\n".join(f"buffer_load_dwordx4 {r4(RG_+4*k)}, v{pN}, {srd(sGA)}, 0 offen offset:{64*k}" for k in range(3))]
    gfin = flat(xpose(GK + 4 * k, lambda s: r4(RG_ + 4 * k), "0") for k in range(3))
    bar = lambda: parse("s_waitcnt lgkmcnt(0)\ns_barrier")
    def resid_rd(qs): return [I(f"ds_read_b128 {a4(48*qq+4*f)}, v{vW[1]} offset:{12288*qq+1024*f}") for qq in qs for f in range(12)]
    xa = lambda: flat(xdma(0, 0, dfl)); xb = lambda: flat(xdma(1, 1, dfl)) + touch(dfl)
    n0, nh, xp = opt.get("n0", 3), opt.get("nh", 2), opt.get("xp", 9)
    spc_rd = [I(f"ds_read_b128 {a4(SPC+8*p+4*h)}, v{vW[0]} offset:{10240*p+4096+1024*h}") for p in range(4) for h in range(2)]
    greg = lambda g: (0, 1, 0)[g >> 2]
    def Bop(g, j, u, first=False):
        if first and opt.get("c0h") and 0 < g < 4: return "v", (((64, 68, 72), (76, 80, 84)), ((88, 92, 96), (100, 104, 108)), ((32, 36, 40), (44, 216, 220)))[g - 1][u][j]
        if first == 0 and opt.get("e4") and g in (2, 3):
            a_, y_ = ACC[0], YN[0]; return "v", (((a_, a_ + 4, a_ + 8), (a_ + 12, a_ + 32, a_ + 36)), ((y_ + 8, y_ + 12, y_ + 16), (y_ + 20, a_ + 40, a_ + 44)))[g - 2][u][j]
        if g % 2 == 0: return "a", WR + 12 * u + 4 * j
        return "v", ((Y[0], Y[0] + 4, Y[0] + 8), (Y[0] + 12, G[0], G[0] + 4))[u][j]
    opd = lambda fr, n=4: f"{fr[0]}[{fr[1]}:{fr[1]+n-1}]"
    def rdB(g, j, u, first=False):
        if g > 11: return []
        i = I(f"ds_read_b128 {opd(Bop(g, j, u, first))}, v{vPB+(4 if j else 0)+((g&3)^(3 if j == 2 else 0))} offset:{REG*greg(g)+SUB*u+(1280 if j == 2 else 0)}")
        return [tag(i, [RG(greg(g))], [RD(greg(g))])]
    UO = ((1, 0), (1, 1), (0, 1), (0, 0))
    def rdR(b): return [tag(I(f"ds_read_b128 {r4(cR[b]+8*u+4*o)}, v{vRS+o} offset:{REG*greg(4*b)+SUB*u}"), [RG(greg(4*b))], [RD(greg(4*b))]) for u, o in UO]
    plB = lambda g, first=False: [x for j in range(3) for u in range(2) for x in rdB(g, j, u, first)]
    po = opt.get("po")
    xsw = opt.get("xsw")
    S["head"] = H + ps() + wta + wsrd + wtouch + taba + tabld + (parse(f"s_bitcmp1_b32 s2, {xsw[0]}\ns_cbranch_scc1 L_prep2") if xsw else []) + parse(f"s_cmp_ge_u32 s{sW}, 2\ns_cbranch_scc1 L_prep1")
    pc0 = pc[0]; roles = range(4 if xsw else 2)
    for pv in roles:
        w2 = pv & 1; po = xsw[1] if pv > 1 else opt["po"]; po = po[w2] if isinstance(po, tuple) else po
        pc[0] = pc0; b1_, b2_ = (4, 6) if w2 else (3, 5)
        if 1:
            ua = uaddr[w2].strip().split("\n"); ug = [y for y in ua if y.startswith("buffer")]; ua = [y for y in ua if y not in ug]
            it = {"lane": parse(lanec), "a6": parse(last) + xdma(0, 0, dfl, [6])[0], "dm": parse([x.text for x in dmk]), "tab": parse(tables), "g": parse(ug), "t": touch(dfl), "s": None, "gp": parse([x.text for x in gfin]) if w2 else un95(0) + un95(1)}
            it.update({f"x{k}": uxpose(w2, k) for k in range(2) if f"x{k}" in po})
            it.update({f"u{k}": uload(w2, k) for k in range(9)}); it.update({f"l{k}": parse([x.text for x in luts[k]]) for k in range(4)})
            it.update({f"a{k}": xdma(0, 0, dfl, [k])[0] for k in range(opt.get("xn", 6), 6)})
            if po.index("dm") < po.index("a6"): it["dm"] = parse(last) + it["dm"]; it["a6"] = xdma(0, 0, dfl, [6])[0]
            for n_, Gq in (("b", 1),): it.update({f"{n_}{k}": x for k, x in enumerate(xdma(Gq, Gq, dfl))})
            P = parse(f"L_prep{pv}:") + (parse(f"s_cmp_ge_u32 s{sW}, 2\ns_cbranch_scc1 L_prep3") if pv == 2 else []) + parse(ua); late = {}; cur = P
            for x in po.split():
                if x == "a": S[f"pre{pv}"] = P + xloop(pv); S[f"br{pv}"] = parse(f"s_branch L_prb{pv}") if pv != 1 else []; P = cur = parse(f"L_prb{pv}:"); continue
                if x[0] == "p": cur = late.setdefault(int(x[1:]), []); continue
                cur += ps() if x == "s" else xs(x) if x[0] == "y" else parse(f"s_waitcnt vmcnt({x[1:]})") if x[0] == "w" else it.pop(x)
            assert list(it) == ["s"], it
        P += xs("p1") + st(1) + ps() + flat(uxpose(w2, k) for k in range(2) if f"x{k}" not in po)
        rk_ = lambda k: [resid_rd((q_,))[f] for q_ in (0, 2, 3, 1) for f in (2 * k, 2 * k + 1, 6 + 2 * k, 7 + 2 * k)]
        r01 = spc_rd + rk_(0) + rk_(1); RR = {b1_: r01[:20], b1_ + 1: r01[20:], b2_: rk_(2)}; b3 = opt.get("b3")
        if not b3: r01 += rk_(2); RR = {b1_: r01[:28], b1_ + 1: r01[28:]}
        c0r = plB(0, 1) + plB(3, 1)[:5] + rdR(0) + plB(1, 1) + plB(2, 1) + plB(3, 1)[5:]; c0r = c0r if opt.get("c0h") else []; RR[7] = c0r[:opt.get("c0n", 20)]; RR[8] = c0r[len(RR[7]):]
        for nu in range(9):
            nx = uxpose(w2, nu + 2) if nu < 7 else []
            if nu == 2 and not w2: x_ = un95(2); P += x_[:4]; nx += x_[4:]
            f = ufin(w2, nu); l = list(late.get(nu, [])); r = RR.get(nu, []); ne = 2 if nu == 8 else 4
            for e in range(4):
                k_ = [i.kind for i in f[e]].index("dsw")
                P += f[e][:k_] + nx[e:e+1]
                if e == 3 and nu < 6: P += [use(*[src(nu + 3, h, s_) for h in range(2) for s_ in range(2)])]
                if e == 0 and nu in (b1_, b2_, 8 if b3 else -1): P += ps() + bar() + xs({b1_: "p3", b2_: "p4", 8: "p5"}[nu]) + ps()
                P += f[e][k_:k_+1] + r[len(r)*e//ne:len(r)*(e+1)//ne] + l[len(l)*e//4:len(l)*(e+1)//4] + f[e][k_+1:]
            P += nx[4:] + ps()
        if opt.get("now"):
            P = [i for i in P if not (i.kind == "vml" and ("s", sW1) in i.rd | {("s", x - 4) for y, x in i.rd if y == "s" and x == sW2})]
            k_ = [n_ for n_, i in enumerate(P) if i.kind == "mfma"][0]; P = P[:k_] + [i for i in P[k_:] if i.kind in ("vmd", "sml", "wait") or ("s", "m0") in i.wr or (i.kind == "vml")] + bar()
        S[f"prep{pv}"] = P + xs("p2") + (parse("s_branch L_conv0") if pv != 0 else [])
    def res(p, f): return a4(48 * POS[p][1] + 4 * f)
    sfl = opt.get("sfl", "")
    g1 = lambda f, u, o, a: mm16(T1, Y[u] + 8 * o + 4 * (f & 1), a, r4(YN[u] + 8 * (f >> 1) + 4 * o), "0" if f < 2 else None)
    Areg = lambda u, o, rb: ACC[u] + 16 * (rb >> 1) + 8 * o + 4 * (rb & 1)
    g2 = lambda f, u, o, a: mm16("bf16", Areg(u, o, f - 6), a, r4(G[u] + 4 * o))
    gm = lambda f, u, o, a: (g1 if f < 6 else g2)(f, u, o, a)
    def epi_mm(u, o): return [g2(f, u, o, res(11, f)) for f in range(6, 12)]
    def epi(u, o, b, fl):
        d = Areg(u, o, 2 * b)
        return parse([f"v_cvt_pk_bf16_f32 v{d+e}, v{d+2*e}, v{d+2*e+1}" for e in range(4)] +
                     [f"buffer_store_dwordx4 {r4(d)}, v{vO}, {srd(sO)}, s{sOF[2*u+o]} offen offset:{64*b} {fl}".rstrip()])
    rdAD = lambda g: [I(f"ds_read_b128 {r4(cAD+4*(g&1))}, v{vA} offset:{256*g}")] if g < 12 else []
    rdAS = lambda g: [I(f"ds_read_b128 {r4(cAS+4*(g&1))}, v{vA} offset:{256*g+16}")] if g < 12 else []
    def mmR(b):
        return [I(f"v_mfma_f32_16x16x16_bf16 {r4(Areg(u, o, 2*b+s))}, v[{vID}:{vID+1}], v[{cR[b]+8*u+4*o+2*s}:{cR[b]+8*u+4*o+2*s+1}], {r4(Areg(0, 0, 2*b+s))}") for u, o in UO for s in range(2)]
    cinit = lambda b: [I(f"ds_read_b128 {r4(Areg(0, 0, 2*b+s))}, v{vCT} offset:{128*b+16*s}") for s in range(2)]
    def cmm(g, j, u, first):
        cc = r4(Creg(u, g))
        if j == 0: return I(f"v_mfma_f32_16x16x32_bf16 {cc}, {r4(cAD+4*(g&1))}, {opd(Bop(g, 0, u, first))}, 0")
        return I(f"v_smfmac_f32_16x16x64_bf16 {cc}, {r4(cAS+4*(g&1))}, {opd(Bop(g, 1, u, first), 8)}, v{vIDX}")
    def cvt16(u, g):
        cc = Creg(u, g); d = Creg(u, g & ~1) + 2 * (g & 1)
        return parse([f"v_cvt_pkrtz_f16_f32 v{d+e}, v{cc+2*e}, v{cc+2*e+1}" for e in range(2)])
    def dots(u, g):
        d = Creg(u, g & ~1) + 2 * (g & 1); vQ = vSQ[u] + 1
        c = lambda r, e: 0 if g == 0 and e == 0 else f"v{r}"
        return parse([x for e in range(2) for x in [f"v_dot2_f32_f16 v{vQ}, v{d+e}, v{d+e}, {c(vQ, e)}"] + ([] if sm else [f"v_dot2_f32_f16 v{vQ-1}, v{d+e}, s{sONE}, {c(vQ-1, e)}"])])
    summ = lambda kk: [mm16("f16", vSM[u], a4(ONES), r4(YN[u] + 4 * kk), "0" if kk == 0 else None) for u in range(2 * sm)]
    swaps = lambda u, ks: parse([f"v_permlane16_swap_b32 v{YN[u]+8*ks+e}, v{YN[u]+8*ks+4+e}" for e in range(4)])
    DOT = ("x", "dot")
    def dbatch(gs):
        l = flat(il(dots(0, g), dots(1, g)) for g in gs)
        if l: tag(l[0], [DOT]); tag(l[-1], (), [DOT])
        return l
    def fence(l):
        for i in l:
            if i.kind == "mfma" or i.op.startswith("v_dot"):
                if i.kind == "mfma": tag(i, [DOT])
        return l
    spc = lambda p, f: p < 4 and f in (6, 7)
    uses = [(0, f) for f in range(6)]
    for p in range(8): uses += ([(p + 1, f) for f in range(6)] if p < 7 else []) + [(p, f) for f in range(6, 12)]
    uses = [x for x in uses if not spc(*x)]
    def wread(k):
        if k >= len(uses): return []
        p, f = uses[k]
        return [I(f"ds_read_b128 {a4(WR+4*(k%6))}, v{vW[p//4]} offset:{10240*p+1024*(f - 2 * (f > 5)) if p < 4 else 12288*(p-4)+1024*f}")]
    def frag(p, f):
        if p >= 8: return res(p, f), []
        if spc(p, f): return a4(SPC + 8 * p + 4 * (f - 6)), []
        k = uses.index((p, f)); return a4(WR + 4 * (k % 6)), wread(k + 6)
    db = opt.get("db", (3, 6, 9))
    def place(X, pos, items):
        for q_, x in zip(pos, items): X.setdefault(q_, []).extend(x if isinstance(x, list) else [x])
    dp = opt.get("dp", (0, 1, 2, 3, 4, 5, 6) if opt.get("e4") else (7, 8, 9, 10, 11, 12, 13))
    bst = opt.get("bst", (15, 16, 28, 32, 36, 40))
    sadd = lambda: parse(f"v_add_u32 v{vO}, s{sVO}, v{vO}\ns_mov_b32 s{sVO}, {8*ROW}")
    def conv(first, fl=""):
        B = []; X = {}; V = {}
        nb = lambda g: (4 if g == 0 else 99 if g < 4 else g + 2) if first and opt.get("c0h") else (g + 4 if g < 2 else 99 if g < 4 else g + 2) if opt.get("e4") and not first else g + 2
        if first and not opt.get("c0h"):
            B += rdAD(0) + plB(0)[:2] + rdAS(0) + plB(0)[2:] + rdAD(1) + rdAS(1) + plB(1)
            place(X, opt.get("r00", (1, 3, 5, 7)), rdR(0)); place(X, opt.get("ci00", (12, 13)), cinit(0)); place(X, opt.get("dp0", (7, 8, 9, 10, 11, 12, 13)), xdma(2, 0, dfl))
        elif first: B += rdAD(0) + rdAS(0) + rdAD(1) + rdAS(1) + plB(5); place(X, opt.get("ci00", (15, 15)), cinit(0)); place(X, opt.get("dp0", (0, 1, 2, 3, 4, 5, 6)), xdma(2, 0, dfl))
        else:
            e = [epi(1, o, b, fl) for b in range(3) for o in range(2)]
            place(X, opt.get("emp", (7, 7, 8, 9, 10, 11)), epi_mm(1, 1))
            place(X, opt.get("ci0", (12, 13)), cinit(0))
            place(V, opt.get("epv", (2, 3, 5, 6, 7, 8)), [x[:4] for x in e])
            place(X, bst, [x[4] for x in e])
            if max(bst) < 48: place(X, [45], [sadd()])
            place(X, dp, xdma(2, 0, opt.get("dfl2", "")))
        z = "0" if first else ""
        place(X, opt.get("rp" + z, (17, 18, 19, 20, 21, 22, 23, 24)), mmR(0))
        place(X, opt.get("r1p" + z, (16, 18, 20, 22)), rdR(1))
        place(X, opt.get("cip" + z, (38, 39, 41, 42)), cinit(1) + cinit(2))
        place(X, opt.get("w0p" + z, (44, 44, 45, 45, 46, 47)), [wread(k) for k in range(4 if first else 6)])
        dbs = set(opt.get("db0", db)) | {max(db)} if first else db
        if opt.get("cst") and stamp == 1: place(X, opt["cst"], [[lq(2 + k)] for k in range(12)])
        dn = sn = 0
        for g in range(12):
            x = lambda k: X.get(4 * g + k, [])
            if g: B += il(cvt16(0, g - 1), cvt16(1, g - 1))
            B += V.get(g, [])
            B += [cmm(g, 0, 0, first)] + rdB(nb(g), 0, 0, first) + x(0) + [cmm(g, 0, 1, first)] + rdB(nb(g), 0, 1, first) + rdAD(g + 2) + x(1)
            B += [cmm(g, 1, 0, first)] + rdB(nb(g), 1, 0, first) + rdB(nb(g), 2, 0, first) + x(2) + [cmm(g, 1, 1, first)] + rdB(nb(g), 1, 1, first) + rdB(nb(g), 2, 1, first) + rdAS(g + 2) + x(3)
            if g % 2 == 0 and g: B += summ(g // 2 - 1)
            if g in dbs and g <= max(db): B += dbatch(range(dn, g)); dn = g
            while sw1 and 4 * sn + 4 <= min(dn, g & ~1): B += il(swaps(0, sn), swaps(1, sn)); sn += 1
        for i in B:
            if i.kind == "mfma": i.cap = opt.get("ccap" + z, 6)
        return fence(B)
    def lnfin(u):
        vS, vQ = vSQ[u], vSQ[u] + 1
        return parse((f"""
v_mov_b32 v{vS}, v{vQ}
v_permlane32_swap_b32 v{vS}, v{vQ}
v_add_f32 v{vQ}, v{vS}, v{vQ}
v_mul_f32 v{vS}, {hex(f2u(1/96))}, v{vSM[u]}""" if sm else f"""
v_permlane32_swap_b32 v{vS}, v{vQ}
v_add_f32 v{vS}, v{vS}, v{vQ}
v_mov_b32 v{vQ}, v{vS}
v_permlane32_swap_b32 v{vS}, v{vQ}
v_mul_f32 v{vS}, {hex(f2u(1/96))}, v{vS}""") + f"""
v_mul_f32 v{vQ}, {hex(f2u(1/96))}, v{vQ}
v_fma_f32 v{vQ}, -v{vS}, v{vS}, v{vQ}
v_max_f32 v{vQ}, 0, v{vQ}
v_add_f32 v{vQ}, {hex(f2u(1e-5))}, v{vQ}
v_rsq_f32 v{vQ}, v{vQ}
v_fma_mixlo_f16 v{vQ}, v{vQ}, s{sK}, 0
v_fma_mixhi_f16 v{vQ}, -v{vS}, v{vQ}, 0 op_sel_hi:[0,1,0]""" + (f"\nv_mov_b32 v{vS}, v{vQ}\nv_permlane16_swap_b32 v{vQ}, v{vS}" if sw1 else ""))
    nxt = parse(f"s_cmp_eq_u32 s{sT}, 3\ns_cselect_b32 s{sINC}, 0x40000000, {8*ROW}" + (f"\ns_cselect_b32 s{sIMG}, 0x30000, s{sIMG}" if opt.get("lo3") else "")) + parse([f"v_add_u32 v{r}, s{sINC}, v{r}" for r in list(range(vDM, vDM + 7)) + [vTC]])
    def norm(u, kk):
        p = vSQ[u] + (1 - (kk & 1) if sw1 else 1); r = YN[u] + 4 * kk; c5 = kk >= (4 if sw1 else 5)
        l = [f"v_pk_fma_f16 v{r+e}, v{r+e}, v{p}, v{p} op_sel:[0,0,1] op_sel_hi:[1,0,1]" for e in ((3, 0, 1, 2) if c5 else range(4))]
        if T1 == "bf16":
            es = (3, 0, 1, 2) if c5 else range(4); t_ = vSM[u]
            l = [f"v_fma_mix_f32 v{t_+e}, v{r+e}, v{p}, v{p} op_sel:[0,0,1] op_sel_hi:[1,1,1]" for e in es] + [f"v_fma_mix_f32 v{r+e}, v{r+e}, v{p}, v{p} op_sel:[1,0,1] op_sel_hi:[1,1,1]" for e in es]
            l += [f"v_cvt_pk_bf16_f32 v{r+e}, v{t_+e}, v{r+e}" for e in es]
        if opt.get("ymask"): l += [f"v_and_b32 v{r+e}, s87, v{r+e}" for e in ((3, 0, 1, 2) if c5 else range(4))]
        if c5: l = l[:-1] + [f"v_bfi_b32 v{r+3}, v{vMK}, v{r+3}, s{sKB}"] + l[-1:]
        return parse(l) + (swaps(u, kk >> 1) if kk & 1 and not sw1 else [])
    B = il(cvt16(0, 11), cvt16(1, 11)) + summ(5) + nxt + dbatch(range(max(db), 12))
    if sw1: B += flat(il(swaps(0, ks), swaps(1, ks)) for ks in range(min(max(db), 10) // 4, 3))
    B += il(lnfin(0), lnfin(1)); m = mmR(1); r = rdR(2)
    B += [m[0]] + r[:2] + [m[1]] + r[2:] + m[2:]
    for ks in range(3): B += norm(0, 2 * ks) + norm(0, 2 * ks + 1) + [g1(f, 0, o, frag(0, f)[0]) for f in (2 * ks, 2 * ks + 1) for o in range(2)]
    B += flat(norm(1, kk) for kk in range(6))
    LN = fence(B)
    def sd(op, d, s): return f"{op}_sdwa v{d}, v{s} dst_sel:WORD_1 dst_unused:UNUSED_PRESERVE src0_sel:WORD_1"
    pool = list(range(U, U + 24)) + opt.get("pool", []); pk = [0]
    def take():
        pk[0] += 1; return pool[(pk[0] - 1) % len(pool)]
    def gelu(u, L):
        X = [i for i in range(8) if i not in L]
        V = gelu_(u, L, X)
        if not opt.get("pool"): return V
        m = {}
        for i in L + X:
            m[T + i] = take(); m[E + i] = take(); m[U + i] = m[T + i] if i in L else take()
        import re
        return [parse([re.sub(r"\bv(\d+)\b", lambda z: f"v{m.get(int(z.group(1)), int(z.group(1)))}", i.text) for i in l]) for l in V]
    def gelu_(u, L, X):
        cvt = [f"v_cvt_pkrtz_f16_f32 v{U+i}, v{Y[u]+2*i}, v{Y[u]+2*i+1}" for i in L + X]
        sh = [f"v_pk_lshrrev_b16 v{T+i}, 3, v{U+i} op_sel_hi:[0,1]" for i in L]
        ma = [x for i in L for x in (f"v_mad_u32_u16 v{E+i}, v{T+i}, 2, s{sLUT}", f"v_mad_u32_u16 v{T+i}, v{T+i}, 2, s{sLUT} op_sel:[1,0,0,0]")]
        ga = [x for i in L for x in (f"ds_read_u16 v{E+i}, v{E+i}", f"ds_read_u16_d16_hi v{T+i}, v{T+i}")]
        fma = [f"v_pk_fma_f16 v{T+i}, v{U+i}, v{U+i}, s{sC}" for i in X]
        mul = [f"v_pk_mul_f16 v{T+i}, v{T+i}, v{U+i} neg_lo:[1,0] neg_hi:[1,0]" for i in X]
        el = [f"v_exp_f16 v{E+i}, v{T+i}" for i in X]; eh = [sd("v_exp_f16", E + i, T + i) for i in X]
        ad = [f"v_pk_fma_f16 v{E+i}, v{E+i}, s{sKK}, s{sKK}" for i in X]
        rl = [f"v_rcp_f16 v{T+i}, v{E+i}" for i in X]; rh = [sd("v_rcp_f16", T + i, E + i) for i in X]
        fin = [f"v_or_b32 v{G[u]+i}, v{E+i}, v{T+i}" if i in L else f"v_pk_mul_f16 v{G[u]+i}, v{T+i}, v{U+i}" for i in L + X]
        if 1:
            rh += [f"v_fma_mix_f32 v{E+i}, v{T+i}, v{U+i}, 0 op_sel_hi:[1,1,0]" for i in X] + [f"v_fma_mix_f32 v{T+i}, v{T+i}, v{U+i}, 0 op_sel:[1,1,0] op_sel_hi:[1,1,0]" for i in X]
            fin = fin[:len(L)] + [f"v_cvt_pk_bf16_f32 v{G[u]+i}, v{E+i}, v{T+i}" for i in X]
        v1 = cvt + sh + ma
        if opt.get("vch"):
            c_ = opt["vch"]; v1 = [x for k in range(0, 8, c_) for x in cvt[k:k+c_] + sh[k:k+c_] + ma[2*k:2*k+2*c_]]
            if u == 1 or opt.get("vc1"): v1 = cvt[:c_] + sh[:c_] + cvt[c_:] + [x for x in v1 if x not in cvt and x not in sh[:c_]]
        return parse(v1), parse(ga), parse(fma + mul + el + eh + ad + rl + rh), parse(fin)
    pf = xdma(1, 1, opt.get("xfl", "")) + xdma(0, 0, opt.get("xfl", "")) + [touch(opt.get("xfl", ""))]
    pp = opt.get("pfpos", [(j, 12 if j else 6) for j in range(15)])
    slots = [(p, u) for p in range(8) for u in range(2)] + [(p, u) for u in range(2) for p in range(8, 12)]
    ea = [epi(0, o, b, sfl) for b in range(3) for o in range(2)]
    XS = {}; XV = {}
    place(XS, pp, pf)
    place(XS, opt.get("ast", ((21, 6), (21, 16), (22, 2), (22, 12), (22, 22), (23, 8))), [x[4] for x in ea])
    place(XV, opt.get("asv", (21, 21, 22, 22, 22, 23)), [x[:4] for x in ea])
    place(XS, opt.get("epos", [(19, 2 + 4 * k) for k in range(6)] + [(21, 2 + 4 * k) for k in range(6)] + [(23, k) for k in (0, 2, 4, 6, 9, 10, 11, 12)]), plB(0) + plB(1) + rdAD(0) + rdAS(0) + rdAD(1) + rdAS(1) + rdR(0))
    if opt.get("e4"): place(XS, opt.get("ep4", [(23, 9 + k) for k in range(6)] + [(22, 2), (22, 6), (22, 10), (23, 15), (22, 14), (23, 16)]), plB(2) + plB(3))
    place(XS, [(23, 18 + k) for k in dp if k < 0], xdma(2, 0, opt.get("dfl2", "")))
    for c_ in ([opt["cpp"]] if opt.get("cpp") else []) + opt.get("cpq", []): x_ = cpl(); place(XV, [c_[0]], [x_[:2]]); place(XS, [c_], x_[2:])
    place(XS, [(23, 17)], [parse(f"s_add_u32 s{sT}, s{sT}, 1\ns_cmp_eq_u32 s{sT}, 4")])
    nl = opt.get("nl", [4] * 24)
    def slot(j):
        p, u = slots[j]; M = []
        if j == 0:
            for f in range(6): a, post = frag(0, f); M += [[g1(f, 1, 0, a)], [g1(f, 1, 1, a)] + post]
            M += [[x] for x in mmR(2)]
        elif j < 15:
            pp_, fs = (p + 1, range(6)) if u else (p - 1, range(6, 12)); k_ = opt.get("lead", 1)
            a_ = [[[gm(f, 0, o, frag(pp_, f)[0])] for o in range(2)] for f in fs]; b_ = [[[gm(f, 1, 0, frag(pp_, f)[0])], [gm(f, 1, 1, frag(pp_, f)[0])] + frag(pp_, f)[1]] for f in fs]
            M = flat(a_[:k_] + [x for z in range(6) for x in (b_[z:z+1] + a_[z+k_:z+k_+1])])
        else:
            p2, u2 = slots[j - 1]
            M = [[g2(f, u2, o, frag(p2, f)[0])] for o in range(2) for f in range(6, 12)]
            if j < 23:
                p1, u1 = slots[j + 1]; m1 = [[g1(f, u1, o, res(p1, f))] for o in range(2) for f in range(6)]; k_, e_ = opt.get("mord", (2, 2))
                M = M[:k_] + il(m1, M[k_:12-e_]) + M[12-e_:]
        n_ = nl[j]; L = list(range(n_)) if j == 23 or opt.get("lo", 1) else list(range(8 - n_, 8))
        V1, ga, V2, fin = gelu(u, L)
        for x in ga: x.free = 1
        M[0] += ga
        if j == 23:
            em = epi_mm(1, 0); M += [fin[:4] + [em[0]]] + [[x] for x in em[1:]]; fin = fin[4:]
            assert n_ >= 4
        B = V1 + XV.get(j, [])
        if j % 2 == 0 and not opt.get('cst'): M[0].insert(1, lq(2 + j // 2))
        for k, e in enumerate(M): B += [x for x in e if x] + XS.get((j, k), [])
        return B + V2 + fin
    sp = opt.get("sp", {})
    rdreg = [{i.text for b in range(3) for i in rdR(b) + flat(plB(4 * b + g) for g in range(4)) if RG(k) in i.rd} for k in range(2)]
    mid = LN + flat(slot(j) for j in range(24))
    if opt.get("sig"):
        sig = {}; cv = conv(False, sfl); lw = {}; cnt = {}
        for i in conv(True) + wread(4) + wread(5) + mid + cv + mid + cv + mid:
            cnt[i.text] = cnt.get(i.text, 0) + 1; key = (i.text, cnt[i.text])
            sig[key] = {(r, lw.get(r)) for r in i.rd if r not in (DOT, RD(0), RD(1))}
            if i.kind == "vmd": sig[key].add(sum(v for k_, v in cnt.items() if k_ in rdreg[RG(0) not in i.wr]))
            for r in i.wr: lw[r] = key
        sig["period"] = sorted(i.text for i in cv + mid); sig["first"] = sorted(i.text for i in conv(True) if not i.op.startswith(("v_dot", "v_perm")))
        return sig
    def run(l, t):
        o, tm, t = sched.schedule(l, t, **sp); return o, tm, t
    sp0 = dict(sp, **opt.get('sp0', {}))
    c0, tc0, _ = sched.schedule(conv(True), None, **sp0)
    cv = conv(False, sfl); t_ = None
    for it in range(2):
        t0 = t_.tv if t_ else 0
        oc, tc, t_ = run(cv, t_); t1 = t_.tv
        om, tm, t_ = run(mid, t_); t2 = t_.tv
    model = dict(conv=t1 - t0, mid=t2 - t1, tile=t2 - t0)
    if opt.get("dump"):
        for x, y in list(zip(tc, oc)) + list(zip(tm, om)): print(f"{x-t0:6d} {y.text}")
    if stamp == 1:
        tt = [0, t1 - t0] + [x - t0 for x, y in zip(tm, om) if y.text.startswith("s_memtime")] + [t2 - t0]
        print("model", [b - a for a, b in zip(tt, tt[1:])])
    abl = opt.get("abl", ())
    def cls(i):
        x = i.text
        if i.kind == "dsr": return "gat" if "u16" in x else "wrd" if f"v{vW[0]} " in x or f"v{vW[1]} " in x else "crd"
        if i.kind == "mfma": return "res" if "16x16x16" in x else "g1" if any(("v", Y[0] + k) in i.wr for k in range(32)) else "g2" if ", a[" in x.split("], ")[0] + "], "[:0] + x[x.index("], "):x.index("], ")+5] else "cmm"
        if i.kind == "valu": return "tr" if i.trans else "adr" if "mad_u32_u16" in x or "lshrrev_b16" in x else "dot" if "dot2" in x else "pk" if "v_pk_" in x else "cvt" if "cvt" in x else "val"
        return i.kind
    def ablate(o, tm):
        z = [(i, t) for i, t in zip(o, tm) if cls(i) not in abl]
        if opt.get("pad"):
            z = [y for k, (i, t) in enumerate(z) for y in ([(i, t), (I(f"s_nop {opt['pad'][1]}"), t)] if i.kind == "valu" and k % opt["pad"][0] == 0 else [(i, t)])]
        return [a for a, b in z], [b for a, b in z]
    oc, tc = ablate(oc, tc); om, tm = ablate(om, tm)
    carry = lambda l: {r for i in l if i.kind in ("dsr", "vmd") for r in i.wr}
    def cbar(l):
        bp = opt["bp"]; o = []; n_ = 0
        def blk(w):
            wt = I("s_barrier", ws=0); wt.text = "s_waitcnt lgkmcnt(0)"
            return parse(f"s_cmp_lg_u32 s{sW}, {w}\ns_cbranch_scc1 L_cb{w}") + [wt, I("s_barrier", ws=0)] + parse(f"L_cb{w}:")
        for i in l:
            if i.kind == "mfma":
                for w in range(4):
                    if bp[w] == n_: o += blk(w)
                n_ += 1
            o.append(i)
        return o
    h0 = sched.hoist(c0, tc0, sp0, carry(c0r))
    if uni:
        rd0 = plB(0) + plB(1) + plB(2) + plB(3) + rdR(0) + rdAD(0) + rdAS(0) + rdAD(1) + rdAS(1); assert opt.get("e4") and max(dp) < 0
        S["conv0"] = parse("L_conv0:") + ps() + cpa + rd0 + bar() + flat(xdma(2, 0, dfl)) + st(2) + xs("m0") + ps() + (parse("v_accvgpr_write_b32 a224, v255") if stamp in (1, 3) else []) + parse("s_branch L_conv")
    else: S["conv0"] = parse("L_conv0:") + ps() + (parse("v_accvgpr_write_b32 a224, v255") if stamp == 3 else []) + cpa + [x for x in [lq(0)] if x] + ls(0, 5) + (cbar(h0) if opt.get("bp") else h0) + (parse("v_accvgpr_read_b32 v255, a224") if stamp == 3 else []) + ps() + ([] if opt.get("bp") else bar()) + wread(4) + wread(5) + (parse(f"s_mul_i32 s60, s{sW}, {opt['skew']}\nL_sk:\ns_sub_u32 s60, s60, 1\ns_cbranch_scc0 L_sk") if opt.get("skew") else []) + st(2) + xs("m0") + ps() + (parse("v_accvgpr_write_b32 a224, v255") if stamp in (1, 3) else []) + parse("s_branch L_mid")
    xc_ = flat(parse(f"s_cmp_lg_u32 s{sT}, {tt}\ns_cbranch_scc1 L_xc{tt}") + xs(f"c{tt}") + parse(f"L_xc{tt}:") for tt in range(4) if xs(f"c{tt}"))
    S["conv"] = parse("L_conv:") + xc_ + [x for x in [lq(0)] if x] + ls(0, 5) + sched.hoist(oc, tc, sp, carry(mid))
    xt_ = flat(parse(f"s_cmp_lg_u32 s{sT}, {tt}\ns_cbranch_scc1 L_xs{tt}") + xs(f"t{tt}") + parse(f"L_xs{tt}:") for tt in range(4) if xs(f"t{tt}"))
    S["mid"] = parse("L_mid:") + xt_ + [x for x in [lq(1)] if x] + ls(15, 5) + sched.hoist(om, tm, sp, carry(cv)) + lqf() + (parse(f"s_cmp_eq_u32 s{sT}, 4") if stamp in (1, 5) else []) + parse("s_cbranch_scc0 L_conv" + ("" if uni else "\ns_branch L_final"))
    fl = opt.get("sflf", sfl); e = [epi(1, o, b, fl) for o in range(2) for b in range(3)]; m = epi_mm(1, 1)
    F = parse("L_final:") + sched.schedule(flat(x[:4] for x in e[:3]) + flat([m[2*b], e[b][4], m[2*b+1]] for b in range(3)) + flat(e[3:]), None, **sp)[0]
    if opt.get("ro"):
        wg, wv, sa, sb = opt["ro"]
        F += parse("s_waitcnt vmcnt(0)") + st(7) + parse((f"s_bitcmp{1-wg[1]}_b32 s2, {wg[0]}" if isinstance(wg, tuple) else f"s_cmp_lg_u32 s2, {wg if wg >= 0 else 's2'}") + f"""
s_cbranch_scc1 L_end
s_cmp_lg_u32 s{sW}, {wv if wv >= 0 else 's'+str(sW)}
s_cbranch_scc1 L_end
s_sub_u32 s60, s{sa}, s{sb}
s_mul_i32 s60, s60, {10 if opt.get('exrt') else 1}
s_min_u32 s60, s60, 150000
s_add_u32 s60, s60, 10000
L_spin:
s_memrealtime s[62:63]
s_waitcnt lgkmcnt(0)
s_sub_u32 s61, s62, s96
s_cmp_lt_u32 s61, s60
s_cbranch_scc1 L_spin""")
    elif stamp == 6:
        pts = [97 if opt.get("cyc") else 96] + list(AR) + [100 if opt.get("cyc") else 101]
        F += parse("s_waitcnt vmcnt(0)") + st(7) + parse(f"s_load_dwordx2 s[4:5], s[0:1], 64\ns_waitcnt lgkmcnt(0)\n{mksrd(sDW, 4, 256)}\nv_mov_b32 v17, 0\ns_mov_b64 exec, 1")
        for k, (a, b) in enumerate(zip(pts, pts[1:])):
            F += parse(f"s_sub_u32 s61, s{b}, s{a}\nv_mov_b32 v16, s61\nbuffer_atomic_add v16, v17, {srd(sDW)}, 0 offen offset:{4*k}\nbuffer_atomic_umax v16, v17, {srd(sDW)}, 0 offen offset:{32+4*k}")
    elif stamp:
        F += parse("s_waitcnt vmcnt(0)") + st(7) + parse(f"""
s_load_dwordx4 s[4:7], s[0:1], 64
s_waitcnt lgkmcnt(0)
{mksrd(sDW, 4, 65536)}
{mksrd(sB1, 6, 1 << 20)}
s_lshl_b32 s60, s2, 3
s_add_u32 s60, s60, s{sW}
s_lshl_b32 s61, s60, 8
s_lshl_b32 s60, s60, 5
v_mov_b32 v17, s60
v_lshrrev_b32 v18, 2, v{vW[0]}
v_accvgpr_read_b32 v255, a224
buffer_store_dword v255, v18, {srd(sB1)}, s61 offen
""" + "\n".join((f"s_sub_u32 s61, s{96+k}, s97" if k in (2, 3, 4) else f"s_mov_b32 s61, s{96+k}") + f"\nv_mov_b32 v16, s61\nbuffer_store_dword v16, v17, {srd(sDW)}, 0 offen offset:{4*k}" for k in range(6))
 + "\n" + "\n".join(f"s_sub_u32 s61, s{88+2*k}, s{96 if opt.get('exrt') else 97}\nv_mov_b32 v16, s61\nbuffer_store_dword v16, v17, {srd(sDW)}, 0 offen offset:{24+4*k}" for k in range(2)))
    S["final"] = F + parse("L_end:\ns_endpgm")
    S["head"] = (parse("s_memrealtime s[76:77]\ns_memtime s[78:79]") if opt.get("rt0") else []) + S["head"]
    out, stats_ = resolve(S, [["head", f"pre{pr}"] + [f"xl{pr}"] * opt.get("xn", 6) + [f"br{pr}", f"prep{pr}", "conv0"] + ["conv"] * bool(uni) + ["mid", "conv", "mid", "conv", "mid", "final"] for pr in roles])
    if opt.get("trace0"): print(sched.simulate(out[opt["trace0"]], sp, reps=1, trace=True))
    stats_["sim0"] = dict(n=sched.simulate(out["conv0"], sp, reps=1)[0], waits=0, nops=0, port=0, mem=0)
    tt, st_, mk = sched.simulate(out["conv"] + out["mid"], sp, trace=opt.get("trace"))
    stats_["model"] = dict(n=model["conv"], waits=model["mid"], nops=model["tile"], port=tt, mem=st_)
    if mk: print("sim  ", [b - a for a, b in zip(mk, mk[1:])])
    return out, stats_

HDR = open("standalone__modern_conv_block_convnext__vision.s.ref").read().split("; Override launch")[0]
BLOCK, NVGPR = 256, 512
def emit(opt, name=KNAME, full=True):
    out, stats_ = gen(opt)
    lines = [l for n in ["head"] + [x + k for k in "0231" for x in ("pre", "xl", "br")] + ["prep" + k for k in "1230"] + (["conv0", "conv", "mid", "final"] if opt.get("uni") else ["conv0", "final", "conv", "mid"]) for l in out.get(n, [])]
    if opt.get("align"):
        import align
        lines, a = align.align_runs(lines, opt["align"]); stats_["align"] = dict(n=a, waits=0, nops=0, port=0, mem=0)
    lines.insert(-1, "L_last:")
    if opt.get("pga") is not None:
        import align
        k = lines.index("L_conv:"); n = sum(align.sizes(lines[k:])) + opt["pga"]
        lines[k:k] = [".p2alignl 12, 0xbf800000", f".fill {(-n % 4096) // 4}, 4, 0xbf800000"]
    body = "\n".join(lines)
    if name != KNAME: body = body.replace("L_", f"L_{name}_")
    s = ""
    if full:
        s += HDR + f"; Generated by tools/gen4.py (hand-designed schedule, see that file)\n; @launch grid=(256,1,1) block=({BLOCK},1,1) lds={LDS}\n"
        s += '.amdgcn_target "amdgcn-amd-amdhsa--gfx950"\n'
    s += f""".text
.globl {name}
{".p2align 12" + chr(10) + ".fill %d, 4, 0xbf800000" % (opt["org"] // 4) + chr(10) if opt.get("org") is not None else ""}.p2align 8
.type {name},@function
{name}:
{body}
.section .rodata,"a"
.p2align 6
.amdhsa_kernel {name}
  .amdhsa_next_free_vgpr {NVGPR}
  .amdhsa_next_free_sgpr 102
  .amdhsa_accum_offset 256
  .amdhsa_group_segment_fixed_size 0
  .amdhsa_kernarg_size 80
  .amdhsa_user_sgpr_count 2
  .amdhsa_user_sgpr_kernarg_segment_ptr 1
  .amdhsa_system_sgpr_workgroup_id_x 1
.end_amdhsa_kernel
"""
    return s, stats_

DEFAULT = dict(sfl='sc0 sc1', dfl='', cpp=(12, 3), nl=[7]*16+[8]*8, vch=2, pool=[248, 249, 250, 251, 252, 253, 0], sp={'vlat': 700, 'cap': 2, 'pace': 40},
    po='g a a6 dm lane l0 l1 l2 l3 tab gp u0 u1 u2 u3 u4 u5 p0 u6 p1 u7 p2 u8 p3 b0 b1 b2 b3 p4 b4 b5 b6 t')
BASE = dict(DEFAULT)
DEFAULT.update(eval(open("tuned4.txt").read()))
if __name__ == "__main__":
    if len(sys.argv) > 1:
        import os; os.makedirs("var", exist_ok=True)
        for a in sys.argv[1:]:
            n, o = a.split(":", 1); d = dict(DEFAULT); d.update(eval(o) if o[0] == '{' else dict(eval(open(o.split('+')[0]).read()), **(eval(o.split('+', 1)[1]) if '+' in o else {})))
            s, st_ = emit(d); open(f"var/{n}.s", "w").write(s)
            print(n, {k: (v['n'], v['waits'], v['nops'], v['port'], v['mem']) for k, v in st_.items()})
        sys.exit(0)
    s, st_ = emit(DEFAULT)
    open("standalone__modern_conv_block_convnext__vision.s", "w").write(s)
    for n, v in st_.items(): print(n, v)
```

```python
def meta(names):
    s = ".amdgpu_metadata\n---\namdhsa.version: [1, 2]\namdhsa.kernels:\n"
    for n, nv in names:
        s += f"""  - .name: {n}
    .symbol: {n}.kd
    .kernarg_segment_size: 80
    .kernarg_segment_align: 8
    .group_segment_fixed_size: 0
    .private_segment_fixed_size: 0
    .wavefront_size: 64
    .sgpr_count: 102
    .vgpr_count: {nv}
    .max_flat_workgroup_size: 1024
    .args:
"""
        for i in range(10): s+=f"      - {{.name: p{i}, .size: 8, .offset: {8*i}, .value_kind: global_buffer, .address_space: global}}\n"
    s += "...\n.end_amdgpu_metadata\n"
    return s
def kern(name, ld, st, rep=1):
    L=[];A=L.append
    A(f".text\n.globl {name}\n.p2align 8\n.type {name},@function\n{name}:")
    A("s_load_dwordx2 s[4:5], s[0:1], 0\ns_load_dwordx2 s[6:7], s[0:1], 56\ns_load_dwordx2 s[24:25], s[0:1], 64")
    A("v_lshrrev_b32 v1, 6, v0\ns_nop 1\nv_readfirstlane_b32 s20, v1\nv_and_b32 v0, 63, v0")
    A("s_waitcnt lgkmcnt(0)")
    A("s_memtime s[26:27]")
    A("s_mov_b32 s8, s4\ns_mov_b32 s9, s5\ns_mov_b32 s10, 50331648\ns_mov_b32 s11, 0x20000")
    A("s_mov_b32 s12, s6\ns_mov_b32 s13, s7\ns_mov_b32 s14, 50331648\ns_mov_b32 s15, 0x20000")
    A("s_and_b32 s16, s2, 7\ns_lshl_b32 s16, s16, 5\ns_lshr_b32 s17, s2, 3\ns_add_u32 s16, s16, s17")
    A("s_lshr_b32 s17, s16, 4\ns_and_b32 s18, s16, 15")
    A("s_lshl_b32 s17, s17, 5\ns_lshr_b32 s19, s20, 2\ns_lshl_b32 s19, s19, 2\ns_add_u32 s17, s17, s19")
    A("s_lshl_b32 s18, s18, 5\ns_and_b32 s19, s20, 3\ns_lshl_b32 s19, s19, 3\ns_add_u32 s18, s18, s19")
    A("s_mul_i32 s21, s17, 98304\ns_mul_i32 s22, s18, 192\ns_add_u32 s21, s21, s22")
    if ld=="str":
        A("v_mul_u32_u24 v2, 205, v0\nv_lshrrev_b32 v2, 11, v2\nv_mul_u32_u24 v3, 10, v2\nv_sub_u32 v3, v0, v3")
        A("v_mul_u32_u24 v2, 98304, v2\nv_mul_u32_u24 v3, 192, v3\nv_add_u32 v2, v2, v3")
        loads=[(2,16*g) for g in range(12)]
    elif ld=="lin":
        A("v_lshlrev_b32 v2, 4, v0")
        for r in range(1,6): A(f"v_add_u32 v{2+r}, {98304*r}, v2")
        loads=[(2+r,960*k) for r in range(6) for k in range(2)]
    elif ld=="s64":
        A("v_lshrrev_b32 v8, 2, v0\nv_and_b32 v9, 3, v0\nv_lshlrev_b32 v9, 4, v9")
        for k in range(4):
            A(f"v_add_u32 v10, {15*k}, v8\nv_mul_u32_u24 v11, 205, v10\nv_lshrrev_b32 v11, 11, v11\nv_mul_u32_u24 v12, 10, v11\nv_sub_u32 v12, v10, v12")
            A(f"v_mul_u32_u24 v11, 98304, v11\nv_mul_u32_u24 v12, 192, v12\nv_add3_u32 v{2+k}, v11, v12, v9")
        loads=[(2+k,64*c) for k in range(4) for c in range(3)]
    else: loads=[]
    if st in("h32","d16"):
        A("v_and_b32 v8, 31, v0\nv_lshrrev_b32 v9, 3, v8\nv_and_b32 v8, 7, v8\nv_mul_u32_u24 v9, 98304, v9\nv_mul_u32_u24 v8, 192, v8\nv_lshrrev_b32 v10, 5, v0")
        A(f"v_lshlrev_b32 v10, {4 if st=='h32' else 3}, v10\nv_add3_u32 v16, v8, v9, v10")
        stores=[(16,32*i,4) for i in range(6)] if st=="h32" else [(16,16*i,2) for i in range(12)]
    elif st=="h96":
        A("v_and_b32 v8, 31, v0\nv_lshrrev_b32 v9, 3, v8\nv_and_b32 v8, 7, v8\nv_mul_u32_u24 v9, 98304, v9\nv_mul_u32_u24 v8, 192, v8\nv_lshrrev_b32 v10, 5, v0")
        A(f"v_mul_u32_u24 v10, 96, v10\nv_add3_u32 v16, v8, v9, v10")
        stores=[(16,16*i,4) for i in range(6)]
    elif st=="a32":
        A("v_lshrrev_b32 v8, 1, v0\nv_lshrrev_b32 v9, 3, v8\nv_and_b32 v8, 7, v8\nv_mul_u32_u24 v9, 98304, v9\nv_mul_u32_u24 v8, 192, v8\nv_and_b32 v10, 1, v0")
        A(f"v_lshlrev_b32 v10, 4, v10\nv_add3_u32 v16, v8, v9, v10")
        stores=[(16,32*i,4) for i in range(6)]
    elif st=="lin":
        for k in range(3):
            A(f"v_add_u32 v8, {64*k}, v0\nv_cmp_le_u32 vcc, 96, v8\nv_lshlrev_b32 v8, 4, v8\nv_add_u32 v9, {98304-1536}, v8\nv_cndmask_b32 v{16+k}, v8, v9, vcc\nv_add_u32 v{19+k}, {2*98304}, v{16+k}")
        stores=[(16+k,0,4) for k in range(6)]
    else: stores=[]
    A(f"s_mov_b32 s23, {4*rep}")
    A(f"L_{name}:")
    A("s_sub_u32 s30, s21, 98496\ns_cselect_b32 s30, 0, s30")
    for i,(r,o) in enumerate(loads): A(f"buffer_load_dwordx4 v[{32+4*i}:{35+4*i}], v{r}, s[8:11], s30 offen offset:{o}")
    A("s_waitcnt vmcnt(0)")
    for i,(r,o,n) in enumerate(stores): A(f"buffer_store_dwordx{n} v[{32+4*i}:{32+4*i+n-1}], v{r}, s[12:15], s21 offen offset:{o}")
    A(f"s_add_u32 s21, s21, {8*98304}")
    if rep>1:
        A(f"s_and_b32 s28, s23, 3\ns_cmp_eq_u32 s28, 1\ns_cselect_b32 s28, {32*98304}, 0\ns_sub_u32 s21, s21, s28")
    A(f"s_sub_u32 s23, s23, 1\ns_cmp_lg_u32 s23, 0\ns_cbranch_scc1 L_{name}")
    A("s_waitcnt vmcnt(0)\ns_memtime s[28:29]\ns_waitcnt lgkmcnt(0)\ns_sub_u32 s28, s28, s26")
    A("s_mov_b32 s8, s24\ns_mov_b32 s9, s25\ns_mov_b32 s10, 64\ns_lshl_b32 s3, s2, 2\nv_mov_b32 v2, s28\nv_mov_b32 v3, s3\nbuffer_store_dword v2, v3, s[8:11], 0 offen\ns_waitcnt vmcnt(0)")
    A("s_endpgm")
    A(f""".section .rodata,"a"
.p2align 6
.amdhsa_kernel {name}
  .amdhsa_next_free_vgpr 256
  .amdhsa_next_free_sgpr 96
  .amdhsa_accum_offset 256
  .amdhsa_group_segment_fixed_size 0
  .amdhsa_kernarg_size 80
  .amdhsa_user_sgpr_count 2
  .amdhsa_user_sgpr_kernarg_segment_ptr 1
  .amdhsa_system_sgpr_workgroup_id_x 1
.end_amdhsa_kernel""")
    return "\n".join(L)+"\n"
if __name__=="__main__":
    out='.amdgcn_target "amdgcn-amd-amdhsa--gfx950"\n'; names=[]
    for rep in (1,8):
      for ld,st in [("none","none"),("str","none"),("lin","none"),("s64","none"),("none","h32"),("none","h96"),("none","a32"),("none","d16"),("none","lin"),("str","h32"),("str","d16"),("lin","lin"),("str","lin"),("s64","h32")]:
        n=f"m_{ld}_{st}_r{rep}"; out+=kern(n,ld,st,rep); names.append((n,256))
    out+=meta(names)
    open("memtest.s","w").write(out)
    print(" ".join(f"{n} 256 512 0" for n,_ in names))
```

```python
import asmdsl
from asmdsl import I, need, commit, State, use

MEM = ("dsr", "dsw", "vml", "vms", "vmd")
class T:
    def __init__(s):
        s.tv = s.ts = s.tl = s.pipe = s.drain = 0; s.lds = 0; s.ready = {}; s.h = State(); s.shadow = 0; s.lastm = False; s.sx = []; s.ex = 0
        s.out = []
def svc(i, P):
    if "u16" in i.op: return P["gat"]
    if i.kind == "dsw": return 32
    return P["rd"] * getattr(i, "conf", 1)
def vcost(i): return 8 if (i.trans or i.op.startswith(("v_permlane", "v_fma_mixlo", "v_fma_mixhi"))) else 4
def drains(i): return i.op.startswith(("v_dot", "v_pk_mul_f32", "v_pk_add_f32", "v_pk_fma_f32"))
DEF = dict(gat=27, rd=16, lat=72, win=40, cap=3, vlat=900, marg=8, dma=12, stc=16, nlg=13, slat=1300, svl=850, hbm=2500)

def schedule(L, t=None, **kw):
    P = dict(DEF); P.update(kw); t = t or T(); n = len(L)
    pred = [set() for _ in L]; lw = {}; rd = {}; lastm = None; anchor = [None] * n
    for k, i in enumerate(L):
        for r in i.rd:
            if r in lw: pred[k].add(lw[r])
        for r in i.wr:
            if r in lw: pred[k].add(lw[r])
            pred[k].update(x for x in rd.get(r, ()) if x != k)
        for r in i.wr: lw[r] = k; rd[r] = []
        for r in i.rd: rd.setdefault(r, []).append(k)
        if i.kind == "mfma":
            if lastm is not None: pred[k].add(lastm)
            lastm = k
        elif (i.kind in MEM or i.kind == "salu") and lastm is not None and not getattr(i, "free", 0): pred[k].add(lastm)
    done = [False] * n; order = []; times = []
    def est(k):
        i = L[k]; s = 0
        for r in i.rd | i.wr:
            if r in t.ready and not (i.kind in ("dsr", "vmd", "vml") and r not in i.rd): s = max(s, t.ready[r])
        nops, _ = need(t.h, i)
        if i.kind == "mfma": b = max(t.tv if not t.lastm else t.tm, t.pipe)
        elif i.kind == "valu": b = max(t.tv, t.drain) if drains(i) else t.tv
        elif i.kind in MEM:
            b = t.tl
            if i.kind == "vms" and len(t.sx) >= 2: b = max(b, t.sx[-2])
            if i.kind in ("dsr", "dsw") and len(t.out) >= P["nlg"]: b = max(b, t.out[-P["nlg"]])
        else: b = t.ts
        return max(s, b, t.ts + 4 * nops if nops else 0), nops
    def issue(k, s, nops):
        i = L[k]; done[k] = True; order.append(k); times.append(s)
        t.h.t += nops; t.h.pend.clear(); t.h.done = dict(t.h.iss); commit(t.h, i)
        for r in i.rd | i.wr:
            if r in t.ready and not (i.kind in ("dsr", "vmd", "vml") and r not in i.rd): t.ready.pop(r)
        m = False
        if i.kind == "valu": e = s + vcost(i); t.tv = t.ts = e; t.tl = e + 8; t.shadow = 0
        elif i.kind == "mfma":
            t.ts = s + 4; t.tm = s + 8; t.tv = s + (12 if "16x16x64" in i.op else 8); t.tl = max(t.tl, s + 8)
            t.pipe = s + 4 * i.passes; t.drain = t.pipe + 12; t.shadow = getattr(i, "cap", P["cap"]); m = True; t.lastmt = s
        elif i.kind in MEM:
            c = {"vmd": P["dma"], "dsw": 20, "vms": P["stc"]}.get(i.kind, 4); e = s + c
            t.tv = max(t.tv, e); t.ts = e; t.tl = e; t.shadow = max(0, t.shadow - 1); t.tm = e; m = t.lastm
            if i.kind in ("dsr", "dsw"):
                t.lds = max(t.lds, s) + svc(i, P)
                for r in i.wr: t.ready[r] = max(s + P["lat"], t.lds + P["lat"] - 32)
                t.out = t.out[-20:] + [max(s + P["lat"], t.lds + P["lat"] - 32)]
            else:
                if i.kind == "vms": t.ex = max(t.ex, s) + 64; t.sx = t.sx[-2:] + [t.ex]
                else: t.ex = max(t.ex + 16, s + (P["vlat"] if "offset:128" in i.text else P["hbm"]))
                for r in i.wr: t.ready[r] = t.ex
        else:
            e = s + 4; t.tv = max(t.tv, e); t.ts = e; t.tl = max(t.tl, e); t.tm = max(getattr(t, "tm", 0), e); m = t.lastm
        t.lastm = m
    head = 0
    while head < n:
        cand = []; nv = 0; k = head; seenm = False
        while k < n and nv < P["win"]:
            if not done[k]:
                i = L[k]
                if i.kind == "valu": nv += 1
                if all(done[p] for p in pred[k]): cand.append(k)
            k += 1
        while k < n:
            if not done[k] and L[k].kind != "valu" and all(done[p] for p in pred[k]): cand.append(k)
            if not done[k] and L[k].kind == "mfma": break
            k += 1
        E = {k: est(k) for k in cand}; pick = None
        kind = lambda k: L[k].kind
        M = [k for k in cand if kind(k) == "mfma"]; V = [k for k in cand if kind(k) == "valu"]
        X = [k for k in cand if kind(k) in MEM]; S = [k for k in cand if kind(k) not in MEM + ("mfma", "valu")]
        now = min(t.tv, t.tl) if t.shadow else t.tv
        fv = [k for k in V if E[k][0] <= t.tv]
        if S and t.ts < t.tv and E[S[0]][0] <= t.ts: pick = S[0]
        if pick is None and t.shadow:
            x = [k for k in X if E[k][0] <= max(t.tl, t.ts)]
            s_ = [k for k in S if E[k][0] <= t.ts and ("s", "m0") in L[k].wr]
            if x: pick = x[0]
            elif s_ and t.lastm and not fv: pick = s_[0]
        if pick is None and fv and M and getattr(t, "lastmt", -99) + P.get("pace", 0) * L[M[0]].passes / 8 > t.tv: M = []
        if pick is None and X and t.lds < t.tl + P.get("dry", -999) and not (M and E[M[0]][0] <= t.tv + 8):
            x = [k for k in X if E[k][0] <= t.tl and L[k].kind == "dsr"]
            if len(x) >= P.get("dryn", 2): pick = x[0]; t.shadow = P["cap"] + 1
        if pick is None and M and E[M[0]][0] <= t.tv + (0 if fv else 99999) and (fv or not V or E[M[0]][0] <= min(E[k][0] for k in V)):
            if fv or not (X or S) or E[M[0]][0] <= min(E[k][0] for k in X + S) + P.get("mwait", 12): pick = M[0]
        if pick is None and fv: pick = fv[0]
        if pick is None: pick = min(cand, key=lambda k: (E[k][0], k))
        issue(pick, *E[pick])
        while head < n and done[head]: head += 1
    return [L[k] for k in order], times, t

def hoist(L, times, P=None, carry=()):
    P = dict(DEF, **(P or {})); out = []; free = [k for k, i in enumerate(L) if i.kind == "mfma" and not (k + 1 < len(L) and L[k+1].kind == "salu")]
    nxt = {a: b for a, b in zip(free, free[1:] + [len(L) - 1])}
    pend = {}; q = []; lds = 0
    waited = 0
    for k, i in enumerate(L):
        for r in i.rd | i.wr:
            if r in pend and not (i.kind in ("dsr", "vmd", "vml") and r not in i.rd):
                if pend[r][1] is not None: waited = max(waited, pend[r][1] + 1)
                pend.pop(r)
        out.append(i)
        if i.kind in ("dsr", "dsw"):
            lds = max(lds, times[k]) + svc(i, P); q.append(i)
            for r in i.wr: pend[r] = (max(times[k] + P["lat"], lds + P["lat"] - 32), len(q) - 1)
        elif i.kind in ("vml", "vmd"):
            for r in i.wr: pend[r] = (times[k] + (P["vlat"] if "offset:128" in i.text else P["hbm"]), None)
        if k in nxt:
            regs = set(); seen = set()
            for y in L[k+1:nxt[k]+1]:
                for r in (y.rd | y.wr) - seen:
                    if y.kind in ("dsr", "vmd", "vml") and r not in y.rd: continue
                    if r in pend and pend[r][0] <= times[k] + 4 + P["marg"]: regs.add(r)
                    elif r not in pend and r in carry: regs.add(r)
                seen |= y.wr
            more = sum(y.kind in ("dsr", "dsw") for y in L[k+1:nxt[k]+1])
            w = max([waited] + [pend[r][1] + 1 for r in regs if r in pend and pend[r][1] is not None])
            over = len(q) + more - 14 - w
            if over > 0:
                k2 = min(w + over, len(q)) - 1
                while k2 < len(q) and not any(r[0] != "x" and r in pend and pend[r][1] == k2 for r in q[k2].wr): k2 += 1
                if k2 < len(q): regs |= {r for r in q[k2].wr if r[0] != "x"}
            if regs:
                out.append(use(*regs))
                for r in regs:
                    if r in pend:
                        if pend[r][1] is not None: waited = max(waited, pend[r][1] + 1)
                        pend.pop(r)
    return out

def simulate(lines, P=None, reps=2, trace=False):
    import re
    P = dict(DEF, **(P or {})); L = [I(l.strip()) for l in lines if l.strip() and not l.strip().endswith(":")]
    tv = ts = tl = tm = pipe = drain = lds = 0; lastm = False; lg = []; vm = []; sx = []; ex = 0
    for rep in range(reps):
        t0 = tv; st = dict(wait=0, wstall=0, nop=0, memp=0, pipe=0, drain=0); mk = []
        for i in L:
            tb = tv
            if i.kind == "valu":
                s = max(tv, drain) if drains(i) else tv; st["drain"] += s - tv
                tv = ts = tm = s + vcost(i); tl = tv + 8; lastm = False
            elif i.kind == "mfma":
                b = tm if lastm else tv; s = max(b, pipe); st["pipe"] += s - b
                ts = s + 4; tm = s + 8; tv = s + (12 if "16x16x64" in i.op else 8); tl = max(tl, s + 8); pipe = s + 4 * i.passes; drain = pipe + 12; lastm = True
            elif i.kind in MEM:
                s = tl
                if i.kind == "vms" and len(sx) >= 2: s = max(s, sx[-2])
                st["memp"] += max(0, s - tv); e = s + {"vmd": P["dma"], "dsw": 20, "vms": P["stc"]}.get(i.kind, 4)
                tv = max(tv, e); ts = tl = tm = e
                if i.kind in ("dsr", "dsw") and trace == 2 and rep == reps - 1 and s - lds > 30: print("LDS idle", lds - t0, s - lds)
                if i.kind in ("dsr", "dsw"): lds = max(lds, s) + (P["gat"] if "u16" in i.op else P["rd"]); lg.append(max(s + P["lat"], lds + P["lat"] - 32))
                elif i.kind == "vms": ex = max(ex, s) + 64; sx.append(ex); vm.append(ex + P["slat"])
                else: ex = max(ex + 16, s + (P["svl"] if "offset:128" in i.text else P["hbm"])); vm.append(ex)
            else:
                s = ts
                if i.kind == "wait":
                    for q, nm in ((lg, "lgkmcnt"), (vm, "vmcnt")):
                        m = re.search(nm + r"\((\d+)\)", i.text)
                        if m:
                            n = len(q) - int(m.group(1))
                            if n > 0: s = max(s, max(q[:n])); del q[:n]
                    st["wstall"] += max(0, s - max(ts, tv - 4))
                c = 4 * i.ws if i.kind == "nop" else 4; e = s + c
                st["nop" if i.kind == "nop" else "wait"] += max(0, min(e, ts + c) - tv)
                if i.op == "s_memtime": mk.append(s - t0)
                tv = max(tv, e); ts = e; tl = max(tl, e); tm = max(tm, e)
            if trace == 1 and rep == reps - 1: print(f"{s-t0:6d} {'+%d' % (s - tb) if s > tb else '':5s} {i.text[:90]}")
    return tv - t0, st, mk
```

```python
import sys, struct, math
from asmdsl import I, parse, resolve, use
import sched

KNAME = "standalone__modern_conv_block_convnext__vision_kernel"
def f2u(x): return struct.unpack("<I", struct.pack("<f", x))[0]
def h2u(x): return struct.unpack("<H", struct.pack("<e", x))[0]
A_ = 2 * math.sqrt(2 / math.pi) * math.log2(math.e)
K_ = 0.46875
C_ = A_ / K_; A3 = A_ * 0.044715 / K_ ** 3
XB = 512 * 512 * 192
ROW = 98304
OOR = 0x10000000
WA, WB = 0, 40960
IMG = 90112; IMGW = 12800; REG = 6400; SUB = 2560
TAB = IMG + 4 * IMGW; DYS = 3072
G2 = TAB + 3 * DYS
LUT = G2 + 384
LDS = 163840
vID = 18
vDM, vPB, vIDX, vMK, vRS, vA, vW, vCT, vO, vSQ, vTC = 1, 8, 16, 17, 20, 22, (23, 24), 25, 26, (27, 29), 31
ACC, YN, Y, U, T, E, G = (32, 80), (128, 152), (176, 192), 208, 216, 224, (232, 240)
SC = 252; vSM = (248, 252)
pS, pT, pN, pE, pD, GK, ID = 232, 234, 236, 238, 224, 176, 240
def Creg(u, g): return YN[u] + 4 * (g >> 1) if g % 2 == 0 else E + 4 * u
cAD, cAS, cR = Y[1], Y[1] + 8, (ACC[0] + 16, U, G[0])
SPC, ONES, WR = 192, 228, 232
sW = 3; sX = 20; sO = 24; sDW = 28; sB1 = 32; sB2 = 36; sGA = 40; sW1 = 44; sW2 = 48
sT, sC, sROW, sCOL, sIMG, sINC, sONE, sK = 52, 53, 54, 55, 56, 57, 58, 59
sOF = (80, 81, 82, 83)
sKB, sLUT, sKK, sPC, sVO, sDR = 84, 85, 86, 94, 54, 87
POS = {p: ((p // 4 + 1) % 3, p % 4) for p in range(12)}
r4 = lambda r: f"v[{r}:{r+3}]"
a4 = lambda r: f"a[{r}:{r+3}]"
r16 = lambda r: f"v[{r}:{r+15}]"
srd = lambda s: f"s[{s}:{s+3}]"
flat = lambda ll: [x for l in ll for x in l]

def mm32(ty, d, a, b, c=None):
    return I(f"v_mfma_f32_32x32x16_{ty} {r16(d)}, {a}, {b}, {r16(d) if c is None else c}")
def mm16(ty, d, a, b, c=None): return I(f"v_mfma_f32_16x16x32_{ty} {r4(d)}, {a}, {b}, {r4(d) if c is None else c}")
def mix(main, extra):
    extra = sorted(extra, key=lambda e: e[0]); out = []; acc = 0; k = 0
    for m in main:
        while k < len(extra) and extra[k][0] <= acc: out += extra[k][1]; k += 1
        out.append(m); acc += m.cost
    for e in extra[k:]: out += e[1]
    return out
def il(*ls):
    out = []
    for k in range(max(map(len, ls))): out += [l[k] for l in ls if k < len(l)]
    return out
def mksrd(s, p, n): return f"s_mov_b32 s{s}, s{p}\ns_mov_b32 s{s+1}, s{p+1}\ns_mov_b32 s{s+2}, {n}\ns_mov_b32 s{s+3}, 0x20000"
def tag(i, rd=(), wr=()): i.rd = i.rd | set(rd); i.wr = i.wr | set(wr); return i
RG = lambda r: ("x", f"img{r}")
RD = lambda r: ("x", f"rd{r}")

def gen(opt):
    S = {}
    uni = opt.get("uni")
    stamp = opt.get("stamp"); T1 = opt.get("g1t", "f16"); sm = opt.get("sm", 1); sw1 = opt.get("sw1", 1)
    def st(k):
        if not stamp: return []
        if k == 0 and opt.get("rt0"): return parse("s_waitcnt lgkmcnt(0)\ns_mov_b32 s96, s76\ns_mov_b32 s97, s78")
        if k == 0: return parse("s_memrealtime s[76:77]\ns_memtime s[78:79]\ns_waitcnt lgkmcnt(0)\ns_mov_b32 s96, s76\ns_mov_b32 s97, s78")
        if k == 7: return parse("s_memrealtime s[76:77]\ns_memtime s[78:79]\ns_waitcnt lgkmcnt(0)\ns_mov_b32 s101, s76\ns_mov_b32 s100, s78")
        return parse(f"s_memtime s[78:79]\ns_waitcnt lgkmcnt(0)\ns_mov_b32 s{97+k}, s78")
    AG = opt.get("ag", ("p1", "p2", "t0", "c1", "t1", "c2", "t3"))
    AR = (36, 38, 40, 42, 88, 90, 92)
    def xs(k):
        if stamp == 6: return parse(f"{'s_memtime' if opt.get('cyc') else 's_memrealtime'} s[{AR[AG.index(k)]}:{AR[AG.index(k)]+1}]\ns_waitcnt lgkmcnt(0)") if k in AG else []
        if not stamp or k not in opt.get("exs", ()): return []
        r = 88 + 2 * opt['exs'].index(k)
        return parse(f"{'s_memrealtime' if opt.get('exrt') else 's_memtime'} s[{r}:{r+1}]\ns_waitcnt lgkmcnt(0)")
    def ls(k, mode=1):
        if stamp != mode: return []
        i = I("s_mov_b32 s60, s60"); i.text = f"s_memtime s[{60+k//15*2}:{61+k//15*2}]"; i.rd = set(); i.wr = set()
        if k == 0: return [i]
        return [i]
    SQ = [60, 62, 64, 66, 68, 70, 72, 74, 76, 78, 36, 38, 40, 42, 44]
    def lq(k):
        if stamp != 1: return None
        i = I("s_mov_b32 s60, s60"); i.text = f"s_memtime s[{SQ[k]}:{SQ[k]+1}]"; i.rd = set(); i.wr = set(); return i
    def lqf():
        if stamp == 5: return parse(f"s_waitcnt lgkmcnt(0)\nv_accvgpr_read_b32 v255, a224\ns_lshl_b32 m0, s{sT}, 4\ns_sub_u32 m0, m0, 16\ns_sub_u32 s60, s60, s97\nv_writelane_b32 v255, s60, m0\ns_add_u32 m0, m0, 15\ns_sub_u32 s62, s62, s97\nv_writelane_b32 v255, s62, m0\nv_accvgpr_write_b32 a224, v255")
        if stamp != 1: return []
        return [lq(14)] + parse(f"s_waitcnt lgkmcnt(0)\nv_accvgpr_read_b32 v255, a224\ns_lshl_b32 m0, s{sT}, 4\ns_sub_u32 m0, m0, 16") + flat(parse(f"s_sub_u32 s{r}, s{r}, s97\nv_writelane_b32 v255, s{r}, m0\ns_add_u32 m0, m0, 1") for r in SQ) + parse("v_accvgpr_write_b32 a224, v255")
    pc = [0 if stamp != 7 else -1]
    def ps():
        if stamp == 7 and pc[0] >= 0:
            pc[0] += 1; r = (list(range(4, 20, 2)) + list(range(28, 44, 2)) + [88, 90, 92])[pc[0] - 1]
            i = I("s_mov_b32 s60, s60"); i.text = f"s_memtime s[{r}:{r+1}]"; i.rd = set(); i.wr = set(); return [i]
        if stamp != 3: return []
        pc[0] += 1
        return parse(f"s_memtime s[78:79]\ns_waitcnt lgkmcnt(0)\ns_sub_u32 s78, s78, s97\nv_writelane_b32 v255, s78, {pc[0]-1}")
    def xdma(Gq, reg, fl, ks=range(7)):
        l = []
        for k in ks:
            i = I(f"buffer_load_dword{'x4' if k < 6 else ''} v{vDM+k}, {srd(sX)}, 0 offen offset:{64*Gq} {fl} lds".replace("  ", " "))
            l.append(parse(f"s_add_u32 m0, s{sIMG}, {REG*reg + 1024*k - 64*Gq}") + [tag(i, [RD(reg)], [RG(reg)])])
        return l
    touch = lambda fl: [I(f"buffer_load_dword v{SC+2}, v{vTC}, {srd(x)}, 0 offen {fl}".rstrip()) for x in ((sX, sO) if opt.get("ot") else (sX,))]
    t = 128
    ln = t + 1; hh = t + 10; tt, tp, tc = t + 2, t + 3, t + 4
    def dma_addr(d, x, y): return f"""v_lshrrev_b32 v{x}, 11, v{tt}
v_subrev_u32 v{y}, s65, v{tt}
v_mad_u32_u24 v{x}, v{x}, s68, v{tp}
v_and_b32 v{y}, 0x7ff, v{y}
v_cmp_gt_u32 vcc, s66, v{y}
v_lshrrev_b32 v{y}, 7, v{tt}
v_and_b32 v{y}, 32, v{y}
v_xad_u32 v{x}, v{tc}, v{y}, v{x}
v_cndmask_b32 v{d}, v{t+8}, v{x}, vcc
"""
    step = f"v_add_u32 v{tt}, {16*205}, v{tt}\nv_add_u32 v{tp}, {16*192}, v{tp}\n"
    first = f"""v_lshrrev_b32 v{tp}, 2, v{ln}
v_mul_u32_u24 v{tt}, 205, v{tp}
v_mul_u32_u24 v{tp}, 192, v{tp}
v_add_u32 v{tp}, s64, v{tp}
"""
    last = f"""v_lshrrev_b32 v{tp}, 4, v{ln}
v_add_u32 v{tp}, 96, v{tp}
v_mul_u32_u24 v{tt}, 205, v{tp}
v_mul_u32_u24 v{tp}, 192, v{tp}
v_add_u32 v{tp}, s64, v{tp}
v_lshlrev_b32 v{t+5}, 2, v{ln}
v_and_b32 v{t+5}, 63, v{t+5}
""" + dma_addr(vDM + 6, t + 6, t + 7).replace(f"v{tc},", f"v{t+5},")
    ncl = 4 if opt.get("xsw") else 3
    cpf = f"""s_getpc_b64 s[62:63]
L_pc:
v_min_u32 v18, {ncl-1}, v{ln}
s_lshr_b32 s71, s2, 3
s_lshl2_add_u32 s71, s71, s{sW}
v_mad_u32_u24 v18, s71, {ncl}, v18
v_min_u32 v18, (L_last-L_pc)/128, v18
v_lshlrev_b32 v18, 1, v18
v_mad_u64_u32 v[18:19], vcc, v18, 64, s[62:63]
global_load_dword v251, v[18:19], off
"""
    cpa = parse(f"""s_getpc_b64 s[{sPC}:{sPC+1}]
L_pd:
s_lshl_b32 s60, s{sW}, 10
s_add_u32 s60, s60, {'L_last-3968' if uni else 'L_final'}-L_pd
s_add_u32 s{sPC}, s{sPC}, s60
s_addc_u32 s{sPC+1}, s{sPC+1}, 0""")
    cpl = lambda: parse(f"""v_and_b32 v254, 0x70, v{vW[0]}
v_mad_u64_u32 v[254:255], vcc, v254, 8, s[{sPC}:{sPC+1}]""") + [I("global_load_dword v254, v[254:255], off")]
    bou = f"""s_bitcmp1_b32 s2, 7
s_cselect_b32 s{sDR}, 1, -1
s_cselect_b32 s61, 0, {24*ROW}
s_mul_i32 s{sDR}, s{sDR}, {8*ROW}
s_add_u32 s63, s63, s61
""" if opt.get("bou") else ""
    DR = f"s{sDR}" if opt.get("bou") else 8 * ROW
    H = parse(f"""
s_cmp_ge_u32 s2, 256
s_cbranch_scc1 L_end
s_load_dwordx16 s[4:19], s[0:1], 0
v_readfirstlane_b32 s{sW}, v0
v_and_b32 v{ln}, 63, v0
s_and_b32 s60, s2, 7
s_lshr_b32 s61, s2, 7
s_lshl1_add_u32 s60, s60, s61
s_lshr_b32 s{sW}, s{sW}, 6
{cpf}s_bfe_u32 s61, s2, 0x40003
s_lshl2_add_u32 s{sCOL}, s61, s{sW}
s_mul_i32 s60, s60, {32*ROW}
s_mul_i32 s61, s{sCOL}, 1536
s_add_u32 s63, s60, s61
{bou}s_sub_u32 s64, s63, {ROW+192}
s_movk_i32 s65, 0
s_movk_i32 s66, 2048
s_cmp_eq_u32 s{sCOL}, 0
s_cmovk_i32 s65, 100
s_cmovk_i32 s66, 1948
s_cmp_eq_u32 s{sCOL}, 63
s_cmovk_i32 s66, 1800
s_mul_i32 s{sIMG}, s{sW}, {IMGW}
s_add_u32 s{sIMG}, s{sIMG}, {IMG}
s_mov_b32 s68, {ROW-1920}
{first}v_lshlrev_b32 v{tc}, 4, v0
v_and_b32 v{t+5}, 16, v0
v_bitop3_b32 v{tc}, v{tc}, v{t+5}, 48 bitop3:0x28
v_bfrev_b32 v{t+8}, 1
""") + st(0) + parse(mksrd(sX, 4, XB))
    dfl = opt.get("dfl", "")
    def xloop(pv):
        dm = tag(I(f"buffer_load_dwordx4 v{t+6}, {srd(sX)}, 0 offen {dfl} lds".replace("  ", " ")), [RD(0)], [RG(0)])
        S[f"xl{pv}"] = parse(f"L_xl{pv}:") + parse(dma_addr(t + 6, t + 6, t + 7)) + parse(step) + [dm] + parse(f"s_add_u32 m0, m0, 1024\ns_sub_u32 s70, s70, 1\ns_cbranch_scc0 L_xl{pv}")
        return parse(f"s_mov_b32 m0, s{sIMG}\ns_movk_i32 s70, {opt.get('xn', 6) - 1}")
    dmk = parse(first + step.join(dma_addr(vDM + k, t + 6, t + 7) for k in range(6)) + f"""s_cmp_lt_u32 s{sCOL}, 63
s_cselect_b32 s66, 10, 0
s_add_u32 s64, s64, {9*192+128}
v_mul_u32_u24 v{t+6}, {ROW}, v{ln}
v_add_u32 v{t+6}, s64, v{t+6}
v_cmp_gt_u32 vcc, s66, v{ln}
v_cndmask_b32 v{vTC}, v{t+8}, v{t+6}, vcc
""")
    wta = parse(f"""s_mulk_i32 s71, 640
v_lshlrev_b32 v{t+13}, 7, v{ln}
v_cmp_gt_u32 vcc, 5, v{ln}
v_cndmask_b32 v{t+13}, v{t+8}, v{t+13}, vcc
""")
    taba = parse(f"""v_lshrrev_b32 v{hh}, 5, v{ln}
s_movk_i32 s69, 192
v_mul_u32_u24 v{t+11}, 1366, v0
v_lshrrev_b32 v{t+11}, 16, v{t+11}
v_mul_u32_u24 v{t+11}, 384, v{t+11}
v_lshl_add_u32 v{t+11}, v0, 2, v{t+11}
v_lshlrev_b32 v{t+12}, 3, v0
{mksrd(sDW, 6, 1728)}
{mksrd(sB2, 14, 192)}
{mksrd(sGA, 16, 192)}
{mksrd(sB1, 10, 768)}
""")
    tabld = parse(f"""
buffer_load_dword v{t+16}, v{t+11}, {srd(sDW)}, 0 offen
buffer_load_dword v{t+17}, v{t+11}, {srd(sDW)}, 0 offen offset:192
buffer_load_dword v{t+18}, v{t+11}, {srd(sDW)}, 0 offen offset:384
buffer_load_dwordx2 v[{t+20}:{t+21}], v{t+12}, {srd(sB2)}, 0 offen
buffer_load_dwordx2 v[{t+22}:{t+23}], v{t+12}, {srd(sGA)}, 0 offen
""")
    wsrd = parse(f"{mksrd(sW1, 8, 73728)}\n{mksrd(sW2, 12, 73728)}")
    wtouch = parse(f"buffer_load_dword v{t+14}, v{t+13}, {srd(sW1)}, s71 offen\nbuffer_load_dword v{t+15}, v{t+13}, {srd(sW2)}, s71 offen")
    if 0: wtouch += parse(f"v_lshlrev_b32 v{t+19}, 7, v{ln}\nbuffer_load_dword v{t+19}, v{t+19}, {srd(sB1)}, 0 offen")
    q = t + 24
    n, kq, rp, c, par, oor = q, q + 1, q + 2, q + 3, q + 4, q + 5
    lanec = f"""
v_mov_b32 v{oor}, {OOR}
v_and_b32 v{n}, 15, v{ln}
v_lshrrev_b32 v{kq}, 4, v{ln}
v_add_u32 v{rp}, 4, v{n}
v_lshrrev_b32 v{rp}, 3, v{rp}
v_mad_i32_i24 v{c}, v{rp}, -4, v{n}
v_and_b32 v{rp}, 1, v{rp}
v_and_b32 v{par}, 1, v{kq}
v_lshlrev_b32 v{q+6}, 1, v{rp}
v_mul_u32_u24 v{q+7}, {ROW}, v{q+6}
v_mad_u32_u24 v{q+7}, v{c}, s69, v{q+7}
v_lshl_add_u32 v{q+7}, v{kq}, 4, v{q+7}
v_add_u32 v{vO}, s63, v{q+7}
{f"v_xor_b32 v{vO}, 0x80000000, v{vO}" if uni else ""}
s_mov_b32 s{sVO}, {0x80000000 if uni else 8*ROW}
"""
    def pixaddr(d, row, col, fhi, x=None):
        return f"""v_add_u32 v{q+7}, {row}, v{q+6}
v_add_u32 v{q+8}, {col}, v{c}
v_mad_u32_u24 v{q+7}, v{q+7}, 10, v{q+8}
v_bfe_u32 v{q+8}, v{q+7}, 2, 1
v_lshl_or_b32 v{q+8}, v{fhi}, 1, v{q+8}
""" + (f"v_xor_b32 v{q+8}, v{x}, v{q+8}\n" if x else "") + f"""v_lshl_add_u32 v{q+8}, v{q+7}, 2, v{q+8}
v_lshl_add_u32 v{d}, v{q+8}, 4, s{sIMG}
"""
    lanec += f"v_xor_b32 v{q+9}, v{rp}, v{hh}\n" + pixaddr(vPB, f"v{kq}", 0, q + 9)
    lanec += f"v_add_u32 v{q+10}, 1, v{par}\n" + pixaddr(vPB + 4, f"v{hh}", f"v{q+10}", rp)
    lanec += "".join(f"v_xor_b32 v{vPB+4*d+i}, {16*i}, v{vPB+4*d}\n" for d in range(2) for i in (1, 2, 3))
    lanec += pixaddr(vRS, 1, 1, rp, kq) + f"v_xor_b32 v{q+9}, 1, v{rp}\n" + pixaddr(vRS + 1, 2, 1, q + 9, kq)
    lanec += f"""v_bfe_u32 v{q+6}, v{n}, 2, 1
v_sub_u32 v{q+6}, v{kq}, v{q+6}
v_and_b32 v{q+7}, 3, v{n}
v_mul_u32_u24 v{vIDX}, 0x1111, v{q+7}
v_lshrrev_b32 v{q+8}, 3, v{n}
v_lshl_add_u32 v{q+7}, v{q+8}, 2, v{q+7}
v_lshlrev_b32 v{q+7}, 5, v{q+7}
v_add_u32 v{q+7}, {TAB}, v{q+7}
s_movk_i32 s70, {DYS}
v_cmp_gt_u32 vcc, 3, v{q+6}
v_mad_u32_u24 v{q+7}, v{q+6}, s70, v{q+7}
v_cndmask_b32 v{vA}, v{oor}, v{q+7}, vcc
v_lshlrev_b32 v{vW[0]}, 4, v{ln}
v_add_u32 v{vW[1]}, {WB}, v{vW[0]}
v_lshlrev_b32 v{vCT}, 5, v{kq}
v_add_u32 v{vCT}, {G2}, v{vCT}
v_and_b32 v{q+8}, 1, v{ln}
v_lshlrev_b32 v{q+8}, 4, v{q+8}
v_mov_b32 v{q+9}, 0x3f80
v_lshlrev_b32 v{q+8}, v{q+8}, v{q+9}
v_bfe_u32 v{q+6}, v{ln}, 1, 1
v_bfe_u32 v{q+7}, v{ln}, 3, 2
v_lshl_add_u32 v{q+7}, v{q+7}, 1, v{q+6}
v_bfe_u32 v{q+9}, v{ln}, 2, 1
v_xor_b32 v{q+9}, v{q+9}, v{hh}
v_lshl_add_u32 v{q+7}, v{q+9}, 3, v{q+7}
v_lshlrev_b32 v{q+7}, v{q+7}, 1
v_lshrrev_b32 v{q+9}, 2, v{n}
v_xor_b32 v{q+9}, v{q+9}, v{kq}
v_lshl_add_u32 v{q+6}, v{q+9}, 1, v{q+6}
v_lshlrev_b32 v{q+6}, v{q+6}, 1
""" + "".join(f"v_bfe_i32 v{d+r}, v{o}, {r}, 1\n" for d, o, k in ((ID, q + 7, 8), (vID, q + 6, 2)) for r in range(k)) + \
        "".join(f"v_and_b32 v{d+r}, v{q+8}, v{d+r}\n" for d, k in ((ID, 8), (vID, 2)) for r in range(k)) + f"""{mksrd(sO, 18, XB)}
s_mov_b32 s{sT}, 0
s_mov_b32 s{sOF[0]}, 0
s_mov_b32 s{sOF[1]}, {ROW}
s_mov_b32 s{sOF[2]}, {4*ROW}
s_mov_b32 s{sOF[3]}, {5*ROW}
s_mov_b32 s{sC}, {h2u(C_) * 0x10001}
s_mov_b32 s{sONE}, 0x3c003c00
s_mov_b32 s{sLUT}, {LUT}
s_mov_b32 s{sKK}, {hex(h2u(K_) * 0x10001)}
s_mov_b32 s{sKB}, {hex(h2u(K_) << 16 if T1 == "f16" else f2u(K_))}
v_lshrrev_b32 v{q+6}, 2, v{n}
v_xor_b32 v{q+6}, v{q+6}, v{kq}
v_bfe_i32 v{q+6}, v{q+6}, 0, 1
v_bfi_b32 v{q+6}, v{q+6}, 0, s{sONE}
""" + "".join(f"v_accvgpr_write_b32 a{ONES+r}, v{q+6}\n" for r in range(4)) + (f"""v_and_b32 v{vMK}, v{hh}, v{kq}
v_lshlrev_b32 v{vMK}, 4, v{vMK}
""" if sw1 else f"v_lshlrev_b32 v{vMK}, 4, v{hh}\n") + f"v_lshrrev_b32 v{vMK}, v{vMK}, -1\n"
    z = q + 12
    tables = f"""
v_lshlrev_b32 v{q+6}, 6, v0
v_add_u32 v{q+6}, {TAB}, v{q+6}
v_cmp_gt_u32 vcc, 144, v0
v_cndmask_b32 v{q+6}, v{oor}, v{q+6}, vcc
v_and_b32 v{q+7}, 3, v0
v_lshl_add_u32 v{q+8}, v{q+7}, 2, v{q+6}
v_lshrrev_b32 v{q+7}, 1, v{q+7}
v_lshl_add_u32 v{q+7}, v{q+7}, 2, v{q+6}
v_lshlrev_b32 v{q+9}, 4, v0
v_add_u32 v{q+9}, {G2}, v{q+9}
v_cmp_gt_u32 vcc, 24, v0
v_cndmask_b32 v{q+9}, v{oor}, v{q+9}, vcc
v_mov_b32 v{z}, 0
v_mov_b32 v{z+1}, 0
v_mov_b32 v{z+2}, 0
v_mov_b32 v{z+3}, 0
ds_write_b128 v{q+6}, {r4(z)}
ds_write_b128 v{q+6}, {r4(z)} offset:16
ds_write_b128 v{q+6}, {r4(z)} offset:32
ds_write_b128 v{q+6}, {r4(z)} offset:48
ds_write_b16 v{q+8}, v{t+16}
ds_write_b16_d16_hi v{q+8}, v{t+16} offset:34
ds_write_b16 v{q+7}, v{t+17} offset:16
ds_write_b16_d16_hi v{q+7}, v{t+17} offset:48
ds_write_b16 v{q+7}, v{t+18} offset:24
ds_write_b16_d16_hi v{q+7}, v{t+18} offset:56
v_lshlrev_b32 v{z+4}, 16, v{t+20}
v_and_b32 v{z+5}, 0xffff0000, v{t+20}
v_lshlrev_b32 v{z+6}, 16, v{t+21}
v_and_b32 v{z+7}, 0xffff0000, v{t+21}
v_lshlrev_b32 v{z+8}, 16, v{t+22}
v_and_b32 v{z+9}, 0xffff0000, v{t+22}
v_lshlrev_b32 v{z+10}, 16, v{t+23}
v_and_b32 v{z+11}, 0xffff0000, v{t+23}
v_mul_f32 v{z+4}, v{z+4}, v{z+8}
v_mul_f32 v{z+5}, v{z+5}, v{z+9}
v_mul_f32 v{z+6}, v{z+6}, v{z+10}
v_mul_f32 v{z+7}, v{z+7}, v{z+11}
ds_write_b128 v{q+9}, {r4(z+4)}
"""
    def lutb(rs):
        L = []; W = []
        for n_, r in enumerate(rs):
            b = 160 + 8 * n_; two = lambda f: [f(b + 1, b + 3, b + 5), f(b + 2, b + 4, b + 6)]
            l = [f"v_add_u32 v{b}, {hex(0x10001000 * r)}, v{SC}", f"v_cvt_f32_f16 v{b+1}, v{b}", f"v_cvt_f32_f16_sdwa v{b+2}, v{b} dst_sel:DWORD dst_unused:UNUSED_PAD src0_sel:WORD_1"]
            if r < 5:
                for f in (lambda u, a, e: f"v_mul_f32 v{a}, {hex(f2u(A3))}, v{u}", lambda u, a, e: f"v_fma_f32 v{a}, v{a}, v{u}, s73", lambda u, a, e: f"v_mul_f32 v{a}, -v{u}, v{a}",
                          lambda u, a, e: f"v_exp_f32 v{e}, v{a}", lambda u, a, e: f"v_fma_f32 v{a}, v{e}, s{sK}, s{sK}", lambda u, a, e: f"v_rcp_f32 v{a}, v{a}",
                          lambda u, a, e: f"v_mul_f32 v{a}, v{u}, v{a}", lambda u, a, e: f"v_mul_f32 v{e}, -v{e}, v{a}"): l += two(f)
                l += [f"v_cvt_pk_bf16_f32 v{b+7}, v{b+5}, v{b+6}"]; W.append(f"ds_write_b32 v{SC+1}, v{b+7} offset:{8192+1024*r}")
            else: l += two(lambda u, a, e: f"v_mul_f32 v{a}, {hex(f2u(1 / K_))}, v{u}")
            L.append(l + [f"v_cvt_pk_bf16_f32 v{b}, v{b+3}, v{b+4}"]); W.append(f"ds_write_b32 v{SC+1}, v{b} offset:{1024*r}")
        return il(*L) + W
    lut = parse(f"""s_mov_b32 s73, {hex(f2u(C_))}
s_mov_b32 s{sK}, {hex(f2u(K_))}
v_mul_u32_u24 v{SC}, 0x100010, v0
v_add_u32 v{SC}, 0xc0004, v{SC}
v_lshlrev_b32 v{SC+1}, 2, v0
v_add_u32 v{SC+1}, {LUT}, v{SC+1}""")
    luts = [parse(lutb(rs)) for rs in ((0, 1), (2, 3), (4, 5), (6, 7))]; luts[0] = lut + luts[0]
    def src(nu, h, s): return a4(16 * nu + 8 * h + 4 * s) if nu < 6 else r4(ACC[0] + 16 * (nu - 6) + 8 * h + 4 * s)
    acc = lambda nu, h: 80 + 32 * (nu % 3) + 16 * h
    N95, R95, RB1, RG_ = (208, 192, 208), 176, WR, 208
    def xpose(d, f, cin=None): return [mm32("bf16", d, f(0), r4(ID), cin), mm32("bf16", d, f(1), r4(ID + 4))]
    def uxpose(w2, nu):
        l = il(*[xpose(acc(nu, h), lambda s: src(nu, h, s), "0" if w2 else r16(N95[nu // 3])) for h in range(2)])
        if not w2 and nu % 3 == 2: l += xpose(acc(nu, 1), lambda s: a4(RB1 + 4 * (nu // 3)))[1:]
        return l
    def un95(i): return parse([f"v_xor_b32 v{R95+4*i+e}, 0x80008000, v{R95+4*i+e}" for e in range(4)]) + xpose(N95[i], lambda s: r4(R95 + 4 * i), "0")
    def uload(w2, nu):
        i, k = divmod(nu, 3); l = []
        if opt.get("lin"): return parse(f"s_mul_i32 s74, s{sW}, 36864\ns_and_b32 s74, s74, 0xffff\ns_add_u32 s74, s74, {4096*nu}") + [I(f"buffer_load_dwordx4 {src(nu, h, s)}, v{vW[0]}, {srd(sW2 if w2 else sW1)}, s74 offen offset:{2048*h+1024*s}") for h in range(2) for s in range(2)]
        if w2:
            if k == 0: l = parse(f"s_mov_b32 s74, {24576*i}\ns_mov_b32 s75, {24576*i+6144}")
            return l + [I(f"buffer_load_dwordx4 {src(nu, h, s)}, v{pS}, {srd(sW2)}, s{74+s} offen offset:{3072*h+(0, 256, 128)[k] if opt.get('fl') else 1536*h+64*k}") for h in range(2) for s in range(2)]
        return l + parse(f"s_mov_b32 s74, {24576*k}\ns_mov_b32 s75, {24576*k+12288}") + \
            [I(f"buffer_load_dwordx4 {src(nu, h, s)}, v{pS+h}, {srd(sW1)}, s{74+s} offen offset:{256*i}") for h in range(2) for s in range(2)]
    def wmk(d, w2):
        m = opt.get("wmask", 0) * (1 - w2)
        return parse([f"v_add_u32 v{d+r}, {hex((1 << m - 1) * 0x10001)}, v{d+r}" for r in range(4)] + [f"v_and_b32 v{d+r}, {hex((0xffff << m & 0xffff) * 0x10001)}, v{d+r}" for r in range(4)]) if m else []
    def ufin(w2, nu):
        i, k = divmod(nu, 3); P = []
        for e in range(4):
            dst = pD + 4 * (e & 1); sr = lambda r, x: acc(nu, r >> 1) + 8 * (r & 1) + 4 * x + e
            l = []
            if w2 and e % 2 == 0: l = parse([f"v_pk_mul_f32 v[{sr(r, x)}:{sr(r, x)+1}], v[{sr(r, x)}:{sr(r, x)+1}], v[{GK+4*k+e}:{GK+4*k+e+1}]" for r in range(4) for x in range(2)])
            l += parse([f"v_cvt_pk_{'bf16' if w2 else T1}_f32 v{dst+r}, v{sr(r, 0)}, v{sr(r, 1)}" for r in range(4)]) + wmk(dst, w2)
            if w2: l.append(I(f"ds_write_b128 v{pT+(e&1)}, {r4(dst)} offset:{6144+2048*k+128*(e>>1)}"))
            else: l.append(I(f"ds_write_b128 v{pT}, {r4(dst)} offset:{(10240 if i == 1 else 12288)*(e>>1)+1024*(2*k+(e&1))}"))
            P.append(l)
        if k == 2 and i < 2:
            P[3] += parse([f"v_{'sub' if i == 0 else 'add'}_u32 v{pT+e}, v{pT+e}, v{pE}" for e in range(1 + w2)])
        return P
    x = q + 6
    rowx = f"""
v_bfe_u32 v{x}, v{ln}, 2, 1
v_bfe_u32 v{x+1}, v{ln}, 3, 2
v_lshl_add_u32 v{x+1}, v{x}, 2, v{x+1}
v_and_b32 v{x+2}, 3, v{ln}
"""
    uaddr = [rowx + f"""v_lshl_add_u32 v{pN}, v{hh}, 2, v{x+2}
s_lshl_b32 s60, s{sW}, 7
v_lshl_add_u32 v{pN}, v{pN}, 4, s60
v_mul_u32_u24 v{x+1}, 768, v{x+1}
v_add_u32 v{pS}, v{x+1}, v{pN}
v_add_u32 v{pS+1}, 6144, v{pS}
v_and_b32 v{x+1}, 0x1c, v{ln}
v_cmp_eq_u32 vcc, 0x1c, v{x+1}
s_mov_b32 s72, {95*768}
s_mul_i32 s60, s{sW}, 24576
s_add_u32 s60, s60, {WB}
v_cndmask_b32 v{pN+1}, v{t+8}, v{pN}, vcc
v_lshl_add_u32 v{pT}, v{ln}, 4, s60
s_lshl_b32 s60, s{sW}, 12
s_add_u32 s60, s60, {WB}
v_mov_b32 v{pE}, s60
""" + "\n".join(f"buffer_load_dwordx4 {r4(R95+4*i)}, v{pN}, {srd(sW1)}, s72 offen offset:{256*i}\nbuffer_load_dwordx4 {a4(RB1+4*i)}, v{pN+1}, {srd(sB1)}, 0 offen offset:{256*i}" for i in range(3)), rowx + f"""v_lshl_add_u32 v{x+1}, v{hh}, 4, v{x+1}
s_lshl_b32 s60, s{sW}, 6
s_sub_u32 s60, s60, 128
v_add_u32 v{x+1}, s60, v{x+1}
v_xor_b32 v{pN}, v{hh}, v{x+2}
v_lshlrev_b32 v{pN}, 4, v{pN}
v_mad_u32_u24 v{pS}, v{x+1}, s69, v{pN}
""" + (f"""v_bfe_u32 v{x+1}, v{ln}, 3, 2
v_lshl_add_u32 v{x+1}, v{x}, 2, v{x+1}
v_mul_u32_u24 v{x+1}, 384, v{x+1}
v_lshl_add_u32 v{x+1}, v{hh}, 6, v{x+1}
s_mul_i32 s61, s60, 192
v_add3_u32 v{pS}, v{x+1}, s61, v{pN}
""" if opt.get("fl") else "") + f"""s_lshl_b32 s60, s{sW}, 1
s_sub_u32 s60, s60, 4
v_add_u32 v{x+1}, s60, v{x}
v_lshlrev_b32 v{pE}, 11, v{x+1}
v_add_u32 v{pE}, {WB+2048}, v{pE}
v_mul_u32_u24 v{x+1}, 768, v{x+1}
v_lshl_add_u32 v{x+1}, v{x}, 2, v{x+1}
v_add_u32 v{x+1}, v{x+2}, v{x+1}
v_bfe_u32 v{x+2}, v{ln}, 3, 1
v_lshl_add_u32 v{x+1}, v{x+2}, 6, v{x+1}
v_lshrrev_b32 v{x+2}, 4, v{ln}
v_lshl_add_u32 v{x+1}, v{x+2}, 4, v{x+1}
v_lshlrev_b32 v{x+1}, 4, v{x+1}
v_add_u32 v{pT}, {WB}, v{x+1}
v_xor_b32 v{pT+1}, 64, v{pT}
""" + "\n".join(f"buffer_load_dwordx4 {r4(RG_+4*k)}, v{pN}, {srd(sGA)}, 0 offen offset:{64*k}" for k in range(3))]
    gfin = flat(xpose(GK + 4 * k, lambda s: r4(RG_ + 4 * k), "0") for k in range(3))
    bar = lambda: parse("s_waitcnt lgkmcnt(0)\ns_barrier")
    def resid_rd(qs): return [I(f"ds_read_b128 {a4(48*qq+4*f)}, v{vW[1]} offset:{12288*qq+1024*f}") for qq in qs for f in range(12)]
    xa = lambda: flat(xdma(0, 0, dfl)); xb = lambda: flat(xdma(1, 1, dfl)) + touch(dfl)
    n0, nh, xp = opt.get("n0", 3), opt.get("nh", 2), opt.get("xp", 9)
    spc_rd = [I(f"ds_read_b128 {a4(SPC+8*p+4*h)}, v{vW[0]} offset:{10240*p+4096+1024*h}") for p in range(4) for h in range(2)]
    greg = lambda g: (0, 1, 0)[g >> 2]
    def Bop(g, j, u, first=False):
        if first and opt.get("c0h") and 0 < g < 4: return "v", (((64, 68, 72), (76, 80, 84)), ((88, 92, 96), (100, 104, 108)), ((32, 36, 40), (44, 216, 220)))[g - 1][u][j]
        if first == 0 and opt.get("e4") and g in (2, 3):
            a_, y_ = ACC[0], YN[0]; return "v", (((a_, a_ + 4, a_ + 8), (a_ + 12, a_ + 32, a_ + 36)), ((y_ + 8, y_ + 12, y_ + 16), (y_ + 20, a_ + 40, a_ + 44)))[g - 2][u][j]
        if g % 2 == 0: return "a", WR + 12 * u + 4 * j
        return "v", ((Y[0], Y[0] + 4, Y[0] + 8), (Y[0] + 12, G[0], G[0] + 4))[u][j]
    opd = lambda fr, n=4: f"{fr[0]}[{fr[1]}:{fr[1]+n-1}]"
    def rdB(g, j, u, first=False):
        if g > 11: return []
        i = I(f"ds_read_b128 {opd(Bop(g, j, u, first))}, v{vPB+(4 if j else 0)+((g&3)^(3 if j == 2 else 0))} offset:{REG*greg(g)+SUB*u+(1280 if j == 2 else 0)}")
        return [tag(i, [RG(greg(g))], [RD(greg(g))])]
    UO = ((1, 0), (1, 1), (0, 1), (0, 0))
    def rdR(b): return [tag(I(f"ds_read_b128 {r4(cR[b]+8*u+4*o)}, v{vRS+o} offset:{REG*greg(4*b)+SUB*u}"), [RG(greg(4*b))], [RD(greg(4*b))]) for u, o in UO]
    plB = lambda g, first=False: [x for j in range(3) for u in range(2) for x in rdB(g, j, u, first)]
    po = opt.get("po")
    xsw = opt.get("xsw")
    S["head"] = H + ps() + wta + wsrd + wtouch + taba + (parse(f"s_cmp_eq_u32 s{sW}, 3\ns_cbranch_scc1 L_nt") + tabld[:3] + parse(f"s_cmp_lg_u32 s{sW}, 0\ns_cbranch_scc1 L_nt") + tabld[3:] + parse("L_nt:") if opt.get("tsk") else tabld) + (parse(f"s_bitcmp1_b32 s2, {xsw[0]}\ns_cbranch_scc1 L_prep2") if xsw else []) + parse(f"s_cmp_ge_u32 s{sW}, 2\ns_cbranch_scc1 L_prep1")
    pc0 = pc[0]; roles = range(4 if xsw else 2)
    for pv in roles:
        w2 = pv & 1; po = xsw[1] if pv > 1 else opt["po"]; po = po[w2] if isinstance(po, tuple) else po
        pc[0] = pc0; b1_, b2_ = (4, 6) if w2 else (3, 5)
        if 1:
            ua = uaddr[w2].strip().split("\n"); ug = [y for y in ua if y.startswith("buffer")]; ua = [y for y in ua if y not in ug]
            it = {"lane": parse(lanec), "a6": parse(last) + xdma(0, 0, dfl, [6])[0], "dm": parse([x.text for x in dmk]), "tab": parse(tables), "g": parse(ug if "g2" not in po or w2 else ug[:3]), **({"g2": parse([] if w2 else ug[3:])} if "g2" in po else {}), "t": touch(dfl), "s": None, "gp": parse([x.text for x in gfin]) if w2 else un95(0) + un95(1)}
            it.update({f"x{k}": uxpose(w2, k) for k in range(2) if f"x{k}" in po})
            it.update({f"u{k}": uload(w2, k) for k in range(9)}); it.update({f"l{k}": parse([x.text for x in luts[k]]) for k in range(4)})
            if "xt" in po: it["xt"] = parse(f"""v_mul_u32_u24 v{t+6}, 205, v{ln}
v_lshrrev_b32 v{t+6}, 10, v{t+6}
v_mad_i32_i24 v{t+7}, v{t+6}, -5, v{ln}
v_mul_u32_u24 v{t+7}, 384, v{t+7}
v_mul_u32_u24 v{t+6}, {ROW}, v{t+6}
v_cmp_gt_u32 vcc, 50, v{ln}
v_add3_u32 v{t+6}, v{t+6}, s64, v{t+7}
v_cndmask_b32 v{t+6}, v{t+8}, v{t+6}, vcc
buffer_load_dword v250, v{t+6}, {srd(sX)}, 0 offen offset:64""")
            it.update({f"a{k}": xdma(0, 0, dfl, [k])[0] for k in range(opt.get("xn", 6), 6)})
            if po.index("dm") < po.index("a6"): it["dm"] = parse(last) + it["dm"]; it["a6"] = xdma(0, 0, dfl, [6])[0]
            for n_, Gq in (("b", 1),): it.update({f"{n_}{k}": x for k, x in enumerate(xdma(Gq, Gq, dfl))})
            P = parse(f"L_prep{pv}:") + (parse(f"s_cmp_ge_u32 s{sW}, 2\ns_cbranch_scc1 L_prep3") if pv == 2 else []) + parse(ua); late = {}; cur = P
            for x in po.split():
                if x == "a": S[f"pre{pv}"] = P + xloop(pv); S[f"br{pv}"] = parse(f"s_branch L_prb{pv}") if pv != 1 else []; P = cur = parse(f"L_prb{pv}:"); continue
                if x[0] == "p": cur = late.setdefault(int(x[1:]), []); continue
                cur += ps() if x == "s" else xs(x) if x[0] == "y" else parse(f"s_waitcnt vmcnt({x[1:]})") if x[0] == "w" else it.pop(x)
            assert list(it) == ["s"], it
        if stamp == 7: pc[0] = 0
        P += xs("p1") + st(1) + ps() + flat(uxpose(w2, k) for k in range(2) if f"x{k}" not in po)
        rk_ = lambda k: [resid_rd((q_,))[f] for q_ in (0, 2, 3, 1) for f in (2 * k, 2 * k + 1, 6 + 2 * k, 7 + 2 * k)]
        r01 = spc_rd + rk_(0) + rk_(1); RR = {b1_: r01[:20], b1_ + 1: r01[20:], b2_: rk_(2)}; b3 = opt.get("b3")
        if not b3: r01 += rk_(2); RR = {b1_: r01[:28], b1_ + 1: r01[28:]}
        c0r = plB(0, 1) + plB(3, 1)[:5] + rdR(0) + plB(1, 1) + plB(2, 1) + plB(3, 1)[5:]; c0r = c0r if opt.get("c0h") else []; RR[7] = c0r[:opt.get("c0n", 20)]; RR[8] = c0r[len(RR[7]):]
        for nu in range(9):
            nx = uxpose(w2, nu + 2) if nu < 7 else []
            if nu == 2 and not w2: x_ = un95(2); P += x_[:4]; nx += x_[4:]
            f = ufin(w2, nu); l = list(late.get(nu, [])); r = RR.get(nu, []); ne = 2 if nu == 8 else 4
            for e in range(4):
                k_ = [i.kind for i in f[e]].index("dsw")
                P += f[e][:k_] + nx[e:e+1]
                if e == 3 and nu < 6: P += [use(*[src(nu + 3, h, s_) for h in range(2) for s_ in range(2)])]
                if e == 0 and nu in (b1_, b2_, 8 if b3 else -1): P += ps() + bar() + xs({b1_: "p3", b2_: "p4", 8: "p5"}[nu]) + ps()
                P += f[e][k_:k_+1] + r[len(r)*e//ne:len(r)*(e+1)//ne] + l[len(l)*e//4:len(l)*(e+1)//4] + f[e][k_+1:]
            P += nx[4:] + ps()
        if opt.get("now"):
            P = [i for i in P if not (i.kind == "vml" and ("s", sW1) in i.rd | {("s", x - 4) for y, x in i.rd if y == "s" and x == sW2})]
            k_ = [n_ for n_, i in enumerate(P) if i.kind == "mfma"][0]; P = P[:k_] + [i for i in P[k_:] if i.kind in ("vmd", "sml", "wait") or ("s", "m0") in i.wr or (i.kind == "vml")] + bar()
        S[f"prep{pv}"] = P + xs("p2") + (parse("s_branch L_conv0") if pv != 0 else [])
    def res(p, f): return a4(48 * POS[p][1] + 4 * f)
    sfl = opt.get("sfl", "")
    g1 = lambda f, u, o, a: mm16(T1, Y[u] + 8 * o + 4 * (f & 1), a, r4(YN[u] + 8 * (f >> 1) + 4 * o), "0" if f < 2 else None)
    Areg = lambda u, o, rb: ACC[u] + 16 * (rb >> 1) + 8 * o + 4 * (rb & 1)
    g2 = lambda f, u, o, a: mm16("bf16", Areg(u, o, f - 6), a, r4(G[u] + 4 * o))
    gm = lambda f, u, o, a: (g1 if f < 6 else g2)(f, u, o, a)
    def epi_mm(u, o): return [g2(f, u, o, res(11, f)) for f in range(6, 12)]
    def epi(u, o, b, fl):
        d = Areg(u, o, 2 * b)
        return parse([f"v_cvt_pk_bf16_f32 v{d+e}, v{d+2*e}, v{d+2*e+1}" for e in range(4)] +
                     [f"buffer_store_dwordx4 {r4(d)}, v{vO}, {srd(sO)}, s{sOF[2*u+o]} offen offset:{64*b} {fl}".rstrip()])
    rdAD = lambda g: [I(f"ds_read_b128 {r4(cAD+4*(g&1))}, v{vA} offset:{256*g}")] if g < 12 else []
    rdAS = lambda g: [I(f"ds_read_b128 {r4(cAS+4*(g&1))}, v{vA} offset:{256*g+16}")] if g < 12 else []
    def mmR(b):
        return [I(f"v_mfma_f32_16x16x16_bf16 {r4(Areg(u, o, 2*b+s))}, v[{vID}:{vID+1}], v[{cR[b]+8*u+4*o+2*s}:{cR[b]+8*u+4*o+2*s+1}], {r4(Areg(0, 0, 2*b+s))}") for u, o in UO for s in range(2)]
    cinit = lambda b: [I(f"ds_read_b128 {r4(Areg(0, 0, 2*b+s))}, v{vCT} offset:{128*b+16*s}") for s in range(2)]
    def cmm(g, j, u, first):
        cc = r4(Creg(u, g))
        if j == 0: return I(f"v_mfma_f32_16x16x32_bf16 {cc}, {r4(cAD+4*(g&1))}, {opd(Bop(g, 0, u, first))}, 0")
        return I(f"v_smfmac_f32_16x16x64_bf16 {cc}, {r4(cAS+4*(g&1))}, {opd(Bop(g, 1, u, first), 8)}, v{vIDX}")
    def cvt16(u, g):
        cc = Creg(u, g); d = Creg(u, g & ~1) + 2 * (g & 1)
        return parse([f"v_cvt_pkrtz_f16_f32 v{d+e}, v{cc+2*e}, v{cc+2*e+1}" for e in range(2)])
    def dots(u, g):
        d = Creg(u, g & ~1) + 2 * (g & 1); vQ = vSQ[u] + 1
        c = lambda r, e: 0 if g == 0 and e == 0 else f"v{r}"
        return parse([x for e in range(2) for x in [f"v_dot2_f32_f16 v{vQ}, v{d+e}, v{d+e}, {c(vQ, e)}"] + ([] if sm else [f"v_dot2_f32_f16 v{vQ-1}, v{d+e}, s{sONE}, {c(vQ-1, e)}"])])
    summ = lambda kk: [mm16("f16", vSM[u], a4(ONES), r4(YN[u] + 4 * kk), "0" if kk == 0 else None) for u in range(2 * sm)]
    swaps = lambda u, ks: parse([f"v_permlane16_swap_b32 v{YN[u]+8*ks+e}, v{YN[u]+8*ks+4+e}" for e in range(4)])
    DOT = ("x", "dot")
    def dbatch(gs):
        l = flat(il(dots(0, g), dots(1, g)) for g in gs)
        if l: tag(l[0], [DOT]); tag(l[-1], (), [DOT])
        return l
    def fence(l):
        for i in l:
            if i.kind == "mfma" or i.op.startswith("v_dot"):
                if i.kind == "mfma": tag(i, [DOT])
        return l
    spc = lambda p, f: p < 4 and f in (6, 7)
    uses = [(0, f) for f in range(6)]
    for p in range(8): uses += ([(p + 1, f) for f in range(6)] if p < 7 else []) + [(p, f) for f in range(6, 12)]
    uses = [x for x in uses if not spc(*x)]
    def wread(k):
        if k >= len(uses): return []
        p, f = uses[k]
        return [I(f"ds_read_b128 {a4(WR+4*(k%6))}, v{vW[p//4]} offset:{10240*p+1024*(f - 2 * (f > 5)) if p < 4 else 12288*(p-4)+1024*f}")]
    def frag(p, f):
        if p >= 8: return res(p, f), []
        if spc(p, f): return a4(SPC + 8 * p + 4 * (f - 6)), []
        k = uses.index((p, f)); return a4(WR + 4 * (k % 6)), wread(k + 6)
    db = opt.get("db", (3, 6, 9))
    def place(X, pos, items):
        for q_, x in zip(pos, items): X.setdefault(q_, []).extend(x if isinstance(x, list) else [x])
    dp = opt.get("dp", (0, 1, 2, 3, 4, 5, 6) if opt.get("e4") else (7, 8, 9, 10, 11, 12, 13))
    bst = opt.get("bst", (15, 16, 28, 32, 36, 40))
    sadd = lambda: parse(f"v_add_u32 v{vO}, s{sVO}, v{vO}\ns_mov_b32 s{sVO}, {DR}")
    def conv(first, fl=""):
        B = []; X = {}; V = {}
        nb = lambda g: (4 if g == 0 else 99 if g < 4 else g + 2) if first and opt.get("c0h") else (g + 4 if g < 2 else 99 if g < 4 else g + 2) if opt.get("e4") and not first else g + 2
        if first and not opt.get("c0h"):
            B += rdAD(0) + plB(0)[:2] + rdAS(0) + plB(0)[2:] + rdAD(1) + rdAS(1) + plB(1)
            place(X, opt.get("r00", (1, 3, 5, 7)), rdR(0)); place(X, opt.get("ci00", (12, 13)), cinit(0)); place(X, opt.get("dp0", (7, 8, 9, 10, 11, 12, 13)), xdma(2, 0, dfl))
        elif first: B += rdAD(0) + rdAS(0) + rdAD(1) + rdAS(1) + plB(5); place(X, opt.get("ci00", (15, 15)), cinit(0)); place(X, opt.get("dp0", (0, 1, 2, 3, 4, 5, 6)), xdma(2, 0, dfl))
        else:
            e = [epi(1, o, b, fl) for b in range(3) for o in range(2)]
            place(X, opt.get("emp", (7, 7, 8, 9, 10, 11)), epi_mm(1, 1))
            place(X, opt.get("ci0", (12, 13)), cinit(0))
            place(V, opt.get("epv", (2, 3, 5, 6, 7, 8)), [x[:4] for x in e])
            place(X, bst, [x[4] for x in e])
            if max(bst) < 48: place(X, [45], [sadd()])
            place(X, dp, xdma(2, 0, opt.get("dfl2", "")))
        z = "0" if first else ""
        place(X, opt.get("rp" + z, (17, 18, 19, 20, 21, 22, 23, 24)), mmR(0))
        place(X, opt.get("r1p" + z, (16, 18, 20, 22)), rdR(1))
        place(X, opt.get("cip" + z, (38, 39, 41, 42)), cinit(1) + cinit(2))
        place(X, opt.get("w0p" + z, (44, 44, 45, 45, 46, 47)), [wread(k) for k in range(4 if first else 6)])
        dbs = set(opt.get("db0", db)) | {max(db)} if first else db
        if opt.get("cst") and stamp == 1: place(X, opt["cst"], [[lq(2 + k)] for k in range(12)])
        dn = sn = 0
        for g in range(12):
            x = lambda k: X.get(4 * g + k, [])
            if g: B += il(cvt16(0, g - 1), cvt16(1, g - 1))
            B += V.get(g, [])
            B += [cmm(g, 0, 0, first)] + rdB(nb(g), 0, 0, first) + x(0) + [cmm(g, 0, 1, first)] + rdB(nb(g), 0, 1, first) + rdAD(g + 2) + x(1)
            B += [cmm(g, 1, 0, first)] + rdB(nb(g), 1, 0, first) + rdB(nb(g), 2, 0, first) + x(2) + [cmm(g, 1, 1, first)] + rdB(nb(g), 1, 1, first) + rdB(nb(g), 2, 1, first) + rdAS(g + 2) + x(3)
            if g % 2 == 0 and g: B += summ(g // 2 - 1)
            if g in dbs and g <= max(db): B += dbatch(range(dn, g)); dn = g
            while sw1 and 4 * sn + 4 <= min(dn, g & ~1): B += il(swaps(0, sn), swaps(1, sn)); sn += 1
        for i in B:
            if i.kind == "mfma": i.cap = opt.get("ccap" + z, 6)
        return fence(B)
    def lnfin(u):
        vS, vQ = vSQ[u], vSQ[u] + 1
        return parse((f"""
v_mov_b32 v{vS}, v{vQ}
v_permlane32_swap_b32 v{vS}, v{vQ}
v_add_f32 v{vQ}, v{vS}, v{vQ}
v_mul_f32 v{vS}, {hex(f2u(1/96))}, v{vSM[u]}""" if sm else f"""
v_permlane32_swap_b32 v{vS}, v{vQ}
v_add_f32 v{vS}, v{vS}, v{vQ}
v_mov_b32 v{vQ}, v{vS}
v_permlane32_swap_b32 v{vS}, v{vQ}
v_mul_f32 v{vS}, {hex(f2u(1/96))}, v{vS}""") + f"""
v_mul_f32 v{vQ}, {hex(f2u(1/96))}, v{vQ}
v_fma_f32 v{vQ}, -v{vS}, v{vS}, v{vQ}
v_max_f32 v{vQ}, 0, v{vQ}
v_add_f32 v{vQ}, {hex(f2u(1e-5))}, v{vQ}
v_rsq_f32 v{vQ}, v{vQ}
v_fma_mixlo_f16 v{vQ}, v{vQ}, s{sK}, 0
v_fma_mixhi_f16 v{vQ}, -v{vS}, v{vQ}, 0 op_sel_hi:[0,1,0]""" + (f"\nv_mov_b32 v{vS}, v{vQ}\nv_permlane16_swap_b32 v{vQ}, v{vS}" if sw1 else ""))
    nxt = parse(f"s_cmp_eq_u32 s{sT}, 3\ns_cselect_b32 s{sINC}, 0x40000000, {DR}" + (f"\ns_cselect_b32 s{sIMG}, 0x30000, s{sIMG}" if opt.get("lo3") else "")) + parse([f"v_add_u32 v{r}, s{sINC}, v{r}" for r in list(range(vDM, vDM + 7)) + [vTC]])
    def norm(u, kk):
        p = vSQ[u] + (1 - (kk & 1) if sw1 else 1); r = YN[u] + 4 * kk; c5 = kk >= (4 if sw1 else 5)
        l = [f"v_pk_fma_f16 v{r+e}, v{r+e}, v{p}, v{p} op_sel:[0,0,1] op_sel_hi:[1,0,1]" for e in ((3, 0, 1, 2) if c5 else range(4))]
        if T1 == "bf16":
            es = (3, 0, 1, 2) if c5 else range(4); t_ = vSM[u]
            l = [f"v_fma_mix_f32 v{t_+e}, v{r+e}, v{p}, v{p} op_sel:[0,0,1] op_sel_hi:[1,1,1]" for e in es] + [f"v_fma_mix_f32 v{r+e}, v{r+e}, v{p}, v{p} op_sel:[1,0,1] op_sel_hi:[1,1,1]" for e in es]
            l += [f"v_cvt_pk_bf16_f32 v{r+e}, v{t_+e}, v{r+e}" for e in es]
        if c5: l = l[:-1] + [f"v_bfi_b32 v{r+3}, v{vMK}, v{r+3}, s{sKB}"] + l[-1:]
        return parse(l) + (swaps(u, kk >> 1) if kk & 1 and not sw1 else [])
    la, lk, ln_, mr = opt.get("lnv", (0, 6, 0, 0)); k0 = min(max(db), 10) // 4
    B = il(cvt16(0, 11), cvt16(1, 11)) + summ(5) + ([] if ln_ else nxt) + dbatch(range(max(db), 12)); m = mmR(1); r = rdR(2)
    mm_ = [m[0]] + r[:2] + [m[1]] + r[2:] + m[2:]
    sB = flat(swaps(1, ks) for ks in range(k0, 3))
    if la == 2: B += il(lnfin(0), flat(swaps(0, ks) for ks in range(k0, 3))) + (mm_ if not mr else [])
    elif la: B += il(lnfin(0), flat(swaps(u, ks) for u in range(2) for ks in range(k0, 3)) if sw1 else []) + (mm_ if not mr else [])
    else: B += (flat(il(swaps(0, ks), swaps(1, ks)) for ks in range(k0, 3)) if sw1 else []) + il(lnfin(0), lnfin(1)) + (mm_ if not mr else [])
    if opt.get("om") and sw1:
        for o in range(2):
            for ks in range(3): B += norm(0, 2 * ks + o) + [g1(f, 0, o, frag(0, f)[0]) for f in (2 * ks, 2 * ks + 1)]
    else:
        for ks in range(3): B += norm(0, 2 * ks) + norm(0, 2 * ks + 1) + [g1(f, 0, o, frag(0, f)[0]) for f in (2 * ks, 2 * ks + 1) for o in range(2)]
    if mr: B += mm_
    rest = (lnfin(1) if la == 1 else il(lnfin(1), sB) if la == 2 else []) + flat(norm(1, kk) for kk in range(6))
    nr = len(rest) - len(flat(norm(1, kk) for kk in range(lk, 6))) if lk >= 0 else max(0, 8 * (lk + 4))
    B += rest[:nr]; late0 = rest[nr:] + (nxt if ln_ else [])
    LN = fence(B)
    def sd(op, d, s): return f"{op}_sdwa v{d}, v{s} dst_sel:WORD_1 dst_unused:UNUSED_PRESERVE src0_sel:WORD_1"
    pool = list(range(U, U + 24)) + opt.get("pool", []); pk = [0]
    def take():
        pk[0] += 1; return pool[(pk[0] - 1) % len(pool)]
    def gelu(u, L):
        X = [i for i in range(8) if i not in L]
        V = gelu_(u, L, X)
        if not opt.get("pool"): return V
        m = {}
        for i in L + X:
            m[T + i] = take(); m[E + i] = take(); m[U + i] = m[T + i] if i in L else take()
        import re
        return [parse([re.sub(r"\bv(\d+)\b", lambda z: f"v{m.get(int(z.group(1)), int(z.group(1)))}", i.text) for i in l]) for l in V]
    def gelu_(u, L, X):
        cvt = [f"v_cvt_pkrtz_f16_f32 v{U+i}, v{Y[u]+2*i}, v{Y[u]+2*i+1}" for i in L + X]
        sh = [f"v_pk_lshrrev_b16 v{T+i}, 3, v{U+i} op_sel_hi:[0,1]" for i in L]
        ma = [x for i in L for x in (f"v_mad_u32_u16 v{E+i}, v{T+i}, 2, s{sLUT}", f"v_mad_u32_u16 v{T+i}, v{T+i}, 2, s{sLUT} op_sel:[1,0,0,0]")]
        ga = [x for i in L for x in (f"ds_read_u16 v{E+i}, v{E+i}", f"ds_read_u16_d16_hi v{T+i}, v{T+i}")]
        fma = [f"v_pk_fma_f16 v{T+i}, v{U+i}, v{U+i}, s{sC}" for i in X]
        mul = [f"v_pk_mul_f16 v{T+i}, v{T+i}, v{U+i} neg_lo:[1,0] neg_hi:[1,0]" for i in X]
        el = [f"v_exp_f16 v{E+i}, v{T+i}" for i in X]; eh = [sd("v_exp_f16", E + i, T + i) for i in X]
        ad = [f"v_pk_fma_f16 v{E+i}, v{E+i}, s{sKK}, s{sKK}" for i in X]
        rl = [f"v_rcp_f16 v{T+i}, v{E+i}" for i in X]; rh = [sd("v_rcp_f16", T + i, E + i) for i in X]
        fin = [f"v_or_b32 v{G[u]+i}, v{E+i}, v{T+i}" if i in L else f"v_pk_mul_f16 v{G[u]+i}, v{T+i}, v{U+i}" for i in L + X]
        if 1:
            rh += [f"v_fma_mix_f32 v{E+i}, v{T+i}, v{U+i}, 0 op_sel_hi:[1,1,0]" for i in X] + [f"v_fma_mix_f32 v{T+i}, v{T+i}, v{U+i}, 0 op_sel:[1,1,0] op_sel_hi:[1,1,0]" for i in X]
            fin = fin[:len(L)] + [f"v_cvt_pk_bf16_f32 v{G[u]+i}, v{E+i}, v{T+i}" for i in X]
        v1 = cvt + sh + ma
        if opt.get("vch"):
            c_ = opt["vch"]; v1 = [x for k in range(0, 8, c_) for x in cvt[k:k+c_] + sh[k:k+c_] + ma[2*k:2*k+2*c_]]
            if u == 1 or opt.get("vc1"): v1 = cvt[:c_] + sh[:c_] + cvt[c_:] + [x for x in v1 if x not in cvt and x not in sh[:c_]]
        return parse(v1), parse(ga), parse(fma + mul + el + eh + ad + rl + rh), parse(fin)
    pf = xdma(1, 1, opt.get("xfl", "")) + xdma(0, 0, opt.get("xfl", "")) + [touch(opt.get("xfl", ""))]
    pp = opt.get("pfpos", [(j, 12 if j else 6) for j in range(15)])
    slots = [(p, u) for p in range(8) for u in range(2)] + [(p, u) for u in range(2) for p in range(8, 12)]
    ea = [epi(0, o, b, sfl) for b in range(3) for o in range(2)]
    XS = {}; XV = {}
    place(XS, pp, pf)
    place(XS, opt.get("ast", ((21, 6), (21, 16), (22, 2), (22, 12), (22, 22), (23, 8))), [x[4] for x in ea])
    place(XV, opt.get("asv", (21, 21, 22, 22, 22, 23)), [x[:4] for x in ea])
    place(XS, opt.get("epos", [(19, 2 + 4 * k) for k in range(6)] + [(21, 2 + 4 * k) for k in range(6)] + [(23, k) for k in (0, 2, 4, 6, 9, 10, 11, 12)]), plB(0) + plB(1) + rdAD(0) + rdAS(0) + rdAD(1) + rdAS(1) + rdR(0))
    if opt.get("e4"): place(XS, opt.get("ep4", [(23, 9 + k) for k in range(6)] + [(22, 2), (22, 6), (22, 10), (23, 15), (22, 14), (23, 16)]), plB(2) + plB(3))
    place(XS, [(23, 18 + k) for k in dp if k < 0], xdma(2, 0, opt.get("dfl2", "")))
    for c_ in ([opt["cpp"]] if opt.get("cpp") else []) + opt.get("cpq", []): x_ = cpl(); place(XV, [c_[0]], [x_[:2]]); place(XS, [c_], x_[2:])
    place(XS, [(23, 17)], [parse(f"s_add_u32 s{sT}, s{sT}, 1\ns_cmp_eq_u32 s{sT}, 4")])
    nl = opt.get("nl", [4] * 24)
    def slot(j):
        p, u = slots[j]; M = []
        if j == 0:
            for f in range(6): a, post = frag(0, f); M += [[g1(f, 1, 0, a)], [g1(f, 1, 1, a)] + post]
            M += [[x] for x in mmR(2)]
        elif j < 15:
            pp_, fs = (p + 1, range(6)) if u else (p - 1, range(6, 12)); k_ = opt.get("lead", 1)
            a_ = [[[gm(f, 0, o, frag(pp_, f)[0])] for o in range(2)] for f in fs]; b_ = [[[gm(f, 1, 0, frag(pp_, f)[0])], [gm(f, 1, 1, frag(pp_, f)[0])] + frag(pp_, f)[1]] for f in fs]
            M = flat(a_[:k_] + [x for z in range(6) for x in (b_[z:z+1] + a_[z+k_:z+k_+1])])
        else:
            p2, u2 = slots[j - 1]
            M = [[g2(f, u2, o, frag(p2, f)[0])] for o in range(2) for f in range(6, 12)]
            if j < 23:
                p1, u1 = slots[j + 1]; m1 = [[g1(f, u1, o, res(p1, f))] for o in range(2) for f in range(6)]; k_, e_ = opt.get("mord", (2, 2))
                M = M[:k_] + il(m1, M[k_:12-e_]) + M[12-e_:]
        n_ = nl[j]; L = list(range(n_)) if j == 23 or opt.get("lo", 1) else list(range(8 - n_, 8))
        V1, ga, V2, fin = gelu(u, L)
        for x in ga: x.free = 1
        M[0] += ga
        if j == 23:
            em = epi_mm(1, 0); M += [fin[:4] + [em[0]]] + [[x] for x in em[1:]]; fin = fin[4:]
            assert n_ >= 4
        B = (V1[:opt.get("v1k", 99)] + late0 + V1[opt.get("v1k", 99):] if j == 0 else V1) + XV.get(j, [])
        if j % 2 == 0 and not opt.get('cst'): M[0].insert(1, lq(2 + j // 2))
        for k, e in enumerate(M): B += [x for x in e if x] + XS.get((j, k), [])
        return B + V2 + fin
    sp = opt.get("sp", {})
    rdreg = [{i.text for b in range(3) for i in rdR(b) + flat(plB(4 * b + g) for g in range(4)) if RG(k) in i.rd} for k in range(2)]
    mid = LN + flat(slot(j) for j in range(24))
    if opt.get("sig"):
        sig = {}; cv = conv(False, sfl); lw = {}; cnt = {}
        for i in conv(True) + wread(4) + wread(5) + mid + cv + mid + cv + mid:
            cnt[i.text] = cnt.get(i.text, 0) + 1; key = (i.text, cnt[i.text])
            sig[key] = {(r, lw.get(r)) for r in i.rd if r not in (DOT, RD(0), RD(1))}
            if i.kind == "vmd": sig[key].add(sum(v for k_, v in cnt.items() if k_ in rdreg[RG(0) not in i.wr]))
            for r in i.wr: lw[r] = key
        sig["period"] = sorted(i.text for i in cv + mid); sig["first"] = sorted(i.text for i in conv(True) if not i.op.startswith(("v_dot", "v_perm")))
        return sig
    def run(l, t):
        o, tm, t = sched.schedule(l, t, **sp); return o, tm, t
    sp0 = dict(sp, **opt.get('sp0', {}))
    c0, tc0, _ = sched.schedule(conv(True), None, **sp0)
    cv = conv(False, sfl); t_ = None
    for it in range(2):
        t0 = t_.tv if t_ else 0
        oc, tc, t_ = run(cv, t_); t1 = t_.tv
        om, tm, t_ = run(mid, t_); t2 = t_.tv
    model = dict(conv=t1 - t0, mid=t2 - t1, tile=t2 - t0)
    if opt.get("dump"):
        for x, y in list(zip(tc, oc)) + list(zip(tm, om)): print(f"{x-t0:6d} {y.text}")
    if stamp == 1:
        tt = [0, t1 - t0] + [x - t0 for x, y in zip(tm, om) if y.text.startswith("s_memtime")] + [t2 - t0]
        print("model", [b - a for a, b in zip(tt, tt[1:])])
    abl = opt.get("abl", ())
    def cls(i):
        x = i.text
        if i.kind == "dsr": return "gat" if "u16" in x else "wrd" if f"v{vW[0]} " in x or f"v{vW[1]} " in x else "crd"
        if i.kind == "mfma": return "res" if "16x16x16" in x else "g1" if any(("v", Y[0] + k) in i.wr for k in range(32)) else "g2" if ", a[" in x.split("], ")[0] + "], "[:0] + x[x.index("], "):x.index("], ")+5] else "cmm"
        if i.kind == "valu": return "tr" if i.trans else "adr" if "mad_u32_u16" in x or "lshrrev_b16" in x else "dot" if "dot2" in x else "pk" if "v_pk_" in x else "cvt" if "cvt" in x else "val"
        return i.kind
    def ablate(o, tm):
        z = [(i, t) for i, t in zip(o, tm) if cls(i) not in abl]
        if opt.get("pad"):
            z = [y for k, (i, t) in enumerate(z) for y in ([(i, t), (I(f"s_nop {opt['pad'][1]}"), t)] if i.kind == "valu" and k % opt["pad"][0] == 0 else [(i, t)])]
        return [a for a, b in z], [b for a, b in z]
    oc, tc = ablate(oc, tc); om, tm = ablate(om, tm)
    carry = lambda l: {r for i in l if i.kind in ("dsr", "vmd") for r in i.wr}
    def cbar(l):
        bp = opt["bp"]; o = []; n_ = 0
        def blk(w):
            wt = I("s_barrier", ws=0); wt.text = "s_waitcnt lgkmcnt(0)"
            return parse(f"s_cmp_lg_u32 s{sW}, {w}\ns_cbranch_scc1 L_cb{w}") + [wt, I("s_barrier", ws=0)] + parse(f"L_cb{w}:")
        for i in l:
            if i.kind == "mfma":
                for w in range(4):
                    if bp[w] == n_: o += blk(w)
                n_ += 1
            o.append(i)
        return o
    fl7 = lambda: parse("s_waitcnt lgkmcnt(0)\nv_mov_b32 v255, 0") + flat(parse(f"s_sub_u32 s{r}, s{r}, s97\nv_writelane_b32 v255, s{r}, {k}") for k, r in enumerate((list(range(4, 20, 2)) + list(range(28, 44, 2)) + [88, 90, 92])[:pc[0]])) if stamp == 7 else []
    h0 = sched.hoist(c0, tc0, sp0, carry(c0r))
    if uni:
        rd0 = plB(0) + plB(1) + plB(2) + plB(3) + rdR(0) + rdAD(0) + rdAS(0) + rdAD(1) + rdAS(1); assert opt.get("e4") and max(dp) < 0
        d2 = xdma(2, 0, dfl); d2 = flat(d[:1] + rd0[28+k:29+k] + d[1:] for k, d in enumerate(d2)); wv = parse("s_waitcnt vmcnt(0)"); w7 = parse("s_waitcnt vmcnt(7)")
        pre0 = [rd0[:28] + wv + bar() + d2, bar() + rd0[:28] + wv + d2, rd0[:28] + wv + d2 + bar(), rd0[:14] + bar() + rd0[14:28] + wv + d2,
                bar() + rd0[:28] + d2 + w7, rd0[:14] + bar() + rd0[14:28] + d2 + w7, rd0[:22] + bar() + rd0[22:28] + d2 + w7][opt.get("pv", 4)]
        S["conv0"] = parse("L_conv0:") + ps() + (cpa if opt.get("cpp") else []) + pre0 + st(2) + xs("m0") + ps() + fl7() + (parse("v_accvgpr_write_b32 a224, v255") if stamp in (1, 3, 7) else []) + parse("s_branch L_conv")
    else: S["conv0"] = parse("L_conv0:") + ps() + (parse("v_accvgpr_write_b32 a224, v255") if stamp == 3 else []) + cpa + [x for x in [lq(0)] if x] + ls(0, 5) + (cbar(h0) if opt.get("bp") else h0) + (parse("v_accvgpr_read_b32 v255, a224") if stamp == 3 else []) + ps() + ([] if opt.get("bp") else bar()) + wread(4) + wread(5) + (parse(f"s_mul_i32 s60, s{sW}, {opt['skew']}\nL_sk:\ns_sub_u32 s60, s60, 1\ns_cbranch_scc0 L_sk") if opt.get("skew") else []) + st(2) + xs("m0") + ps() + (parse("v_accvgpr_write_b32 a224, v255") if stamp in (1, 3) else []) + parse("s_branch L_mid")
    xc_ = flat(parse(f"s_cmp_lg_u32 s{sT}, {tt}\ns_cbranch_scc1 L_xc{tt}") + xs(f"c{tt}") + parse(f"L_xc{tt}:") for tt in range(4) if xs(f"c{tt}"))
    S["conv"] = parse("L_conv:") + xc_ + [x for x in [lq(0)] if x] + ls(0, 5) + sched.hoist(oc, tc, sp, carry(mid))
    xt_ = flat(parse(f"s_cmp_lg_u32 s{sT}, {tt}\ns_cbranch_scc1 L_xs{tt}") + xs(f"t{tt}") + parse(f"L_xs{tt}:") for tt in range(4) if xs(f"t{tt}"))
    S["mid"] = parse("L_mid:") + xt_ + [x for x in [lq(1)] if x] + ls(15, 5) + sched.hoist(om, tm, sp, carry(cv)) + lqf() + (parse(f"s_cmp_eq_u32 s{sT}, 4") if stamp in (1, 5) else []) + parse("s_cbranch_scc0 L_conv" + ("" if uni else "\ns_branch L_final"))
    fl = opt.get("sflf", sfl); e = [epi(1, o, b, fl) for o in range(2) for b in range(3)]; m = epi_mm(1, 1)
    F = parse("L_final:") + sched.schedule(flat(x[:4] for x in e[:3]) + flat([m[2*b], e[b][4], m[2*b+1]] for b in range(3)) + flat(e[3:]), None, **sp)[0]
    if opt.get("ro"):
        wg, wv, sa, sb = opt["ro"]
        F += parse("s_waitcnt vmcnt(0)") + st(7) + parse((f"s_bitcmp{1-wg[1]}_b32 s2, {wg[0]}" if isinstance(wg, tuple) else f"s_cmp_lg_u32 s2, {wg if wg >= 0 else 's2'}") + f"""
s_cbranch_scc1 L_end
s_cmp_lg_u32 s{sW}, {wv if wv >= 0 else 's'+str(sW)}
s_cbranch_scc1 L_end
s_sub_u32 s60, s{sa}, s{sb}
s_mul_i32 s60, s60, {10 if opt.get('exrt') else 1}
s_min_u32 s60, s60, 150000
s_add_u32 s60, s60, 10000
L_spin:
s_memrealtime s[62:63]
s_waitcnt lgkmcnt(0)
s_sub_u32 s61, s62, s96
s_cmp_lt_u32 s61, s60
s_cbranch_scc1 L_spin""")
    elif stamp == 6:
        pts = [97 if opt.get("cyc") else 96] + list(AR) + [100 if opt.get("cyc") else 101]
        F += parse("s_waitcnt vmcnt(0)") + st(7) + parse(f"s_load_dwordx2 s[4:5], s[0:1], 64\ns_waitcnt lgkmcnt(0)\n{mksrd(sDW, 4, 256)}\nv_mov_b32 v17, 0\ns_mov_b64 exec, 1")
        for k, (a, b) in enumerate(zip(pts, pts[1:])):
            F += parse(f"s_sub_u32 s61, s{b}, s{a}\nv_mov_b32 v16, s61\nbuffer_atomic_add v16, v17, {srd(sDW)}, 0 offen offset:{4*k}\nbuffer_atomic_umax v16, v17, {srd(sDW)}, 0 offen offset:{32+4*k}")
    elif stamp:
        F += parse("s_waitcnt vmcnt(0)") + st(7) + parse(f"""
s_load_dwordx4 s[4:7], s[0:1], 64
s_waitcnt lgkmcnt(0)
{mksrd(sDW, 4, 65536)}
{mksrd(sB1, 6, 1 << 20)}
s_lshl_b32 s60, s2, 3
s_add_u32 s60, s60, s{sW}
s_lshl_b32 s61, s60, 8
s_lshl_b32 s60, s60, 5
v_mov_b32 v17, s60
v_lshrrev_b32 v18, 2, v{vW[0]}
v_accvgpr_read_b32 v255, a224
buffer_store_dword v255, v18, {srd(sB1)}, s61 offen
""" + "\n".join((f"s_sub_u32 s61, s{96+k}, s97" if k in (2, 3, 4) else f"s_mov_b32 s61, s{96+k}") + f"\nv_mov_b32 v16, s61\nbuffer_store_dword v16, v17, {srd(sDW)}, 0 offen offset:{4*k}" for k in range(6))
 + "\n" + "\n".join(f"s_sub_u32 s61, s{88+2*k}, s{96 if opt.get('exrt') else 97}\nv_mov_b32 v16, s61\nbuffer_store_dword v16, v17, {srd(sDW)}, 0 offen offset:{24+4*k}" for k in range(2)))
    S["final"] = F + parse("L_end:\ns_endpgm")
    S["head"] = (parse("s_memrealtime s[76:77]\ns_memtime s[78:79]") if opt.get("rt0") else []) + S["head"]
    out, stats_ = resolve(S, [["head", f"pre{pr}"] + [f"xl{pr}"] * opt.get("xn", 6) + [f"br{pr}", f"prep{pr}", "conv0"] + ["conv"] * bool(uni) + ["mid", "conv", "mid", "conv", "mid", "final"] for pr in roles])
    if opt.get("trace0"): print(sched.simulate(out[opt["trace0"]], sp, reps=1, trace=True))
    stats_["sim0"] = dict(n=sched.simulate(out["conv0"], sp, reps=1)[0], waits=0, nops=0, port=0, mem=0)
    tt, st_, mk = sched.simulate(out["conv"] + out["mid"], sp, trace=opt.get("trace"))
    stats_["model"] = dict(n=model["conv"], waits=model["mid"], nops=model["tile"], port=tt, mem=st_)
    if mk: print("sim  ", [b - a for a, b in zip(mk, mk[1:])])
    return out, stats_

HDR = open("standalone__modern_conv_block_convnext__vision.s.ref").read().split("; Override launch")[0]
BLOCK, NVGPR = 256, 512
def emit(opt, name=KNAME, full=True):
    out, stats_ = gen(opt)
    lines = [l for n in ["head"] + [x + k for k in "0231" for x in ("pre", "xl", "br")] + ["prep" + k for k in "1230"] + (["conv0", "conv", "mid", "final"] if opt.get("uni") else ["conv0", "final", "conv", "mid"]) for l in out.get(n, [])]
    if opt.get("align"):
        import align
        lines, a = align.align_runs(lines, opt["align"]); stats_["align"] = dict(n=a, waits=0, nops=0, port=0, mem=0)
    lines.insert(-1, "L_last:")
    if opt.get("pga") is not None:
        import align
        k = lines.index("L_conv:"); n = sum(align.sizes(lines[k:])) + opt["pga"]
        lines[k:k] = [".p2alignl 12, 0xbf800000", f".fill {(-n % 4096) // 4}, 4, 0xbf800000"]
    body = "\n".join(lines)
    if name != KNAME: body = body.replace("L_", f"L_{name}_")
    s = ""
    if full:
        s += HDR + f"; Generated by tools/gen4.py (hand-designed schedule, see that file)\n; @launch grid=(256,1,1) block=({BLOCK},1,1) lds={LDS}\n"
        s += '.amdgcn_target "amdgcn-amd-amdhsa--gfx950"\n'
    s += f""".text
.globl {name}
{".p2align 12" + chr(10) + ".fill %d, 4, 0xbf800000" % (opt["org"] // 4) + chr(10) if opt.get("org") is not None else ""}.p2align 8
.type {name},@function
{name}:
{body}
.section .rodata,"a"
.p2align 6
.amdhsa_kernel {name}
  .amdhsa_next_free_vgpr {NVGPR}
  .amdhsa_next_free_sgpr 102
  .amdhsa_accum_offset 256
  .amdhsa_group_segment_fixed_size 0
  .amdhsa_kernarg_size 80
  .amdhsa_user_sgpr_count 2
  .amdhsa_user_sgpr_kernarg_segment_ptr 1
  .amdhsa_system_sgpr_workgroup_id_x 1
.end_amdhsa_kernel
"""
    return s, stats_

DEFAULT = dict(sfl='sc0 sc1', dfl='', uni=1, pga=1024, nl=[7]*16+[8]*8, vch=2, pool=[248, 249, 250, 251, 252, 253, 0], sp={'vlat': 700, 'cap': 2, 'pace': 40},
    po='g a a6 dm lane l0 l1 l2 l3 tab gp u0 u1 u2 u3 u4 u5 p0 u6 p1 u7 p2 u8 p3 b0 b1 b2 b3 p4 b4 b5 b6 t')
BASE = dict(DEFAULT, uni=0)
DEFAULT.update(eval(open("tuned4.txt").read()))
if __name__ == "__main__":
    if len(sys.argv) > 1:
        import os; os.makedirs("var", exist_ok=True)
        for a in sys.argv[1:]:
            n, o = a.split(":", 1); d = dict(DEFAULT); d.update(eval(o) if o[0] == '{' else dict(eval(open(o.split('+')[0]).read()), **(eval(o.split('+', 1)[1]) if '+' in o else {})))
            s, st_ = emit(d); open(f"var/{n}.s", "w").write(s)
            print(n, {k: (v['n'], v['waits'], v['nops'], v['port'], v['mem']) for k, v in st_.items()})
        sys.exit(0)
    s, st_ = emit(DEFAULT)
    open("standalone__modern_conv_block_convnext__vision.s", "w").write(s)
    for n, v in st_.items(): print(n, v)
```

```python
import sys, struct, math
from asmdsl import I, parse, resolve, use
import sched

KNAME = "standalone__modern_conv_block_convnext__vision_kernel"
def f2u(x): return struct.unpack("<I", struct.pack("<f", x))[0]
def h2u(x): return struct.unpack("<H", struct.pack("<e", x))[0]
A_ = 2 * math.sqrt(2 / math.pi) * math.log2(math.e)
K_ = 0.46875
C_ = A_ / K_; A3 = A_ * 0.044715 / K_ ** 3
XB = 512 * 512 * 192
ROW = 98304
OOR = 0x10000000
WA, WB = 0, 40960
IMG = 90112; IMGW = 12800; REG = 6400; SUB = 2560
TAB = IMG + 4 * IMGW; DYS = 3072
G2 = TAB + 3 * DYS
LUT = G2 + 384
LDS = 163840
vID = 18
vDM, vPB, vIDX, vMK, vRS, vA, vW, vCT, vO, vSQ, vTC = 1, 8, 16, 17, 20, 22, (23, 24), 25, 26, (27, 29), 31
ACC, YN, Y, U, T, E, G = (32, 80), (128, 152), (176, 192), 208, 216, 224, (232, 240)
SC = 252; vSM = (248, 252)
pS, pT, pN, pE, pD, GK, ID = 232, 234, 236, 238, 224, 176, 240
def Creg(u, g): return YN[u] + 4 * (g >> 1) if g % 2 == 0 else E + 4 * u
cAD, cAS, cR = Y[1], Y[1] + 8, (ACC[0] + 16, U, G[0])
SPC, ONES, WR = 192, 228, 232
sW = 3; sX = 20; sO = 24; sDW = 28; sB1 = 32; sB2 = 36; sGA = 40; sW1 = 44; sW2 = 48
sT, sC, sROW, sCOL, sIMG, sINC, sONE, sK = 52, 53, 54, 55, 56, 57, 58, 59
sOF = (80, 81, 82, 83)
sKB, sLUT, sKK, sPC, sVO, sDR = 84, 85, 86, 94, 54, 87
POS = {p: ((p // 4 + 1) % 3, p % 4) for p in range(12)}
r4 = lambda r: f"v[{r}:{r+3}]"
a4 = lambda r: f"a[{r}:{r+3}]"
r16 = lambda r: f"v[{r}:{r+15}]"
srd = lambda s: f"s[{s}:{s+3}]"
flat = lambda ll: [x for l in ll for x in l]

def mm32(ty, d, a, b, c=None):
    return I(f"v_mfma_f32_32x32x16_{ty} {r16(d)}, {a}, {b}, {r16(d) if c is None else c}")
def mm16(ty, d, a, b, c=None): return I(f"v_mfma_f32_16x16x32_{ty} {r4(d)}, {a}, {b}, {r4(d) if c is None else c}")
def mix(main, extra):
    extra = sorted(extra, key=lambda e: e[0]); out = []; acc = 0; k = 0
    for m in main:
        while k < len(extra) and extra[k][0] <= acc: out += extra[k][1]; k += 1
        out.append(m); acc += m.cost
    for e in extra[k:]: out += e[1]
    return out
def il(*ls):
    out = []
    for k in range(max(map(len, ls))): out += [l[k] for l in ls if k < len(l)]
    return out
def mksrd(s, p, n): return f"s_mov_b32 s{s}, s{p}\ns_mov_b32 s{s+1}, s{p+1}\ns_mov_b32 s{s+2}, {n}\ns_mov_b32 s{s+3}, 0x20000"
def tag(i, rd=(), wr=()): i.rd = i.rd | set(rd); i.wr = i.wr | set(wr); return i
RG = lambda r: ("x", f"img{r}")
RD = lambda r: ("x", f"rd{r}")

def gen(opt):
    S = {}
    uni = opt.get("uni")
    stamp = opt.get("stamp"); T1 = opt.get("g1t", "f16"); sm = opt.get("sm", 1); sw1 = opt.get("sw1", 1)
    def st(k):
        if not stamp: return []
        if k == 0 and opt.get("rt0"): return parse("s_waitcnt lgkmcnt(0)\ns_mov_b32 s96, s76\ns_mov_b32 s97, s78")
        if k == 0: return parse("s_memrealtime s[76:77]\ns_memtime s[78:79]\ns_waitcnt lgkmcnt(0)\ns_mov_b32 s96, s76\ns_mov_b32 s97, s78")
        if k == 7: return parse("s_memrealtime s[76:77]\ns_memtime s[78:79]\ns_waitcnt lgkmcnt(0)\ns_mov_b32 s101, s76\ns_mov_b32 s100, s78")
        return parse(f"s_memtime s[78:79]\ns_waitcnt lgkmcnt(0)\ns_mov_b32 s{97+k}, s78")
    AG = opt.get("ag", ("p1", "p2", "t0", "c1", "t1", "c2", "t3"))
    AR = (36, 38, 40, 42, 88, 90, 92)
    def xs(k):
        if stamp == 6: return parse(f"{'s_memtime' if opt.get('cyc') else 's_memrealtime'} s[{AR[AG.index(k)]}:{AR[AG.index(k)]+1}]\ns_waitcnt lgkmcnt(0)") if k in AG else []
        if not stamp or k not in opt.get("exs", ()): return []
        r = 88 + 2 * opt['exs'].index(k)
        return parse(f"{'s_memrealtime' if opt.get('exrt') else 's_memtime'} s[{r}:{r+1}]\ns_waitcnt lgkmcnt(0)")
    def ls(k, mode=1):
        if stamp != mode: return []
        i = I("s_mov_b32 s60, s60"); i.text = f"s_memtime s[{60+k//15*2}:{61+k//15*2}]"; i.rd = set(); i.wr = set()
        if k == 0: return [i]
        return [i]
    SQ = [60, 62, 64, 66, 68, 70, 72, 74, 76, 78, 36, 38, 40, 42, 44]
    def lq(k):
        if stamp != 1: return None
        i = I("s_mov_b32 s60, s60"); i.text = f"s_memtime s[{SQ[k]}:{SQ[k]+1}]"; i.rd = set(); i.wr = set(); return i
    def lqf():
        if stamp == 5: return parse(f"s_waitcnt lgkmcnt(0)\nv_accvgpr_read_b32 v255, a224\ns_lshl_b32 m0, s{sT}, 4\ns_sub_u32 m0, m0, 16\ns_sub_u32 s60, s60, s97\nv_writelane_b32 v255, s60, m0\ns_add_u32 m0, m0, 15\ns_sub_u32 s62, s62, s97\nv_writelane_b32 v255, s62, m0\nv_accvgpr_write_b32 a224, v255")
        if stamp != 1: return []
        return [lq(14)] + parse(f"s_waitcnt lgkmcnt(0)\nv_accvgpr_read_b32 v255, a224\ns_lshl_b32 m0, s{sT}, 4\ns_sub_u32 m0, m0, 16") + flat(parse(f"s_sub_u32 s{r}, s{r}, s97\nv_writelane_b32 v255, s{r}, m0\ns_add_u32 m0, m0, 1") for r in SQ) + parse("v_accvgpr_write_b32 a224, v255")
    pc = [0 if stamp != 7 else -1]
    def ps():
        if stamp == 7 and pc[0] >= 0:
            pc[0] += 1; r = (list(range(4, 20, 2)) + list(range(28, 44, 2)) + [88, 90, 92])[pc[0] - 1]
            i = I("s_mov_b32 s60, s60"); i.text = f"s_memtime s[{r}:{r+1}]"; i.rd = set(); i.wr = set(); return [i]
        if stamp != 3: return []
        pc[0] += 1
        return parse(f"s_memtime s[78:79]\ns_waitcnt lgkmcnt(0)\ns_sub_u32 s78, s78, s97\nv_writelane_b32 v255, s78, {pc[0]-1}")
    def xdma(Gq, reg, fl, ks=range(7)):
        l = []
        for k in ks:
            i = I(f"buffer_load_dword{'x4' if k < 6 else ''} v{vDM+k}, {srd(sX)}, 0 offen offset:{64*Gq} {fl} lds".replace("  ", " "))
            l.append(parse(f"s_add_u32 m0, s{sIMG}, {REG*reg + 1024*k - 64*Gq}") + [tag(i, [RD(reg)], [RG(reg)])])
        return l
    touch = lambda fl: [I(f"buffer_load_dword v{SC+2}, v{vTC}, {srd(x)}, 0 offen {fl}".rstrip()) for x in ((sX, sO) if opt.get("ot") else (sX,))]
    t = 128
    ln = t + 1; hh = t + 10; tt, tp, tc = t + 2, t + 3, t + 4
    def dma_addr(d, x, y): return f"""v_lshrrev_b32 v{x}, 11, v{tt}
v_subrev_u32 v{y}, s65, v{tt}
v_mad_u32_u24 v{x}, v{x}, s68, v{tp}
v_and_b32 v{y}, 0x7ff, v{y}
v_cmp_gt_u32 vcc, s66, v{y}
v_lshrrev_b32 v{y}, 7, v{tt}
v_and_b32 v{y}, 32, v{y}
v_xad_u32 v{x}, v{tc}, v{y}, v{x}
v_cndmask_b32 v{d}, v{t+8}, v{x}, vcc
"""
    step = f"v_add_u32 v{tt}, {16*205}, v{tt}\nv_add_u32 v{tp}, {16*192}, v{tp}\n"
    first = f"""v_lshrrev_b32 v{tp}, 2, v{ln}
v_mul_u32_u24 v{tt}, 205, v{tp}
v_mul_u32_u24 v{tp}, 192, v{tp}
v_add_u32 v{tp}, s64, v{tp}
"""
    last = f"""v_lshrrev_b32 v{tp}, 4, v{ln}
v_add_u32 v{tp}, 96, v{tp}
v_mul_u32_u24 v{tt}, 205, v{tp}
v_mul_u32_u24 v{tp}, 192, v{tp}
v_add_u32 v{tp}, s64, v{tp}
v_lshlrev_b32 v{t+5}, 2, v{ln}
v_and_b32 v{t+5}, 63, v{t+5}
""" + dma_addr(vDM + 6, t + 6, t + 7).replace(f"v{tc},", f"v{t+5},")
    ncl = 4 if opt.get("xsw") else 3
    cpf = f"""s_getpc_b64 s[62:63]
L_pc:
v_min_u32 v18, {ncl-1}, v{ln}
s_lshr_b32 s71, s2, 3
s_lshl2_add_u32 s71, s71, s{sW}
v_mad_u32_u24 v18, s71, {ncl}, v18
v_min_u32 v18, (L_last-L_pc)/128, v18
v_lshlrev_b32 v18, 1, v18
v_mad_u64_u32 v[18:19], vcc, v18, 64, s[62:63]
global_load_dword v251, v[18:19], off
"""
    cpa = parse(f"""s_getpc_b64 s[{sPC}:{sPC+1}]
L_pd:
s_lshl_b32 s60, s{sW}, 10
s_add_u32 s60, s60, {'L_last-3968' if uni else 'L_final'}-L_pd
s_add_u32 s{sPC}, s{sPC}, s60
s_addc_u32 s{sPC+1}, s{sPC+1}, 0""")
    cpl = lambda: parse(f"""v_and_b32 v254, 0x70, v{vW[0]}
v_mad_u64_u32 v[254:255], vcc, v254, 8, s[{sPC}:{sPC+1}]""") + [I("global_load_dword v254, v[254:255], off")]
    bou = f"""s_bitcmp1_b32 s2, 7
s_cselect_b32 s{sDR}, 1, -1
s_cselect_b32 s61, 0, {24*ROW}
s_mul_i32 s{sDR}, s{sDR}, {8*ROW}
s_add_u32 s63, s63, s61
""" if opt.get("bou") == 1 else ""
    DR = f"s{sDR}" if opt.get("bou") == 1 else 128 * ROW if opt.get("bou") == 2 else 8 * ROW
    H = parse(f"""
s_cmp_ge_u32 s2, 256
s_cbranch_scc1 L_end
s_load_dwordx16 s[4:19], s[0:1], 0
v_readfirstlane_b32 s{sW}, v0
v_and_b32 v{ln}, 63, v0
s_and_b32 s60, s2, 7
s_lshr_b32 s61, s2, 7
s_lshl1_add_u32 s60, s60, s61
s_lshr_b32 s{sW}, s{sW}, 6
{cpf}s_bfe_u32 s61, s2, 0x40003
s_lshl2_add_u32 s{sCOL}, s61, s{sW}
s_mul_i32 s60, s60, {8*ROW if opt.get('bou') == 2 else 32*ROW}
s_mul_i32 s61, s{sCOL}, 1536
s_add_u32 s63, s60, s61
{bou}s_sub_u32 s64, s63, {ROW+192}
s_movk_i32 s65, 0
s_movk_i32 s66, 2048
s_cmp_eq_u32 s{sCOL}, 0
s_cmovk_i32 s65, 100
s_cmovk_i32 s66, 1948
s_cmp_eq_u32 s{sCOL}, 63
s_cmovk_i32 s66, 1800
s_mul_i32 s{sIMG}, s{sW}, {IMGW}
s_add_u32 s{sIMG}, s{sIMG}, {IMG}
s_mov_b32 s68, {ROW-1920}
{first}v_lshlrev_b32 v{tc}, 4, v0
v_and_b32 v{t+5}, 16, v0
v_bitop3_b32 v{tc}, v{tc}, v{t+5}, 48 bitop3:0x28
v_bfrev_b32 v{t+8}, 1
""") + st(0) + parse(mksrd(sX, 4, XB))
    dfl = opt.get("dfl", "")
    def xloop(pv):
        dm = tag(I(f"buffer_load_dwordx4 v{t+6}, {srd(sX)}, 0 offen {dfl} lds".replace("  ", " ")), [RD(0)], [RG(0)])
        S[f"xl{pv}"] = parse(f"L_xl{pv}:") + parse(dma_addr(t + 6, t + 6, t + 7)) + parse(step) + [dm] + parse(f"s_add_u32 m0, m0, 1024\ns_sub_u32 s70, s70, 1\ns_cbranch_scc0 L_xl{pv}")
        return parse(f"s_mov_b32 m0, s{sIMG}\ns_movk_i32 s70, {opt.get('xn', 6) - 1}")
    dmk = parse(first + step.join(dma_addr(vDM + k, t + 6, t + 7) for k in range(6)) + f"""s_cmp_lt_u32 s{sCOL}, 63
s_cselect_b32 s66, 10, 0
s_add_u32 s64, s64, {9*192+128}
v_mul_u32_u24 v{t+6}, {ROW}, v{ln}
v_add_u32 v{t+6}, s64, v{t+6}
v_cmp_gt_u32 vcc, s66, v{ln}
v_cndmask_b32 v{vTC}, v{t+8}, v{t+6}, vcc
""")
    wta = parse(f"""s_mulk_i32 s71, 640
v_lshlrev_b32 v{t+13}, 7, v{ln}
v_cmp_gt_u32 vcc, 5, v{ln}
v_cndmask_b32 v{t+13}, v{t+8}, v{t+13}, vcc
""")
    taba = parse(f"""v_lshrrev_b32 v{hh}, 5, v{ln}
s_movk_i32 s69, 192
v_mul_u32_u24 v{t+11}, 1366, v0
v_lshrrev_b32 v{t+11}, 16, v{t+11}
v_mul_u32_u24 v{t+11}, 384, v{t+11}
v_lshl_add_u32 v{t+11}, v0, 2, v{t+11}
v_lshlrev_b32 v{t+12}, 3, v0
{mksrd(sDW, 6, 1728)}
{mksrd(sB2, 14, 192)}
{mksrd(sGA, 16, 192)}
{mksrd(sB1, 10, 768)}
""")
    tabld = parse(f"""
buffer_load_dword v{t+16}, v{t+11}, {srd(sDW)}, 0 offen
buffer_load_dword v{t+17}, v{t+11}, {srd(sDW)}, 0 offen offset:192
buffer_load_dword v{t+18}, v{t+11}, {srd(sDW)}, 0 offen offset:384
buffer_load_dwordx2 v[{t+20}:{t+21}], v{t+12}, {srd(sB2)}, 0 offen
buffer_load_dwordx2 v[{t+22}:{t+23}], v{t+12}, {srd(sGA)}, 0 offen
""")
    wsrd = parse(f"{mksrd(sW1, 8, 73728)}\n{mksrd(sW2, 12, 73728)}")
    wtouch = parse(f"buffer_load_dword v{t+14}, v{t+13}, {srd(sW1)}, s71 offen\nbuffer_load_dword v{t+15}, v{t+13}, {srd(sW2)}, s71 offen")
    if 0: wtouch += parse(f"v_lshlrev_b32 v{t+19}, 7, v{ln}\nbuffer_load_dword v{t+19}, v{t+19}, {srd(sB1)}, 0 offen")
    q = t + 24
    n, kq, rp, c, par, oor = q, q + 1, q + 2, q + 3, q + 4, q + 5
    lanec = f"""
v_mov_b32 v{oor}, {OOR}
v_and_b32 v{n}, 15, v{ln}
v_lshrrev_b32 v{kq}, 4, v{ln}
v_add_u32 v{rp}, 4, v{n}
v_lshrrev_b32 v{rp}, 3, v{rp}
v_mad_i32_i24 v{c}, v{rp}, -4, v{n}
v_and_b32 v{rp}, 1, v{rp}
v_and_b32 v{par}, 1, v{kq}
v_lshlrev_b32 v{q+6}, 1, v{rp}
v_mul_u32_u24 v{q+7}, {ROW}, v{q+6}
v_mad_u32_u24 v{q+7}, v{c}, s69, v{q+7}
v_lshl_add_u32 v{q+7}, v{kq}, 4, v{q+7}
v_add_u32 v{vO}, s63, v{q+7}
{f"v_xor_b32 v{vO}, 0x80000000, v{vO}" if uni else ""}
s_mov_b32 s{sVO}, {0x80000000 if uni else 8*ROW}
"""
    def pixaddr(d, row, col, fhi, x=None):
        return f"""v_add_u32 v{q+7}, {row}, v{q+6}
v_add_u32 v{q+8}, {col}, v{c}
v_mad_u32_u24 v{q+7}, v{q+7}, 10, v{q+8}
v_bfe_u32 v{q+8}, v{q+7}, 2, 1
v_lshl_or_b32 v{q+8}, v{fhi}, 1, v{q+8}
""" + (f"v_xor_b32 v{q+8}, v{x}, v{q+8}\n" if x else "") + f"""v_lshl_add_u32 v{q+8}, v{q+7}, 2, v{q+8}
v_lshl_add_u32 v{d}, v{q+8}, 4, s{sIMG}
"""
    lanec += f"v_xor_b32 v{q+9}, v{rp}, v{hh}\n" + pixaddr(vPB, f"v{kq}", 0, q + 9)
    lanec += f"v_add_u32 v{q+10}, 1, v{par}\n" + pixaddr(vPB + 4, f"v{hh}", f"v{q+10}", rp)
    lanec += "".join(f"v_xor_b32 v{vPB+4*d+i}, {16*i}, v{vPB+4*d}\n" for d in range(2) for i in (1, 2, 3))
    lanec += pixaddr(vRS, 1, 1, rp, kq) + f"v_xor_b32 v{q+9}, 1, v{rp}\n" + pixaddr(vRS + 1, 2, 1, q + 9, kq)
    lanec += f"""v_bfe_u32 v{q+6}, v{n}, 2, 1
v_sub_u32 v{q+6}, v{kq}, v{q+6}
v_and_b32 v{q+7}, 3, v{n}
v_mul_u32_u24 v{vIDX}, 0x1111, v{q+7}
v_lshrrev_b32 v{q+8}, 3, v{n}
v_lshl_add_u32 v{q+7}, v{q+8}, 2, v{q+7}
v_lshlrev_b32 v{q+7}, 5, v{q+7}
v_add_u32 v{q+7}, {TAB}, v{q+7}
s_movk_i32 s70, {DYS}
v_cmp_gt_u32 vcc, 3, v{q+6}
v_mad_u32_u24 v{q+7}, v{q+6}, s70, v{q+7}
v_cndmask_b32 v{vA}, v{oor}, v{q+7}, vcc
v_lshlrev_b32 v{vW[0]}, 4, v{ln}
v_add_u32 v{vW[1]}, {WB}, v{vW[0]}
v_lshlrev_b32 v{vCT}, 5, v{kq}
v_add_u32 v{vCT}, {G2}, v{vCT}
v_and_b32 v{q+8}, 1, v{ln}
v_lshlrev_b32 v{q+8}, 4, v{q+8}
v_mov_b32 v{q+9}, 0x3f80
v_lshlrev_b32 v{q+8}, v{q+8}, v{q+9}
v_bfe_u32 v{q+6}, v{ln}, 1, 1
v_bfe_u32 v{q+7}, v{ln}, 3, 2
v_lshl_add_u32 v{q+7}, v{q+7}, 1, v{q+6}
v_bfe_u32 v{q+9}, v{ln}, 2, 1
v_xor_b32 v{q+9}, v{q+9}, v{hh}
v_lshl_add_u32 v{q+7}, v{q+9}, 3, v{q+7}
v_lshlrev_b32 v{q+7}, v{q+7}, 1
v_lshrrev_b32 v{q+9}, 2, v{n}
v_xor_b32 v{q+9}, v{q+9}, v{kq}
v_lshl_add_u32 v{q+6}, v{q+9}, 1, v{q+6}
v_lshlrev_b32 v{q+6}, v{q+6}, 1
""" + "".join(f"v_bfe_i32 v{d+r}, v{o}, {r}, 1\n" for d, o, k in ((ID, q + 7, 8), (vID, q + 6, 2)) for r in range(k)) + \
        "".join(f"v_and_b32 v{d+r}, v{q+8}, v{d+r}\n" for d, k in ((ID, 8), (vID, 2)) for r in range(k)) + f"""{mksrd(sO, 18, XB)}
s_mov_b32 s{sT}, 0
s_mov_b32 s{sOF[0]}, 0
s_mov_b32 s{sOF[1]}, {ROW}
s_mov_b32 s{sOF[2]}, {4*ROW}
s_mov_b32 s{sOF[3]}, {5*ROW}
s_mov_b32 s{sC}, {h2u(C_) * 0x10001}
s_mov_b32 s{sONE}, 0x3c003c00
s_mov_b32 s{sLUT}, {LUT}
s_mov_b32 s{sKK}, {hex(h2u(K_) * 0x10001)}
s_mov_b32 s{sKB}, {hex(h2u(K_) << 16 if T1 == "f16" else f2u(K_))}
v_lshrrev_b32 v{q+6}, 2, v{n}
v_xor_b32 v{q+6}, v{q+6}, v{kq}
v_bfe_i32 v{q+6}, v{q+6}, 0, 1
v_bfi_b32 v{q+6}, v{q+6}, 0, s{sONE}
""" + "".join(f"v_accvgpr_write_b32 a{ONES+r}, v{q+6}\n" for r in range(4)) + (f"""v_and_b32 v{vMK}, v{hh}, v{kq}
v_lshlrev_b32 v{vMK}, 4, v{vMK}
""" if sw1 else f"v_lshlrev_b32 v{vMK}, 4, v{hh}\n") + f"v_lshrrev_b32 v{vMK}, v{vMK}, -1\n"
    z = q + 12
    tables = f"""
v_lshlrev_b32 v{q+6}, 6, v0
v_add_u32 v{q+6}, {TAB}, v{q+6}
v_cmp_gt_u32 vcc, 144, v0
v_cndmask_b32 v{q+6}, v{oor}, v{q+6}, vcc
v_and_b32 v{q+7}, 3, v0
v_lshl_add_u32 v{q+8}, v{q+7}, 2, v{q+6}
v_lshrrev_b32 v{q+7}, 1, v{q+7}
v_lshl_add_u32 v{q+7}, v{q+7}, 2, v{q+6}
v_lshlrev_b32 v{q+9}, 4, v0
v_add_u32 v{q+9}, {G2}, v{q+9}
v_cmp_gt_u32 vcc, 24, v0
v_cndmask_b32 v{q+9}, v{oor}, v{q+9}, vcc
v_mov_b32 v{z}, 0
v_mov_b32 v{z+1}, 0
v_mov_b32 v{z+2}, 0
v_mov_b32 v{z+3}, 0
ds_write_b128 v{q+6}, {r4(z)}
ds_write_b128 v{q+6}, {r4(z)} offset:16
ds_write_b128 v{q+6}, {r4(z)} offset:32
ds_write_b128 v{q+6}, {r4(z)} offset:48
ds_write_b16 v{q+8}, v{t+16}
ds_write_b16_d16_hi v{q+8}, v{t+16} offset:34
ds_write_b16 v{q+7}, v{t+17} offset:16
ds_write_b16_d16_hi v{q+7}, v{t+17} offset:48
ds_write_b16 v{q+7}, v{t+18} offset:24
ds_write_b16_d16_hi v{q+7}, v{t+18} offset:56
v_lshlrev_b32 v{z+4}, 16, v{t+20}
v_and_b32 v{z+5}, 0xffff0000, v{t+20}
v_lshlrev_b32 v{z+6}, 16, v{t+21}
v_and_b32 v{z+7}, 0xffff0000, v{t+21}
v_lshlrev_b32 v{z+8}, 16, v{t+22}
v_and_b32 v{z+9}, 0xffff0000, v{t+22}
v_lshlrev_b32 v{z+10}, 16, v{t+23}
v_and_b32 v{z+11}, 0xffff0000, v{t+23}
v_mul_f32 v{z+4}, v{z+4}, v{z+8}
v_mul_f32 v{z+5}, v{z+5}, v{z+9}
v_mul_f32 v{z+6}, v{z+6}, v{z+10}
v_mul_f32 v{z+7}, v{z+7}, v{z+11}
ds_write_b128 v{q+9}, {r4(z+4)}
"""
    def lutb(rs):
        L = []; W = []
        for n_, r in enumerate(rs):
            b = 160 + 8 * n_; two = lambda f: [f(b + 1, b + 3, b + 5), f(b + 2, b + 4, b + 6)]
            l = [f"v_add_u32 v{b}, {hex(0x10001000 * r)}, v{SC}", f"v_cvt_f32_f16 v{b+1}, v{b}", f"v_cvt_f32_f16_sdwa v{b+2}, v{b} dst_sel:DWORD dst_unused:UNUSED_PAD src0_sel:WORD_1"]
            if r < 5:
                for f in (lambda u, a, e: f"v_mul_f32 v{a}, {hex(f2u(A3))}, v{u}", lambda u, a, e: f"v_fma_f32 v{a}, v{a}, v{u}, s73", lambda u, a, e: f"v_mul_f32 v{a}, -v{u}, v{a}",
                          lambda u, a, e: f"v_exp_f32 v{e}, v{a}", lambda u, a, e: f"v_fma_f32 v{a}, v{e}, s{sK}, s{sK}", lambda u, a, e: f"v_rcp_f32 v{a}, v{a}",
                          lambda u, a, e: f"v_mul_f32 v{a}, v{u}, v{a}", lambda u, a, e: f"v_mul_f32 v{e}, -v{e}, v{a}"): l += two(f)
                l += [f"v_cvt_pk_bf16_f32 v{b+7}, v{b+5}, v{b+6}"]; W.append(f"ds_write_b32 v{SC+1}, v{b+7} offset:{8192+1024*r}")
            else: l += two(lambda u, a, e: f"v_mul_f32 v{a}, {hex(f2u(1 / K_))}, v{u}")
            L.append(l + [f"v_cvt_pk_bf16_f32 v{b}, v{b+3}, v{b+4}"]); W.append(f"ds_write_b32 v{SC+1}, v{b} offset:{1024*r}")
        return il(*L) + W
    lut = parse(f"""s_mov_b32 s73, {hex(f2u(C_))}
s_mov_b32 s{sK}, {hex(f2u(K_))}
v_mul_u32_u24 v{SC}, 0x100010, v0
v_add_u32 v{SC}, 0xc0004, v{SC}
v_lshlrev_b32 v{SC+1}, 2, v0
v_add_u32 v{SC+1}, {LUT}, v{SC+1}""")
    luts = [parse(lutb(rs)) for rs in ((0, 1), (2, 3), (4, 5), (6, 7))]; luts[0] = lut + luts[0]
    def src(nu, h, s): return a4(16 * nu + 8 * h + 4 * s) if nu < 6 else r4(ACC[0] + 16 * (nu - 6) + 8 * h + 4 * s)
    acc = lambda nu, h: 80 + 32 * (nu % 3) + 16 * h
    N95, R95, RB1, RG_ = (208, 192, 208), 176, WR, 208
    def xpose(d, f, cin=None): return [mm32("bf16", d, f(0), r4(ID), cin), mm32("bf16", d, f(1), r4(ID + 4))]
    def uxpose(w2, nu):
        l = il(*[xpose(acc(nu, h), lambda s: src(nu, h, s), "0" if w2 else r16(N95[nu // 3])) for h in range(2)])
        if not w2 and nu % 3 == 2: l += xpose(acc(nu, 1), lambda s: a4(RB1 + 4 * (nu // 3)))[1:]
        return l
    def un95(i): return parse([f"v_xor_b32 v{R95+4*i+e}, 0x80008000, v{R95+4*i+e}" for e in range(4)]) + xpose(N95[i], lambda s: r4(R95 + 4 * i), "0")
    def uload(w2, nu):
        i, k = divmod(nu, 3); l = []
        if opt.get("lin"): return parse(f"s_mul_i32 s74, s{sW}, 36864\ns_and_b32 s74, s74, 0xffff\ns_add_u32 s74, s74, {4096*nu}") + [I(f"buffer_load_dwordx4 {src(nu, h, s)}, v{vW[0]}, {srd(sW2 if w2 else sW1)}, s74 offen offset:{2048*h+1024*s}") for h in range(2) for s in range(2)]
        if w2:
            if k == 0: l = parse(f"s_mov_b32 s74, {24576*i}\ns_mov_b32 s75, {24576*i+6144}")
            return l + [I(f"buffer_load_dwordx4 {src(nu, h, s)}, v{pS}, {srd(sW2)}, s{74+s} offen offset:{3072*h+(0, 256, 128)[k] if opt.get('fl') else 1536*h+64*k}") for h in range(2) for s in range(2)]
        return l + parse(f"s_mov_b32 s74, {24576*k}\ns_mov_b32 s75, {24576*k+12288}") + \
            [I(f"buffer_load_dwordx4 {src(nu, h, s)}, v{pS+h}, {srd(sW1)}, s{74+s} offen offset:{256*i}") for h in range(2) for s in range(2)]
    def wmk(d, w2):
        m = opt.get("wmask", 0) * (1 - w2)
        return parse([f"v_add_u32 v{d+r}, {hex((1 << m - 1) * 0x10001)}, v{d+r}" for r in range(4)] + [f"v_and_b32 v{d+r}, {hex((0xffff << m & 0xffff) * 0x10001)}, v{d+r}" for r in range(4)]) if m else []
    def ufin(w2, nu):
        i, k = divmod(nu, 3); P = []
        for e in range(4):
            dst = pD + 4 * (e & 1); sr = lambda r, x: acc(nu, r >> 1) + 8 * (r & 1) + 4 * x + e
            l = []
            if w2 and e % 2 == 0: l = parse([f"v_pk_mul_f32 v[{sr(r, x)}:{sr(r, x)+1}], v[{sr(r, x)}:{sr(r, x)+1}], v[{GK+4*k+e}:{GK+4*k+e+1}]" for r in range(4) for x in range(2)])
            l += parse([f"v_cvt_pk_{'bf16' if w2 else T1}_f32 v{dst+r}, v{sr(r, 0)}, v{sr(r, 1)}" for r in range(4)]) + wmk(dst, w2)
            if w2: l.append(I(f"ds_write_b128 v{pT+(e&1)}, {r4(dst)} offset:{6144+2048*k+128*(e>>1)}"))
            else: l.append(I(f"ds_write_b128 v{pT}, {r4(dst)} offset:{(10240 if i == 1 else 12288)*(e>>1)+1024*(2*k+(e&1))}"))
            P.append(l)
        if k == 2 and i < 2:
            P[3] += parse([f"v_{'sub' if i == 0 else 'add'}_u32 v{pT+e}, v{pT+e}, v{pE}" for e in range(1 + w2)])
        return P
    x = q + 6
    rowx = f"""
v_bfe_u32 v{x}, v{ln}, 2, 1
v_bfe_u32 v{x+1}, v{ln}, 3, 2
v_lshl_add_u32 v{x+1}, v{x}, 2, v{x+1}
v_and_b32 v{x+2}, 3, v{ln}
"""
    uaddr = [rowx + f"""v_lshl_add_u32 v{pN}, v{hh}, 2, v{x+2}
s_lshl_b32 s60, s{sW}, 7
v_lshl_add_u32 v{pN}, v{pN}, 4, s60
v_mul_u32_u24 v{x+1}, 768, v{x+1}
v_add_u32 v{pS}, v{x+1}, v{pN}
v_add_u32 v{pS+1}, 6144, v{pS}
v_and_b32 v{x+1}, 0x1c, v{ln}
v_cmp_eq_u32 vcc, 0x1c, v{x+1}
s_mov_b32 s72, {95*768}
s_mul_i32 s60, s{sW}, 24576
s_add_u32 s60, s60, {WB}
v_cndmask_b32 v{pN+1}, v{t+8}, v{pN}, vcc
v_lshl_add_u32 v{pT}, v{ln}, 4, s60
s_lshl_b32 s60, s{sW}, 12
s_add_u32 s60, s60, {WB}
v_mov_b32 v{pE}, s60
""" + "\n".join(f"buffer_load_dwordx4 {r4(R95+4*i)}, v{pN}, {srd(sW1)}, s72 offen offset:{256*i}\nbuffer_load_dwordx4 {a4(RB1+4*i)}, v{pN+1}, {srd(sB1)}, 0 offen offset:{256*i}" for i in range(3)), rowx + f"""v_lshl_add_u32 v{x+1}, v{hh}, 4, v{x+1}
s_lshl_b32 s60, s{sW}, 6
s_sub_u32 s60, s60, 128
v_add_u32 v{x+1}, s60, v{x+1}
v_xor_b32 v{pN}, v{hh}, v{x+2}
v_lshlrev_b32 v{pN}, 4, v{pN}
v_mad_u32_u24 v{pS}, v{x+1}, s69, v{pN}
""" + (f"""v_bfe_u32 v{x+1}, v{ln}, 3, 2
v_lshl_add_u32 v{x+1}, v{x}, 2, v{x+1}
v_mul_u32_u24 v{x+1}, 384, v{x+1}
v_lshl_add_u32 v{x+1}, v{hh}, 6, v{x+1}
s_mul_i32 s61, s60, 192
v_add3_u32 v{pS}, v{x+1}, s61, v{pN}
""" if opt.get("fl") else "") + f"""s_lshl_b32 s60, s{sW}, 1
s_sub_u32 s60, s60, 4
v_add_u32 v{x+1}, s60, v{x}
v_lshlrev_b32 v{pE}, 11, v{x+1}
v_add_u32 v{pE}, {WB+2048}, v{pE}
v_mul_u32_u24 v{x+1}, 768, v{x+1}
v_lshl_add_u32 v{x+1}, v{x}, 2, v{x+1}
v_add_u32 v{x+1}, v{x+2}, v{x+1}
v_bfe_u32 v{x+2}, v{ln}, 3, 1
v_lshl_add_u32 v{x+1}, v{x+2}, 6, v{x+1}
v_lshrrev_b32 v{x+2}, 4, v{ln}
v_lshl_add_u32 v{x+1}, v{x+2}, 4, v{x+1}
v_lshlrev_b32 v{x+1}, 4, v{x+1}
v_add_u32 v{pT}, {WB}, v{x+1}
v_xor_b32 v{pT+1}, 64, v{pT}
""" + "\n".join(f"buffer_load_dwordx4 {r4(RG_+4*k)}, v{pN}, {srd(sGA)}, 0 offen offset:{64*k}" for k in range(3))]
    gfin = flat(xpose(GK + 4 * k, lambda s: r4(RG_ + 4 * k), "0") for k in range(3))
    bar = lambda: parse("s_waitcnt lgkmcnt(0)\ns_barrier")
    def resid_rd(qs): return [I(f"ds_read_b128 {a4(48*qq+4*f)}, v{vW[1]} offset:{12288*qq+1024*f}") for qq in qs for f in range(12)]
    xa = lambda: flat(xdma(0, 0, dfl)); xb = lambda: flat(xdma(1, 1, dfl)) + touch(dfl)
    n0, nh, xp = opt.get("n0", 3), opt.get("nh", 2), opt.get("xp", 9)
    spc_rd = [I(f"ds_read_b128 {a4(SPC+8*p+4*h)}, v{vW[0]} offset:{10240*p+4096+1024*h}") for p in range(4) for h in range(2)]
    greg = lambda g: (0, 1, 0)[g >> 2]
    def Bop(g, j, u, first=False):
        if first and opt.get("c0h") and 0 < g < 4: return "v", (((64, 68, 72), (76, 80, 84)), ((88, 92, 96), (100, 104, 108)), ((32, 36, 40), (44, 216, 220)))[g - 1][u][j]
        if first == 0 and opt.get("e4") and g in (2, 3):
            a_, y_ = ACC[0], YN[0]; return "v", (((a_, a_ + 4, a_ + 8), (a_ + 12, a_ + 32, a_ + 36)), ((y_ + 8, y_ + 12, y_ + 16), (y_ + 20, a_ + 40, a_ + 44)))[g - 2][u][j]
        if g % 2 == 0: return "a", WR + 12 * u + 4 * j
        return "v", ((Y[0], Y[0] + 4, Y[0] + 8), (Y[0] + 12, G[0], G[0] + 4))[u][j]
    opd = lambda fr, n=4: f"{fr[0]}[{fr[1]}:{fr[1]+n-1}]"
    def rdB(g, j, u, first=False):
        if g > 11: return []
        i = I(f"ds_read_b128 {opd(Bop(g, j, u, first))}, v{vPB+(4 if j else 0)+((g&3)^(3 if j == 2 else 0))} offset:{REG*greg(g)+SUB*u+(1280 if j == 2 else 0)}")
        return [tag(i, [RG(greg(g))], [RD(greg(g))])]
    UO = ((1, 0), (1, 1), (0, 1), (0, 0))
    def rdR(b): return [tag(I(f"ds_read_b128 {r4(cR[b]+8*u+4*o)}, v{vRS+o} offset:{REG*greg(4*b)+SUB*u}"), [RG(greg(4*b))], [RD(greg(4*b))]) for u, o in UO]
    plB = lambda g, first=False: [x for j in range(3) for u in range(2) for x in rdB(g, j, u, first)]
    po = opt.get("po")
    xsw = opt.get("xsw")
    S["head"] = H + ps() + wta + wsrd + wtouch + taba + (parse(f"s_cmp_eq_u32 s{sW}, 3\ns_cbranch_scc1 L_nt") + tabld[:3] + parse(f"s_cmp_lg_u32 s{sW}, 0\ns_cbranch_scc1 L_nt") + tabld[3:] + parse("L_nt:") if opt.get("tsk") else tabld) + (parse(f"s_bitcmp1_b32 s2, {xsw[0]}\ns_cbranch_scc1 L_prep2") if xsw else []) + parse(f"s_cmp_ge_u32 s{sW}, 2\ns_cbranch_scc1 L_prep1")
    pc0 = pc[0]; roles = range(4 if xsw else 2)
    for pv in roles:
        w2 = pv & 1; po = xsw[1] if pv > 1 else opt["po"]; po = po[w2] if isinstance(po, tuple) else po
        pc[0] = pc0; b1_, b2_ = (4, 6) if w2 else (3, 5)
        if 1:
            ua = uaddr[w2].strip().split("\n"); ug = [y for y in ua if y.startswith("buffer")]; ua = [y for y in ua if y not in ug]
            it = {"lane": parse(lanec), "a6": parse(last) + xdma(0, 0, dfl, [6])[0], "dm": parse([x.text for x in dmk]), "tab": parse(tables), "g": parse(ug if "g2" not in po or w2 else ug[:3]), **({"g2": parse([] if w2 else ug[3:])} if "g2" in po else {}), "t": touch(dfl), "s": None, "gp": parse([x.text for x in gfin]) if w2 else un95(0) + un95(1)}
            it.update({f"x{k}": uxpose(w2, k) for k in range(2) if f"x{k}" in po})
            it.update({f"u{k}": uload(w2, k) for k in range(9)}); it.update({f"l{k}": parse([x.text for x in luts[k]]) for k in range(4)})
            if "xt" in po: it["xt"] = parse(f"""v_mul_u32_u24 v{t+6}, 205, v{ln}
v_lshrrev_b32 v{t+6}, 10, v{t+6}
v_mad_i32_i24 v{t+7}, v{t+6}, -5, v{ln}
v_mul_u32_u24 v{t+7}, 384, v{t+7}
v_mul_u32_u24 v{t+6}, {ROW}, v{t+6}
v_cmp_gt_u32 vcc, 50, v{ln}
v_add3_u32 v{t+6}, v{t+6}, s64, v{t+7}
v_cndmask_b32 v{t+6}, v{t+8}, v{t+6}, vcc
buffer_load_dword v250, v{t+6}, {srd(sX)}, 0 offen offset:64""")
            it.update({f"a{k}": xdma(0, 0, dfl, [k])[0] for k in range(opt.get("xn", 6), 6)})
            if po.index("dm") < po.index("a6"): it["dm"] = parse(last) + it["dm"]; it["a6"] = xdma(0, 0, dfl, [6])[0]
            for n_, Gq in (("b", 1),): it.update({f"{n_}{k}": x for k, x in enumerate(xdma(Gq, Gq, dfl))})
            P = parse(f"L_prep{pv}:") + (parse(f"s_cmp_ge_u32 s{sW}, 2\ns_cbranch_scc1 L_prep3") if pv == 2 else []) + parse(ua); late = {}; cur = P
            for x in po.split():
                if x == "a": S[f"pre{pv}"] = P + xloop(pv); S[f"br{pv}"] = parse(f"s_branch L_prb{pv}") if pv != 1 else []; P = cur = parse(f"L_prb{pv}:"); continue
                if x in ("hi", "lo"): cur += parse(f"s_setprio {2 * (x == 'hi')}"); continue
                if x[0] == "p": cur = late.setdefault(int(x[1:]), []); continue
                cur += ps() if x == "s" else xs(x) if x[0] == "y" else parse(f"s_waitcnt vmcnt({x[1:]})") if x[0] == "w" else it.pop(x)
            assert list(it) == ["s"], it
        if stamp == 7: pc[0] = 0
        P += xs("p1") + st(1) + ps() + flat(uxpose(w2, k) for k in range(2) if f"x{k}" not in po)
        rk_ = lambda k: [resid_rd((q_,))[f] for q_ in (0, 2, 3, 1) for f in (2 * k, 2 * k + 1, 6 + 2 * k, 7 + 2 * k)]
        r01 = spc_rd + rk_(0) + rk_(1); RR = {b1_: r01[:20], b1_ + 1: r01[20:], b2_: rk_(2)}; b3 = opt.get("b3")
        if not b3: r01 += rk_(2); RR = {b1_: r01[:28], b1_ + 1: r01[28:]}
        c0r = plB(0, 1) + plB(3, 1)[:5] + rdR(0) + plB(1, 1) + plB(2, 1) + plB(3, 1)[5:]; c0r = c0r if opt.get("c0h") else []; RR[7] = c0r[:opt.get("c0n", 20)]; RR[8] = c0r[len(RR[7]):]
        for nu in range(9):
            nx = uxpose(w2, nu + 2) if nu < 7 else []
            if nu == 2 and not w2: x_ = un95(2); P += x_[:4]; nx += x_[4:]
            f = ufin(w2, nu); l = list(late.get(nu, [])); r = RR.get(nu, []); ne = 2 if nu == 8 else 4
            for e in range(4):
                k_ = [i.kind for i in f[e]].index("dsw")
                P += f[e][:k_] + nx[e:e+1]
                if e == 3 and nu < 6: P += [use(*[src(nu + 3, h, s_) for h in range(2) for s_ in range(2)])]
                if e == 0 and nu in (b1_, b2_, 8 if b3 else -1): P += ps() + bar() + xs({b1_: "p3", b2_: "p4", 8: "p5"}[nu]) + ps()
                P += f[e][k_:k_+1] + r[len(r)*e//ne:len(r)*(e+1)//ne] + l[len(l)*e//4:len(l)*(e+1)//4] + f[e][k_+1:]
            P += nx[4:] + ps()
        if opt.get("now"):
            P = [i for i in P if not (i.kind == "vml" and ("s", sW1) in i.rd | {("s", x - 4) for y, x in i.rd if y == "s" and x == sW2})]
            k_ = [n_ for n_, i in enumerate(P) if i.kind == "mfma"][0]; P = P[:k_] + [i for i in P[k_:] if i.kind in ("vmd", "sml", "wait") or ("s", "m0") in i.wr or (i.kind == "vml")] + bar()
        S[f"prep{pv}"] = P + xs("p2") + (parse("s_branch L_conv0") if pv != 0 else [])
    def res(p, f): return a4(48 * POS[p][1] + 4 * f)
    sfl = opt.get("sfl", "")
    g1 = lambda f, u, o, a: mm16(T1, Y[u] + 8 * o + 4 * (f & 1), a, r4(YN[u] + 8 * (f >> 1) + 4 * o), "0" if f < 2 else None)
    Areg = lambda u, o, rb: ACC[u] + 16 * (rb >> 1) + 8 * o + 4 * (rb & 1)
    g2 = lambda f, u, o, a: mm16("bf16", Areg(u, o, f - 6), a, r4(G[u] + 4 * o))
    gm = lambda f, u, o, a: (g1 if f < 6 else g2)(f, u, o, a)
    def epi_mm(u, o): return [g2(f, u, o, res(11, f)) for f in range(6, 12)]
    def epi(u, o, b, fl):
        d = Areg(u, o, 2 * b)
        return parse([f"v_cvt_pk_bf16_f32 v{d+e}, v{d+2*e}, v{d+2*e+1}" for e in range(4)] +
                     [f"buffer_store_dwordx4 {r4(d)}, v{vO}, {srd(sO)}, s{sOF[2*u+o]} offen offset:{64*b} {fl}".rstrip()])
    rdAD = lambda g: [I(f"ds_read_b128 {r4(cAD+4*(g&1))}, v{vA} offset:{256*g}")] if g < 12 else []
    rdAS = lambda g: [I(f"ds_read_b128 {r4(cAS+4*(g&1))}, v{vA} offset:{256*g+16}")] if g < 12 else []
    def mmR(b):
        return [I(f"v_mfma_f32_16x16x16_bf16 {r4(Areg(u, o, 2*b+s))}, v[{vID}:{vID+1}], v[{cR[b]+8*u+4*o+2*s}:{cR[b]+8*u+4*o+2*s+1}], {r4(Areg(0, 0, 2*b+s))}") for u, o in UO for s in range(2)]
    cinit = lambda b: [I(f"ds_read_b128 {r4(Areg(0, 0, 2*b+s))}, v{vCT} offset:{128*b+16*s}") for s in range(2)]
    def cmm(g, j, u, first):
        cc = r4(Creg(u, g))
        if j == 0: return I(f"v_mfma_f32_16x16x32_bf16 {cc}, {r4(cAD+4*(g&1))}, {opd(Bop(g, 0, u, first))}, 0")
        return I(f"v_smfmac_f32_16x16x64_bf16 {cc}, {r4(cAS+4*(g&1))}, {opd(Bop(g, 1, u, first), 8)}, v{vIDX}")
    def cvt16(u, g):
        cc = Creg(u, g); d = Creg(u, g & ~1) + 2 * (g & 1)
        return parse([f"v_cvt_pkrtz_f16_f32 v{d+e}, v{cc+2*e}, v{cc+2*e+1}" for e in range(2)])
    def dots(u, g):
        d = Creg(u, g & ~1) + 2 * (g & 1); vQ = vSQ[u] + 1
        c = lambda r, e: 0 if g == 0 and e == 0 else f"v{r}"
        return parse([x for e in range(2) for x in [f"v_dot2_f32_f16 v{vQ}, v{d+e}, v{d+e}, {c(vQ, e)}"] + ([] if sm else [f"v_dot2_f32_f16 v{vQ-1}, v{d+e}, s{sONE}, {c(vQ-1, e)}"])])
    summ = lambda kk: [mm16("f16", vSM[u], a4(ONES), r4(YN[u] + 4 * kk), "0" if kk == 0 else None) for u in range(2 * sm)]
    swaps = lambda u, ks: parse([f"v_permlane16_swap_b32 v{YN[u]+8*ks+e}, v{YN[u]+8*ks+4+e}" for e in range(4)])
    DOT = ("x", "dot")
    def dbatch(gs):
        l = flat(il(dots(0, g), dots(1, g)) for g in gs)
        if l: tag(l[0], [DOT]); tag(l[-1], (), [DOT])
        return l
    def fence(l):
        for i in l:
            if i.kind == "mfma" or i.op.startswith("v_dot"):
                if i.kind == "mfma": tag(i, [DOT])
        return l
    spc = lambda p, f: p < 4 and f in (6, 7)
    uses = [(0, f) for f in range(6)]
    for p in range(8): uses += ([(p + 1, f) for f in range(6)] if p < 7 else []) + [(p, f) for f in range(6, 12)]
    uses = [x for x in uses if not spc(*x)]
    def wread(k):
        if k >= len(uses): return []
        p, f = uses[k]
        return [I(f"ds_read_b128 {a4(WR+4*(k%6))}, v{vW[p//4]} offset:{10240*p+1024*(f - 2 * (f > 5)) if p < 4 else 12288*(p-4)+1024*f}")]
    def frag(p, f):
        if p >= 8: return res(p, f), []
        if spc(p, f): return a4(SPC + 8 * p + 4 * (f - 6)), []
        k = uses.index((p, f)); return a4(WR + 4 * (k % 6)), wread(k + 6)
    db = opt.get("db", (3, 6, 9))
    def place(X, pos, items):
        for q_, x in zip(pos, items): X.setdefault(q_, []).extend(x if isinstance(x, list) else [x])
    dp = opt.get("dp", (0, 1, 2, 3, 4, 5, 6) if opt.get("e4") else (7, 8, 9, 10, 11, 12, 13))
    bst = opt.get("bst", (15, 16, 28, 32, 36, 40))
    sadd = lambda: parse(f"v_add_u32 v{vO}, s{sVO}, v{vO}\ns_mov_b32 s{sVO}, {DR}")
    def conv(first, fl=""):
        B = []; X = {}; V = {}
        nb = lambda g: (4 if g == 0 else 99 if g < 4 else g + 2) if first and opt.get("c0h") else (g + 4 if g < 2 else 99 if g < 4 else g + 2) if opt.get("e4") and not first else g + 2
        if first and not opt.get("c0h"):
            B += rdAD(0) + plB(0)[:2] + rdAS(0) + plB(0)[2:] + rdAD(1) + rdAS(1) + plB(1)
            place(X, opt.get("r00", (1, 3, 5, 7)), rdR(0)); place(X, opt.get("ci00", (12, 13)), cinit(0)); place(X, opt.get("dp0", (7, 8, 9, 10, 11, 12, 13)), xdma(2, 0, dfl))
        elif first: B += rdAD(0) + rdAS(0) + rdAD(1) + rdAS(1) + plB(5); place(X, opt.get("ci00", (15, 15)), cinit(0)); place(X, opt.get("dp0", (0, 1, 2, 3, 4, 5, 6)), xdma(2, 0, dfl))
        else:
            e = [epi(1, o, b, fl) for b in range(3) for o in range(2)]
            place(X, opt.get("emp", (7, 7, 8, 9, 10, 11)), epi_mm(1, 1))
            place(X, opt.get("ci0", (12, 13)), cinit(0))
            place(V, opt.get("epv", (2, 3, 5, 6, 7, 8)), [x[:4] for x in e])
            place(X, bst, [x[4] for x in e])
            if max(bst) < 48: place(X, [45], [sadd()])
            place(X, dp, xdma(2, 0, opt.get("dfl2", "")))
        z = "0" if first else ""
        place(X, opt.get("rp" + z, (17, 18, 19, 20, 21, 22, 23, 24)), mmR(0))
        place(X, opt.get("r1p" + z, (16, 18, 20, 22)), rdR(1))
        place(X, opt.get("cip" + z, (38, 39, 41, 42)), cinit(1) + cinit(2))
        place(X, opt.get("w0p" + z, (44, 44, 45, 45, 46, 47)), [wread(k) for k in range(4 if first else 6)])
        dbs = set(opt.get("db0", db)) | {max(db)} if first else db
        if opt.get("cst") and stamp == 1: place(X, opt["cst"], [[lq(2 + k)] for k in range(12)])
        dn = sn = 0
        for g in range(12):
            x = lambda k: X.get(4 * g + k, [])
            if g: B += il(cvt16(0, g - 1), cvt16(1, g - 1))
            B += V.get(g, [])
            B += [cmm(g, 0, 0, first)] + rdB(nb(g), 0, 0, first) + x(0) + [cmm(g, 0, 1, first)] + rdB(nb(g), 0, 1, first) + rdAD(g + 2) + x(1)
            B += [cmm(g, 1, 0, first)] + rdB(nb(g), 1, 0, first) + rdB(nb(g), 2, 0, first) + x(2) + [cmm(g, 1, 1, first)] + rdB(nb(g), 1, 1, first) + rdB(nb(g), 2, 1, first) + rdAS(g + 2) + x(3)
            if g % 2 == 0 and g: B += summ(g // 2 - 1)
            if g in dbs and g <= max(db): B += dbatch(range(dn, g)); dn = g
            while sw1 and 4 * sn + 4 <= min(dn, g & ~1): B += il(swaps(0, sn), swaps(1, sn)); sn += 1
        for i in B:
            if i.kind == "mfma": i.cap = opt.get("ccap" + z, 6)
        return fence(B)
    def lnfin(u):
        vS, vQ = vSQ[u], vSQ[u] + 1
        return parse((f"""
v_mov_b32 v{vS}, v{vQ}
v_permlane32_swap_b32 v{vS}, v{vQ}
v_add_f32 v{vQ}, v{vS}, v{vQ}
v_mul_f32 v{vS}, {hex(f2u(1/96))}, v{vSM[u]}""" if sm else f"""
v_permlane32_swap_b32 v{vS}, v{vQ}
v_add_f32 v{vS}, v{vS}, v{vQ}
v_mov_b32 v{vQ}, v{vS}
v_permlane32_swap_b32 v{vS}, v{vQ}
v_mul_f32 v{vS}, {hex(f2u(1/96))}, v{vS}""") + f"""
v_mul_f32 v{vQ}, {hex(f2u(1/96))}, v{vQ}
v_fma_f32 v{vQ}, -v{vS}, v{vS}, v{vQ}
v_max_f32 v{vQ}, 0, v{vQ}
v_add_f32 v{vQ}, {hex(f2u(1e-5))}, v{vQ}
v_rsq_f32 v{vQ}, v{vQ}
v_fma_mixlo_f16 v{vQ}, v{vQ}, s{sK}, 0
v_fma_mixhi_f16 v{vQ}, -v{vS}, v{vQ}, 0 op_sel_hi:[0,1,0]""" + (f"\nv_mov_b32 v{vS}, v{vQ}\nv_permlane16_swap_b32 v{vQ}, v{vS}" if sw1 else ""))
    nxt = parse(f"s_cmp_eq_u32 s{sT}, 3\ns_cselect_b32 s{sINC}, 0x40000000, {DR}" + (f"\ns_cselect_b32 s{sIMG}, 0x30000, s{sIMG}" if opt.get("lo3") else "")) + parse([f"v_add_u32 v{r}, s{sINC}, v{r}" for r in list(range(vDM, vDM + 7)) + [vTC]])
    def norm(u, kk):
        p = vSQ[u] + (1 - (kk & 1) if sw1 else 1); r = YN[u] + 4 * kk; c5 = kk >= (4 if sw1 else 5)
        l = [f"v_pk_fma_f16 v{r+e}, v{r+e}, v{p}, v{p} op_sel:[0,0,1] op_sel_hi:[1,0,1]" for e in ((3, 0, 1, 2) if c5 else range(4))]
        if T1 == "bf16":
            es = (3, 0, 1, 2) if c5 else range(4); t_ = vSM[u]
            l = [f"v_fma_mix_f32 v{t_+e}, v{r+e}, v{p}, v{p} op_sel:[0,0,1] op_sel_hi:[1,1,1]" for e in es] + [f"v_fma_mix_f32 v{r+e}, v{r+e}, v{p}, v{p} op_sel:[1,0,1] op_sel_hi:[1,1,1]" for e in es]
            l += [f"v_cvt_pk_bf16_f32 v{r+e}, v{t_+e}, v{r+e}" for e in es]
        if c5: l = l[:-1] + [f"v_bfi_b32 v{r+3}, v{vMK}, v{r+3}, s{sKB}"] + l[-1:]
        return parse(l) + (swaps(u, kk >> 1) if kk & 1 and not sw1 else [])
    la, lk, ln_, mr = opt.get("lnv", (0, 6, 0, 0)); k0 = min(max(db), 10) // 4
    B = il(cvt16(0, 11), cvt16(1, 11)) + summ(5) + ([] if ln_ else nxt) + dbatch(range(max(db), 12)); m = mmR(1); r = rdR(2)
    mm_ = [m[0]] + r[:2] + [m[1]] + r[2:] + m[2:]
    sB = flat(swaps(1, ks) for ks in range(k0, 3))
    if la == 2: B += il(lnfin(0), flat(swaps(0, ks) for ks in range(k0, 3))) + (mm_ if not mr else [])
    elif la: B += il(lnfin(0), flat(swaps(u, ks) for u in range(2) for ks in range(k0, 3)) if sw1 else []) + (mm_ if not mr else [])
    else: B += (flat(il(swaps(0, ks), swaps(1, ks)) for ks in range(k0, 3)) if sw1 else []) + il(lnfin(0), lnfin(1)) + (mm_ if not mr else [])
    if opt.get("om") and sw1:
        for o in range(2):
            for ks in range(3): B += norm(0, 2 * ks + o) + [g1(f, 0, o, frag(0, f)[0]) for f in (2 * ks, 2 * ks + 1)]
    else:
        for ks in range(3): B += norm(0, 2 * ks) + norm(0, 2 * ks + 1) + [g1(f, 0, o, frag(0, f)[0]) for f in (2 * ks, 2 * ks + 1) for o in range(2)]
    if mr: B += mm_
    rest = (lnfin(1) if la == 1 else il(lnfin(1), sB) if la == 2 else []) + flat(norm(1, kk) for kk in range(6))
    nr = len(rest) - len(flat(norm(1, kk) for kk in range(lk, 6))) if lk >= 0 else max(0, 8 * (lk + 4))
    B += rest[:nr]; late0 = rest[nr:] + (nxt if ln_ else [])
    LN = fence(B)
    def sd(op, d, s): return f"{op}_sdwa v{d}, v{s} dst_sel:WORD_1 dst_unused:UNUSED_PRESERVE src0_sel:WORD_1"
    pool = list(range(U, U + 24)) + opt.get("pool", []); pk = [0]
    def take():
        pk[0] += 1; return pool[(pk[0] - 1) % len(pool)]
    def gelu(u, L):
        X = [i for i in range(8) if i not in L]
        V = gelu_(u, L, X)
        if not opt.get("pool"): return V
        m = {}
        for i in L + X:
            m[T + i] = take(); m[E + i] = take(); m[U + i] = m[T + i] if i in L else take()
        import re
        return [parse([re.sub(r"\bv(\d+)\b", lambda z: f"v{m.get(int(z.group(1)), int(z.group(1)))}", i.text) for i in l]) for l in V]
    def gelu_(u, L, X):
        cvt = [f"v_cvt_pkrtz_f16_f32 v{U+i}, v{Y[u]+2*i}, v{Y[u]+2*i+1}" for i in L + X]
        sh = [f"v_pk_lshrrev_b16 v{T+i}, 3, v{U+i} op_sel_hi:[0,1]" for i in L]
        ma = [x for i in L for x in (f"v_mad_u32_u16 v{E+i}, v{T+i}, 2, s{sLUT}", f"v_mad_u32_u16 v{T+i}, v{T+i}, 2, s{sLUT} op_sel:[1,0,0,0]")]
        ga = [x for i in L for x in (f"ds_read_u16 v{E+i}, v{E+i}", f"ds_read_u16_d16_hi v{T+i}, v{T+i}")]
        fma = [f"v_pk_fma_f16 v{T+i}, v{U+i}, v{U+i}, s{sC}" for i in X]
        mul = [f"v_pk_mul_f16 v{T+i}, v{T+i}, v{U+i} neg_lo:[1,0] neg_hi:[1,0]" for i in X]
        el = [f"v_exp_f16 v{E+i}, v{T+i}" for i in X]; eh = [sd("v_exp_f16", E + i, T + i) for i in X]
        ad = [f"v_pk_fma_f16 v{E+i}, v{E+i}, s{sKK}, s{sKK}" for i in X]
        rl = [f"v_rcp_f16 v{T+i}, v{E+i}" for i in X]; rh = [sd("v_rcp_f16", T + i, E + i) for i in X]
        fin = [f"v_or_b32 v{G[u]+i}, v{E+i}, v{T+i}" if i in L else f"v_pk_mul_f16 v{G[u]+i}, v{T+i}, v{U+i}" for i in L + X]
        if 1:
            rh += [f"v_fma_mix_f32 v{E+i}, v{T+i}, v{U+i}, 0 op_sel_hi:[1,1,0]" for i in X] + [f"v_fma_mix_f32 v{T+i}, v{T+i}, v{U+i}, 0 op_sel:[1,1,0] op_sel_hi:[1,1,0]" for i in X]
            fin = fin[:len(L)] + [f"v_cvt_pk_bf16_f32 v{G[u]+i}, v{E+i}, v{T+i}" for i in X]
        v1 = cvt + sh + ma
        if opt.get("vch"):
            c_ = opt["vch"]; v1 = [x for k in range(0, 8, c_) for x in cvt[k:k+c_] + sh[k:k+c_] + ma[2*k:2*k+2*c_]]
            if u == 1 or opt.get("vc1"): v1 = cvt[:c_] + sh[:c_] + cvt[c_:] + [x for x in v1 if x not in cvt and x not in sh[:c_]]
        return parse(v1), parse(ga), parse(fma + mul + el + eh + ad + rl + rh), parse(fin)
    pf = xdma(1, 1, opt.get("xfl", "")) + xdma(0, 0, opt.get("xfl", "")) + [touch(opt.get("xfl", ""))]
    pp = opt.get("pfpos", [(j, 12 if j else 6) for j in range(15)])
    slots = [(p, u) for p in range(8) for u in range(2)] + [(p, u) for u in range(2) for p in range(8, 12)]
    ea = [epi(0, o, b, sfl) for b in range(3) for o in range(2)]
    XS = {}; XV = {}
    place(XS, pp, pf)
    place(XS, opt.get("ast", ((21, 6), (21, 16), (22, 2), (22, 12), (22, 22), (23, 8))), [x[4] for x in ea])
    place(XV, opt.get("asv", (21, 21, 22, 22, 22, 23)), [x[:4] for x in ea])
    place(XS, opt.get("epos", [(19, 2 + 4 * k) for k in range(6)] + [(21, 2 + 4 * k) for k in range(6)] + [(23, k) for k in (0, 2, 4, 6, 9, 10, 11, 12)]), plB(0) + plB(1) + rdAD(0) + rdAS(0) + rdAD(1) + rdAS(1) + rdR(0))
    if opt.get("e4"): place(XS, opt.get("ep4", [(23, 9 + k) for k in range(6)] + [(22, 2), (22, 6), (22, 10), (23, 15), (22, 14), (23, 16)]), plB(2) + plB(3))
    place(XS, [(23, 18 + k) for k in dp if k < 0], xdma(2, 0, opt.get("dfl2", "")))
    for c_ in ([opt["cpp"]] if opt.get("cpp") else []) + opt.get("cpq", []): x_ = cpl(); place(XV, [c_[0]], [x_[:2]]); place(XS, [c_], x_[2:])
    place(XS, [(23, 17)], [parse(f"s_add_u32 s{sT}, s{sT}, 1\ns_cmp_eq_u32 s{sT}, 4")])
    nl = opt.get("nl", [4] * 24)
    def slot(j):
        p, u = slots[j]; M = []
        if j == 0:
            for f in range(6): a, post = frag(0, f); M += [[g1(f, 1, 0, a)], [g1(f, 1, 1, a)] + post]
            M += [[x] for x in mmR(2)]
        elif j < 15:
            pp_, fs = (p + 1, range(6)) if u else (p - 1, range(6, 12)); k_ = opt.get("lead", 1)
            a_ = [[[gm(f, 0, o, frag(pp_, f)[0])] for o in range(2)] for f in fs]; b_ = [[[gm(f, 1, 0, frag(pp_, f)[0])], [gm(f, 1, 1, frag(pp_, f)[0])] + frag(pp_, f)[1]] for f in fs]
            M = flat(a_[:k_] + [x for z in range(6) for x in (b_[z:z+1] + a_[z+k_:z+k_+1])])
        else:
            p2, u2 = slots[j - 1]
            M = [[g2(f, u2, o, frag(p2, f)[0])] for o in range(2) for f in range(6, 12)]
            if j < 23:
                p1, u1 = slots[j + 1]; m1 = [[g1(f, u1, o, res(p1, f))] for o in range(2) for f in range(6)]; k_, e_ = opt.get("mord", (2, 2))
                M = M[:k_] + il(m1, M[k_:12-e_]) + M[12-e_:]
        n_ = nl[j]; L = list(range(n_)) if j == 23 or opt.get("lo", 1) else list(range(8 - n_, 8))
        V1, ga, V2, fin = gelu(u, L)
        for x in ga: x.free = 1
        M[0] += ga
        if j == 23:
            em = epi_mm(1, 0); M += [fin[:4] + [em[0]]] + [[x] for x in em[1:]]; fin = fin[4:]
            assert n_ >= 4
        B = (V1[:opt.get("v1k", 99)] + late0 + V1[opt.get("v1k", 99):] if j == 0 else V1) + XV.get(j, [])
        if j % 2 == 0 and not opt.get('cst'): M[0].insert(1, lq(2 + j // 2))
        for k, e in enumerate(M): B += [x for x in e if x] + XS.get((j, k), [])
        return B + V2 + fin
    sp = opt.get("sp", {})
    rdreg = [{i.text for b in range(3) for i in rdR(b) + flat(plB(4 * b + g) for g in range(4)) if RG(k) in i.rd} for k in range(2)]
    mid = LN + flat(slot(j) for j in range(24))
    if opt.get("sig"):
        sig = {}; cv = conv(False, sfl); lw = {}; cnt = {}
        for i in conv(True) + wread(4) + wread(5) + mid + cv + mid + cv + mid:
            cnt[i.text] = cnt.get(i.text, 0) + 1; key = (i.text, cnt[i.text])
            sig[key] = {(r, lw.get(r)) for r in i.rd if r not in (DOT, RD(0), RD(1))}
            if i.kind == "vmd": sig[key].add(sum(v for k_, v in cnt.items() if k_ in rdreg[RG(0) not in i.wr]))
            for r in i.wr: lw[r] = key
        sig["period"] = sorted(i.text for i in cv + mid); sig["first"] = sorted(i.text for i in conv(True) if not i.op.startswith(("v_dot", "v_perm")))
        return sig
    def run(l, t):
        o, tm, t = sched.schedule(l, t, **sp); return o, tm, t
    sp0 = dict(sp, **opt.get('sp0', {}))
    c0, tc0, _ = sched.schedule(conv(True), None, **sp0)
    cv = conv(False, sfl); t_ = None
    for it in range(2):
        t0 = t_.tv if t_ else 0
        oc, tc, t_ = run(cv, t_); t1 = t_.tv
        om, tm, t_ = run(mid, t_); t2 = t_.tv
    model = dict(conv=t1 - t0, mid=t2 - t1, tile=t2 - t0)
    if opt.get("dump"):
        for x, y in list(zip(tc, oc)) + list(zip(tm, om)): print(f"{x-t0:6d} {y.text}")
    if stamp == 1:
        tt = [0, t1 - t0] + [x - t0 for x, y in zip(tm, om) if y.text.startswith("s_memtime")] + [t2 - t0]
        print("model", [b - a for a, b in zip(tt, tt[1:])])
    abl = opt.get("abl", ())
    def cls(i):
        x = i.text
        if i.kind == "dsr": return "gat" if "u16" in x else "wrd" if f"v{vW[0]} " in x or f"v{vW[1]} " in x else "crd"
        if i.kind == "mfma": return "res" if "16x16x16" in x else "g1" if any(("v", Y[0] + k) in i.wr for k in range(32)) else "g2" if ", a[" in x.split("], ")[0] + "], "[:0] + x[x.index("], "):x.index("], ")+5] else "cmm"
        if i.kind == "valu": return "tr" if i.trans else "adr" if "mad_u32_u16" in x or "lshrrev_b16" in x else "dot" if "dot2" in x else "pk" if "v_pk_" in x else "cvt" if "cvt" in x else "val"
        return i.kind
    def ablate(o, tm):
        z = [(i, t) for i, t in zip(o, tm) if cls(i) not in abl]
        if opt.get("pad"):
            z = [y for k, (i, t) in enumerate(z) for y in ([(i, t), (I(f"s_nop {opt['pad'][1]}"), t)] if i.kind == "valu" and k % opt["pad"][0] == 0 else [(i, t)])]
        return [a for a, b in z], [b for a, b in z]
    oc, tc = ablate(oc, tc); om, tm = ablate(om, tm)
    carry = lambda l: {r for i in l if i.kind in ("dsr", "vmd") for r in i.wr}
    def cbar(l):
        bp = opt["bp"]; o = []; n_ = 0
        def blk(w):
            wt = I("s_barrier", ws=0); wt.text = "s_waitcnt lgkmcnt(0)"
            return parse(f"s_cmp_lg_u32 s{sW}, {w}\ns_cbranch_scc1 L_cb{w}") + [wt, I("s_barrier", ws=0)] + parse(f"L_cb{w}:")
        for i in l:
            if i.kind == "mfma":
                for w in range(4):
                    if bp[w] == n_: o += blk(w)
                n_ += 1
            o.append(i)
        return o
    fl7 = lambda: parse("s_waitcnt lgkmcnt(0)\nv_mov_b32 v255, 0") + flat(parse(f"s_sub_u32 s{r}, s{r}, s97\nv_writelane_b32 v255, s{r}, {k}") for k, r in enumerate((list(range(4, 20, 2)) + list(range(28, 44, 2)) + [88, 90, 92])[:pc[0]])) if stamp == 7 else []
    h0 = sched.hoist(c0, tc0, sp0, carry(c0r))
    if uni:
        rd0 = plB(0) + plB(1) + plB(2) + plB(3) + rdR(0) + rdAD(0) + rdAS(0) + rdAD(1) + rdAS(1); assert opt.get("e4") and max(dp) < 0
        d2 = xdma(2, 0, dfl); d2 = flat(d[:1] + rd0[28+k:29+k] + d[1:] for k, d in enumerate(d2)); wv = parse("s_waitcnt vmcnt(0)"); w7 = parse("s_waitcnt vmcnt(7)")
        pre0 = [rd0[:28] + wv + bar() + d2, bar() + rd0[:28] + wv + d2, rd0[:28] + wv + d2 + bar(), rd0[:14] + bar() + rd0[14:28] + wv + d2,
                bar() + rd0[:28] + d2 + w7, rd0[:14] + bar() + rd0[14:28] + d2 + w7, rd0[:22] + bar() + rd0[22:28] + d2 + w7][opt.get("pv", 4)]
        S["conv0"] = parse("L_conv0:") + ps() + (cpa if opt.get("cpp") else []) + (parse(f"s_movk_i32 s60, {opt['delay']}\nL_dl:\ns_sub_u32 s60, s60, 1\ns_cbranch_scc0 L_dl") if opt.get("delay") else []) + pre0 + st(2) + xs("m0") + ps() + fl7() + (parse("v_accvgpr_write_b32 a224, v255") if stamp in (1, 3, 7) else []) + parse("s_branch L_conv")
    else: S["conv0"] = parse("L_conv0:") + ps() + (parse("v_accvgpr_write_b32 a224, v255") if stamp == 3 else []) + cpa + [x for x in [lq(0)] if x] + ls(0, 5) + (cbar(h0) if opt.get("bp") else h0) + (parse("v_accvgpr_read_b32 v255, a224") if stamp == 3 else []) + ps() + ([] if opt.get("bp") else bar()) + wread(4) + wread(5) + (parse(f"s_mul_i32 s60, s{sW}, {opt['skew']}\nL_sk:\ns_sub_u32 s60, s60, 1\ns_cbranch_scc0 L_sk") if opt.get("skew") else []) + st(2) + xs("m0") + ps() + (parse("v_accvgpr_write_b32 a224, v255") if stamp in (1, 3) else []) + parse("s_branch L_mid")
    xc_ = flat(parse(f"s_cmp_lg_u32 s{sT}, {tt}\ns_cbranch_scc1 L_xc{tt}") + xs(f"c{tt}") + parse(f"L_xc{tt}:") for tt in range(4) if xs(f"c{tt}"))
    S["conv"] = parse("L_conv:") + xc_ + [x for x in [lq(0)] if x] + ls(0, 5) + sched.hoist(oc, tc, sp, carry(mid))
    xt_ = flat(parse(f"s_cmp_lg_u32 s{sT}, {tt}\ns_cbranch_scc1 L_xs{tt}") + xs(f"t{tt}") + parse(f"L_xs{tt}:") for tt in range(4) if xs(f"t{tt}"))
    S["mid"] = parse("L_mid:") + xt_ + [x for x in [lq(1)] if x] + ls(15, 5) + sched.hoist(om, tm, sp, carry(cv)) + lqf() + (parse(f"s_cmp_eq_u32 s{sT}, 4") if stamp in (1, 5) else []) + parse("s_cbranch_scc0 L_conv" + ("" if uni else "\ns_branch L_final"))
    fl = opt.get("sflf", sfl); e = [epi(1, o, b, fl) for o in range(2) for b in range(3)]; m = epi_mm(1, 1)
    F = parse("L_final:") + sched.schedule(flat(x[:4] for x in e[:3]) + flat([m[2*b], e[b][4], m[2*b+1]] for b in range(3)) + flat(e[3:]), None, **sp)[0]
    if opt.get("ro"):
        wg, wv, sa, sb = opt["ro"]
        F += parse("s_waitcnt vmcnt(0)") + st(7) + parse((f"s_bitcmp{1-wg[1]}_b32 s2, {wg[0]}" if isinstance(wg, tuple) else f"s_cmp_lg_u32 s2, {wg if wg >= 0 else 's2'}") + f"""
s_cbranch_scc1 L_end
s_cmp_lg_u32 s{sW}, {wv if wv >= 0 else 's'+str(sW)}
s_cbranch_scc1 L_end
s_sub_u32 s60, s{sa}, s{sb}
s_mul_i32 s60, s60, {10 if opt.get('exrt') else 1}
s_min_u32 s60, s60, 150000
s_add_u32 s60, s60, 10000
L_spin:
s_memrealtime s[62:63]
s_waitcnt lgkmcnt(0)
s_sub_u32 s61, s62, s96
s_cmp_lt_u32 s61, s60
s_cbranch_scc1 L_spin""")
    elif stamp == 6:
        pts = [97 if opt.get("cyc") else 96] + list(AR) + [100 if opt.get("cyc") else 101]
        F += parse("s_waitcnt vmcnt(0)") + st(7) + parse(f"s_load_dwordx2 s[4:5], s[0:1], 64\ns_waitcnt lgkmcnt(0)\n{mksrd(sDW, 4, 256)}\nv_mov_b32 v17, 0\ns_mov_b64 exec, 1")
        for k, (a, b) in enumerate(zip(pts, pts[1:])):
            F += parse(f"s_sub_u32 s61, s{b}, s{a}\nv_mov_b32 v16, s61\nbuffer_atomic_add v16, v17, {srd(sDW)}, 0 offen offset:{4*k}\nbuffer_atomic_umax v16, v17, {srd(sDW)}, 0 offen offset:{32+4*k}")
    elif stamp:
        F += parse("s_waitcnt vmcnt(0)") + st(7) + parse(f"""
s_load_dwordx4 s[4:7], s[0:1], 64
s_waitcnt lgkmcnt(0)
{mksrd(sDW, 4, 65536)}
{mksrd(sB1, 6, 1 << 20)}
s_lshl_b32 s60, s2, 3
s_add_u32 s60, s60, s{sW}
s_lshl_b32 s61, s60, 8
s_lshl_b32 s60, s60, 5
v_mov_b32 v17, s60
v_lshrrev_b32 v18, 2, v{vW[0]}
v_accvgpr_read_b32 v255, a224
buffer_store_dword v255, v18, {srd(sB1)}, s61 offen
""" + "\n".join((f"s_sub_u32 s61, s{96+k}, s97" if k in (2, 3, 4) else f"s_mov_b32 s61, s{96+k}") + f"\nv_mov_b32 v16, s61\nbuffer_store_dword v16, v17, {srd(sDW)}, 0 offen offset:{4*k}" for k in range(6))
 + "\n" + "\n".join(f"s_sub_u32 s61, s{88+2*k}, s{96 if opt.get('exrt') else 97}\nv_mov_b32 v16, s61\nbuffer_store_dword v16, v17, {srd(sDW)}, 0 offen offset:{24+4*k}" for k in range(2)))
    S["final"] = F + parse("L_end:\ns_endpgm")
    S["head"] = (parse("s_memrealtime s[76:77]\ns_memtime s[78:79]") if opt.get("rt0") else []) + S["head"]
    out, stats_ = resolve(S, [["head", f"pre{pr}"] + [f"xl{pr}"] * opt.get("xn", 6) + [f"br{pr}", f"prep{pr}", "conv0"] + ["conv"] * bool(uni) + ["mid", "conv", "mid", "conv", "mid", "final"] for pr in roles])
    if opt.get("trace0"): print(sched.simulate(out[opt["trace0"]], sp, reps=1, trace=True))
    stats_["sim0"] = dict(n=sched.simulate(out["conv0"], sp, reps=1)[0], waits=0, nops=0, port=0, mem=0)
    tt, st_, mk = sched.simulate(out["conv"] + out["mid"], sp, trace=opt.get("trace"))
    stats_["model"] = dict(n=model["conv"], waits=model["mid"], nops=model["tile"], port=tt, mem=st_)
    if mk: print("sim  ", [b - a for a, b in zip(mk, mk[1:])])
    return out, stats_

HDR = open("standalone__modern_conv_block_convnext__vision.s.ref").read().split("; Override launch")[0]
BLOCK, NVGPR = 256, 512
def emit(opt, name=KNAME, full=True):
    out, stats_ = gen(opt)
    lines = [l for n in ["head"] + [x + k for k in "0231" for x in ("pre", "xl", "br")] + ["prep" + k for k in "1230"] + (["conv0", "conv", "mid", "final"] if opt.get("uni") else ["conv0", "final", "conv", "mid"]) for l in out.get(n, [])]
    if opt.get("align"):
        import align
        lines, a = align.align_runs(lines, opt["align"]); stats_["align"] = dict(n=a, waits=0, nops=0, port=0, mem=0)
    lines.insert(-1, "L_last:")
    if opt.get("pga") is not None:
        import align
        k = lines.index("L_conv:"); n = sum(align.sizes(lines[k:])) + opt["pga"]
        lines[k:k] = ["; never executed: places the loop so that it enters no new 4 KB page once its first stores are under way", ".p2alignl 12, 0xbf810000", f".fill {(-n % 4096) // 4}, 4, 0xbf810000"]
    body = "\n".join(lines)
    if name != KNAME: body = body.replace("L_", f"L_{name}_")
    s = ""
    if full:
        s += HDR + f"; Generated by tools/gen4.py (hand-designed schedule, see that file)\n; @launch grid=(256,1,1) block=({BLOCK},1,1) lds={LDS}\n"
        s += '.amdgcn_target "amdgcn-amd-amdhsa--gfx950"\n'
    s += f""".text
.globl {name}
{".p2align 12" + chr(10) + ".fill %d, 4, 0xbf800000" % (opt["org"] // 4) + chr(10) if opt.get("org") is not None else ""}.p2align 8
.type {name},@function
{name}:
{body}
.section .rodata,"a"
.p2align 6
.amdhsa_kernel {name}
  .amdhsa_next_free_vgpr {NVGPR}
  .amdhsa_next_free_sgpr 102
  .amdhsa_accum_offset 256
  .amdhsa_group_segment_fixed_size 0
  .amdhsa_kernarg_size 80
  .amdhsa_user_sgpr_count 2
  .amdhsa_user_sgpr_kernarg_segment_ptr 1
  .amdhsa_system_sgpr_workgroup_id_x 1
.end_amdhsa_kernel
"""
    return s, stats_

DEFAULT = dict(sfl='sc0 sc1', dfl='', uni=1, pga=1024, bou=1, nl=[7]*16+[8]*8, vch=2, pool=[248, 249, 250, 251, 252, 253, 0], sp={'vlat': 700, 'cap': 2, 'pace': 40},
    po='g a a6 dm lane l0 l1 l2 l3 tab gp u0 u1 u2 u3 u4 u5 p0 u6 p1 u7 p2 u8 p3 b0 b1 b2 b3 p4 b4 b5 b6 t')
BASE = dict(DEFAULT, uni=0)
DEFAULT.update(eval(open("tuned4.txt").read()))
if __name__ == "__main__":
    if len(sys.argv) > 1:
        import os; os.makedirs("var", exist_ok=True)
        for a in sys.argv[1:]:
            n, o = a.split(":", 1); d = dict(DEFAULT); d.update(eval(o) if o[0] == '{' else dict(eval(open(o.split('+')[0]).read()), **(eval(o.split('+', 1)[1]) if '+' in o else {})))
            s, st_ = emit(d); open(f"var/{n}.s", "w").write(s)
            print(n, {k: (v['n'], v['waits'], v['nops'], v['port'], v['mem']) for k, v in st_.items()})
        sys.exit(0)
    s, st_ = emit(DEFAULT)
    open("standalone__modern_conv_block_convnext__vision.s", "w").write(s)
    for n, v in st_.items(): print(n, v)
```

```python
import sys, struct, math
from asmdsl import I, parse, resolve, use
import sched

KNAME = "standalone__modern_conv_block_convnext__vision_kernel"
def f2u(x): return struct.unpack("<I", struct.pack("<f", x))[0]
def h2u(x): return struct.unpack("<H", struct.pack("<e", x))[0]
A_ = 2 * math.sqrt(2 / math.pi) * math.log2(math.e)
K_ = 0.46875
C_ = A_ / K_; A3 = A_ * 0.044715 / K_ ** 3
XB = 512 * 512 * 192
ROW = 98304
OOR = 0x10000000
WA, WB = 0, 40960
IMG = 90112; IMGW = 12800; REG = 6400; SUB = 2560
TAB = IMG + 4 * IMGW; DYS = 3072
G2 = TAB + 3 * DYS
LUT = G2 + 384
LDS = 163840
vID = 18
vDM, vPB, vIDX, vMK, vRS, vA, vW, vCT, vO, vSQ, vTC = 1, 8, 16, 17, 20, 22, (23, 24), 25, 26, (27, 29), 31
ACC, YN, Y, U, T, E, G = (32, 80), (128, 152), (176, 192), 208, 216, 224, (232, 240)
SC = 252; vSM = (248, 252)
pS, pT, pN, pE, pD, GK, ID = 232, 234, 236, 238, 224, 176, 240
def Creg(u, g): return YN[u] + 4 * (g >> 1) if g % 2 == 0 else E + 4 * u
cAD, cAS, cR = Y[1], Y[1] + 8, (ACC[0] + 16, U, G[0])
SPC, ONES, WR = 192, 228, 232
sW = 3; sX = 20; sO = 24; sDW = 28; sB1 = 32; sB2 = 36; sGA = 40; sW1 = 44; sW2 = 48
sT, sC, sROW, sCOL, sIMG, sINC, sONE, sK = 52, 53, 54, 55, 56, 57, 58, 59
sOF = (80, 81, 82, 83)
sKB, sLUT, sKK, sPC, sVO, sDR = 84, 85, 86, 94, 54, 87
POS = {p: ((p // 4 + 1) % 3, p % 4) for p in range(12)}
r4 = lambda r: f"v[{r}:{r+3}]"
a4 = lambda r: f"a[{r}:{r+3}]"
r16 = lambda r: f"v[{r}:{r+15}]"
srd = lambda s: f"s[{s}:{s+3}]"
flat = lambda ll: [x for l in ll for x in l]

def mm32(ty, d, a, b, c=None):
    return I(f"v_mfma_f32_32x32x16_{ty} {r16(d)}, {a}, {b}, {r16(d) if c is None else c}")
def mm16(ty, d, a, b, c=None): return I(f"v_mfma_f32_16x16x32_{ty} {r4(d)}, {a}, {b}, {r4(d) if c is None else c}")
def mix(main, extra):
    extra = sorted(extra, key=lambda e: e[0]); out = []; acc = 0; k = 0
    for m in main:
        while k < len(extra) and extra[k][0] <= acc: out += extra[k][1]; k += 1
        out.append(m); acc += m.cost
    for e in extra[k:]: out += e[1]
    return out
def il(*ls):
    out = []
    for k in range(max(map(len, ls))): out += [l[k] for l in ls if k < len(l)]
    return out
def mksrd(s, p, n): return f"s_mov_b32 s{s}, s{p}\ns_mov_b32 s{s+1}, s{p+1}\ns_mov_b32 s{s+2}, {n}\ns_mov_b32 s{s+3}, 0x20000"
def tag(i, rd=(), wr=()): i.rd = i.rd | set(rd); i.wr = i.wr | set(wr); return i
RG = lambda r: ("x", f"img{r}")
RD = lambda r: ("x", f"rd{r}")

def gen(opt):
    S = {}
    sg = opt.get("sg")
    if sg: opt = dict(opt, nt_=1)
    uni = opt.get("uni")
    stamp = opt.get("stamp"); T1 = opt.get("g1t", "f16"); sm = opt.get("sm", 1); sw1 = opt.get("sw1", 1)
    def st(k):
        if not stamp: return []
        if k == 0 and opt.get("rt0"): return parse("s_waitcnt lgkmcnt(0)\ns_mov_b32 s96, s76\ns_mov_b32 s97, s78")
        if k == 0: return parse("s_memrealtime s[76:77]\ns_memtime s[78:79]\ns_waitcnt lgkmcnt(0)\ns_mov_b32 s96, s76\ns_mov_b32 s97, s78")
        if k == 7: return parse("s_memrealtime s[76:77]\ns_memtime s[78:79]\ns_waitcnt lgkmcnt(0)\ns_mov_b32 s101, s76\ns_mov_b32 s100, s78")
        return parse(f"s_memtime s[78:79]\ns_waitcnt lgkmcnt(0)\ns_mov_b32 s{97+k}, s78")
    AG = opt.get("ag", ("p1", "p2", "t0", "c1", "t1", "c2", "t3"))
    AR = (36, 38, 40, 42, 88, 90, 92)
    def xs(k):
        if stamp == 6: return parse(f"{'s_memtime' if opt.get('cyc') else 's_memrealtime'} s[{AR[AG.index(k)]}:{AR[AG.index(k)]+1}]\ns_waitcnt lgkmcnt(0)") if k in AG else []
        if not stamp or k not in opt.get("exs", ()): return []
        r = 88 + 2 * opt['exs'].index(k)
        return parse(f"{'s_memrealtime' if opt.get('exrt') else 's_memtime'} s[{r}:{r+1}]\ns_waitcnt lgkmcnt(0)")
    def ls(k, mode=1):
        if stamp != mode: return []
        i = I("s_mov_b32 s60, s60"); i.text = f"s_memtime s[{60+k//15*2}:{61+k//15*2}]"; i.rd = set(); i.wr = set()
        if k == 0: return [i]
        return [i]
    SQ = [60, 62, 64, 66, 68, 70, 72, 74, 76, 78, 36, 38, 40, 42, 44]
    def lq(k):
        if stamp != 1: return None
        i = I("s_mov_b32 s60, s60"); i.text = f"s_memtime s[{SQ[k]}:{SQ[k]+1}]"; i.rd = set(); i.wr = set(); return i
    def lqf():
        if stamp == 5: return parse(f"s_waitcnt lgkmcnt(0)\nv_accvgpr_read_b32 v255, a224\ns_lshl_b32 m0, s{sT}, 4\ns_sub_u32 m0, m0, 16\ns_sub_u32 s60, s60, s97\nv_writelane_b32 v255, s60, m0\ns_add_u32 m0, m0, 15\ns_sub_u32 s62, s62, s97\nv_writelane_b32 v255, s62, m0\nv_accvgpr_write_b32 a224, v255")
        if stamp != 1: return []
        return [lq(14)] + parse(f"s_waitcnt lgkmcnt(0)\nv_accvgpr_read_b32 v255, a224\ns_lshl_b32 m0, s{sT}, 4\ns_sub_u32 m0, m0, 16") + flat(parse(f"s_sub_u32 s{r}, s{r}, s97\nv_writelane_b32 v255, s{r}, m0\ns_add_u32 m0, m0, 1") for r in SQ) + parse("v_accvgpr_write_b32 a224, v255")
    pc = [0 if stamp != 7 else -1]
    def ps():
        if stamp == 7 and pc[0] >= 0:
            pc[0] += 1; r = (list(range(4, 20, 2)) + list(range(28, 44, 2)) + [88, 90, 92])[pc[0] - 1]
            i = I("s_mov_b32 s60, s60"); i.text = f"s_memtime s[{r}:{r+1}]"; i.rd = set(); i.wr = set(); return [i]
        if stamp != 3: return []
        pc[0] += 1
        return parse(f"s_memtime s[78:79]\ns_waitcnt lgkmcnt(0)\ns_sub_u32 s78, s78, s97\nv_writelane_b32 v255, s78, {pc[0]-1}")
    def xdma(Gq, reg, fl, ks=range(7)):
        l = []
        for k in ks:
            i = I(f"buffer_load_dword{'x4' if k < 6 else ''} v{vDM+k}, {srd(sX)}, 0 offen offset:{64*Gq} {fl} lds".replace("  ", " "))
            l.append(parse(f"s_add_u32 m0, s{sIMG}, {REG*reg + 1024*k - 64*Gq}") + [tag(i, [RD(reg)], [RG(reg)])])
        return l
    touch = lambda fl: [I(f"buffer_load_dword v{SC+2}, v{vTC}, {srd(x)}, 0 offen {fl}".rstrip()) for x in ((sX, sO) if opt.get("ot") else () if opt.get("nt_") else (sX,))]
    t = 128
    ln = t + 1; hh = t + 10; tt, tp, tc = t + 2, t + 3, t + 4
    def dma_addr(d, x, y): return f"""v_lshrrev_b32 v{x}, 11, v{tt}
v_subrev_u32 v{y}, s65, v{tt}
v_mad_u32_u24 v{x}, v{x}, s68, v{tp}
v_and_b32 v{y}, 0x7ff, v{y}
v_cmp_gt_u32 vcc, s66, v{y}
v_lshrrev_b32 v{y}, 7, v{tt}
v_and_b32 v{y}, 32, v{y}
v_xad_u32 v{x}, v{tc}, v{y}, v{x}
v_cndmask_b32 v{d}, v{t+8}, v{x}, vcc
"""
    step = f"v_add_u32 v{tt}, {16*205}, v{tt}\nv_add_u32 v{tp}, {16*192}, v{tp}\n"
    first = f"""v_lshrrev_b32 v{tp}, 2, v{ln}
v_mul_u32_u24 v{tt}, 205, v{tp}
v_mul_u32_u24 v{tp}, 192, v{tp}
v_add_u32 v{tp}, s64, v{tp}
"""
    last = f"""v_lshrrev_b32 v{tp}, 4, v{ln}
v_add_u32 v{tp}, 96, v{tp}
v_mul_u32_u24 v{tt}, 205, v{tp}
v_mul_u32_u24 v{tp}, 192, v{tp}
v_add_u32 v{tp}, s64, v{tp}
v_lshlrev_b32 v{t+5}, 2, v{ln}
v_and_b32 v{t+5}, 63, v{t+5}
""" + dma_addr(vDM + 6, t + 6, t + 7).replace(f"v{tc},", f"v{t+5},")
    ncl = 4 if opt.get("xsw") else 3
    cpf = f"""s_getpc_b64 s[62:63]
L_pc:
v_min_u32 v18, {ncl-1}, v{ln}
s_lshr_b32 s71, s2, 3
s_lshl2_add_u32 s71, s71, s{sW}
v_mad_u32_u24 v18, s71, {ncl}, v18
v_min_u32 v18, (L_last-L_pc)/128, v18
v_lshlrev_b32 v18, 1, v18
v_mad_u64_u32 v[18:19], vcc, v18, 64, s[62:63]
global_load_dword v251, v[18:19], off
"""
    cpa = parse(f"""s_getpc_b64 s[{sPC}:{sPC+1}]
L_pd:
s_lshl_b32 s60, s{sW}, 10
s_add_u32 s60, s60, {'L_last-3968' if uni else 'L_final'}-L_pd
s_add_u32 s{sPC}, s{sPC}, s60
s_addc_u32 s{sPC+1}, s{sPC+1}, 0""")
    cpl = lambda: parse(f"""v_and_b32 v254, 0x70, v{vW[0]}
v_mad_u64_u32 v[254:255], vcc, v254, 8, s[{sPC}:{sPC+1}]""") + [I("global_load_dword v254, v[254:255], off")]
    bou = f"""s_bitcmp1_b32 s2, 7
s_cselect_b32 s{sDR}, 1, -1
s_cselect_b32 s61, 0, {24*ROW}
s_mul_i32 s{sDR}, s{sDR}, {8*ROW}
s_add_u32 s63, s63, s61
""" if opt.get("bou") == 1 else ""
    DR = f"s{sDR}" if opt.get("bou") == 1 else 128 * ROW if opt.get("bou") == 2 else 8 * ROW
    H = parse(f"""
s_cmp_ge_u32 s2, 256
s_cbranch_scc1 L_end
s_load_dwordx16 s[4:19], s[0:1], 0
v_readfirstlane_b32 s{sW}, v0
v_and_b32 v{ln}, 63, v0
s_and_b32 s60, s2, 7
s_lshr_b32 s61, s2, 7
s_lshl1_add_u32 s60, s60, s61
s_lshr_b32 s{sW}, s{sW}, 6
{cpf}s_bfe_u32 s61, s2, 0x40003
s_lshl2_add_u32 s{sCOL}, s61, s{sW}
s_mul_i32 s60, s60, {8*ROW if opt.get('bou') == 2 else 32*ROW}
s_mul_i32 s61, s{sCOL}, 1536
s_add_u32 s63, s60, s61
{bou}s_sub_u32 s64, s63, {ROW+192}
s_movk_i32 s65, 0
s_movk_i32 s66, 2048
s_cmp_eq_u32 s{sCOL}, 0
s_cmovk_i32 s65, 100
s_cmovk_i32 s66, 1948
s_cmp_eq_u32 s{sCOL}, 63
s_cmovk_i32 s66, 1800
s_mul_i32 s{sIMG}, s{sW}, {IMGW}
s_add_u32 s{sIMG}, s{sIMG}, {IMG}
s_mov_b32 s68, {ROW-1920}
{first}v_lshlrev_b32 v{tc}, 4, v0
v_and_b32 v{t+5}, 16, v0
v_bitop3_b32 v{tc}, v{tc}, v{t+5}, 48 bitop3:0x28
v_bfrev_b32 v{t+8}, 1
""") + st(0) + parse(mksrd(sX, 4, XB))
    dfl = opt.get("dfl", "")
    def xloop(pv):
        dm = tag(I(f"buffer_load_dwordx4 v{t+6}, {srd(sX)}, 0 offen {opt.get('dfa', dfl)} lds".replace("  ", " ")), [RD(0)], [RG(0)])
        S[f"xl{pv}"] = parse(f"L_xl{pv}:") + parse(dma_addr(t + 6, t + 6, t + 7)) + parse(step) + [dm] + parse(f"s_add_u32 m0, m0, 1024\ns_sub_u32 s70, s70, 1\ns_cbranch_scc0 L_xl{pv}")
        return parse(f"s_mov_b32 m0, s{sIMG}\ns_movk_i32 s70, {opt.get('xn', 6) - 1}")
    dmk = parse(first + step.join(dma_addr(vDM + k, t + 6, t + 7) for k in range(6)) + f"""s_cmp_lt_u32 s{sCOL}, 63
s_cselect_b32 s66, 10, 0
s_add_u32 s64, s64, {9*192+128}
v_mul_u32_u24 v{t+6}, {ROW}, v{ln}
v_add_u32 v{t+6}, s64, v{t+6}
v_cmp_gt_u32 vcc, s66, v{ln}
v_cndmask_b32 v{vTC}, v{t+8}, v{t+6}, vcc
""")
    wta = parse(f"""s_mulk_i32 s71, 640
v_lshlrev_b32 v{t+13}, 7, v{ln}
v_cmp_gt_u32 vcc, 5, v{ln}
v_cndmask_b32 v{t+13}, v{t+8}, v{t+13}, vcc
""")
    taba = parse(f"""v_lshrrev_b32 v{hh}, 5, v{ln}
s_movk_i32 s69, 192
v_mul_u32_u24 v{t+11}, 1366, v0
v_lshrrev_b32 v{t+11}, 16, v{t+11}
v_mul_u32_u24 v{t+11}, 384, v{t+11}
v_lshl_add_u32 v{t+11}, v0, 2, v{t+11}
v_lshlrev_b32 v{t+12}, 3, v0
{mksrd(sDW, 6, 1728)}
{mksrd(sB2, 14, 192)}
{mksrd(sGA, 16, 192)}
{mksrd(sB1, 10, 768)}
""")
    tabld = parse(f"""
buffer_load_dword v{t+16}, v{t+11}, {srd(sDW)}, 0 offen
buffer_load_dword v{t+17}, v{t+11}, {srd(sDW)}, 0 offen offset:192
buffer_load_dword v{t+18}, v{t+11}, {srd(sDW)}, 0 offen offset:384
buffer_load_dwordx2 v[{t+20}:{t+21}], v{t+12}, {srd(sB2)}, 0 offen
buffer_load_dwordx2 v[{t+22}:{t+23}], v{t+12}, {srd(sGA)}, 0 offen
""")
    wsrd = parse(f"{mksrd(sW1, 8, 73728)}\n{mksrd(sW2, 12, 73728)}")
    wtouch = parse(f"buffer_load_dword v{t+14}, v{t+13}, {srd(sW1)}, s71 offen {opt.get('dfw', '')}\nbuffer_load_dword v{t+15}, v{t+13}, {srd(sW2)}, s71 offen {opt.get('dfw', '')}")
    if 0: wtouch += parse(f"v_lshlrev_b32 v{t+19}, 7, v{ln}\nbuffer_load_dword v{t+19}, v{t+19}, {srd(sB1)}, 0 offen")
    q = t + 24
    n, kq, rp, c, par, oor = q, q + 1, q + 2, q + 3, q + 4, q + 5
    lanec = f"""
v_mov_b32 v{oor}, {OOR}
v_and_b32 v{n}, 15, v{ln}
v_lshrrev_b32 v{kq}, 4, v{ln}
v_add_u32 v{rp}, 4, v{n}
v_lshrrev_b32 v{rp}, 3, v{rp}
v_mad_i32_i24 v{c}, v{rp}, -4, v{n}
v_and_b32 v{rp}, 1, v{rp}
v_and_b32 v{par}, 1, v{kq}
v_lshlrev_b32 v{q+6}, 1, v{rp}
v_mul_u32_u24 v{q+7}, {ROW}, v{q+6}
v_mad_u32_u24 v{q+7}, v{c}, s69, v{q+7}
v_lshl_add_u32 v{q+7}, v{kq}, 4, v{q+7}
v_add_u32 v{vO}, s63, v{q+7}
{f"v_xor_b32 v{vO}, 0x80000000, v{vO}" if uni else ""}
s_mov_b32 s{sVO}, {0x80000000 if uni else 8*ROW}
"""
    def pixaddr(d, row, col, fhi, x=None):
        return f"""v_add_u32 v{q+7}, {row}, v{q+6}
v_add_u32 v{q+8}, {col}, v{c}
v_mad_u32_u24 v{q+7}, v{q+7}, 10, v{q+8}
v_bfe_u32 v{q+8}, v{q+7}, 2, 1
v_lshl_or_b32 v{q+8}, v{fhi}, 1, v{q+8}
""" + (f"v_xor_b32 v{q+8}, v{x}, v{q+8}\n" if x else "") + f"""v_lshl_add_u32 v{q+8}, v{q+7}, 2, v{q+8}
v_lshl_add_u32 v{d}, v{q+8}, 4, s{sIMG}
"""
    lanec += f"v_xor_b32 v{q+9}, v{rp}, v{hh}\n" + pixaddr(vPB, f"v{kq}", 0, q + 9)
    lanec += f"v_add_u32 v{q+10}, 1, v{par}\n" + pixaddr(vPB + 4, f"v{hh}", f"v{q+10}", rp)
    lanec += "".join(f"v_xor_b32 v{vPB+4*d+i}, {16*i}, v{vPB+4*d}\n" for d in range(2) for i in (1, 2, 3))
    lanec += pixaddr(vRS, 1, 1, rp, kq) + f"v_xor_b32 v{q+9}, 1, v{rp}\n" + pixaddr(vRS + 1, 2, 1, q + 9, kq)
    lanec += f"""v_bfe_u32 v{q+6}, v{n}, 2, 1
v_sub_u32 v{q+6}, v{kq}, v{q+6}
v_and_b32 v{q+7}, 3, v{n}
v_mul_u32_u24 v{vIDX}, 0x1111, v{q+7}
{f"v_or_b32 v{vIDX}, 0x88880000, v{vIDX}" if sg else ""}
v_lshrrev_b32 v{q+8}, 3, v{n}
v_lshl_add_u32 v{q+7}, v{q+8}, 2, v{q+7}
v_lshlrev_b32 v{q+7}, 5, v{q+7}
v_add_u32 v{q+7}, {TAB}, v{q+7}
s_movk_i32 s70, {DYS}
v_cmp_gt_u32 vcc, 3, v{q+6}
v_mad_u32_u24 v{q+7}, v{q+6}, s70, v{q+7}
v_cndmask_b32 v{vA}, v{oor}, v{q+7}, vcc
v_lshlrev_b32 v{vW[0]}, 4, v{ln}
v_add_u32 v{vW[1]}, {WB}, v{vW[0]}
v_lshlrev_b32 v{vCT}, 5, v{kq}
v_add_u32 v{vCT}, {G2}, v{vCT}
v_and_b32 v{q+8}, 1, v{ln}
v_lshlrev_b32 v{q+8}, 4, v{q+8}
v_mov_b32 v{q+9}, 0x3f80
v_lshlrev_b32 v{q+8}, v{q+8}, v{q+9}
v_bfe_u32 v{q+6}, v{ln}, 1, 1
v_bfe_u32 v{q+7}, v{ln}, 3, 2
v_lshl_add_u32 v{q+7}, v{q+7}, 1, v{q+6}
v_bfe_u32 v{q+9}, v{ln}, 2, 1
v_xor_b32 v{q+9}, v{q+9}, v{hh}
v_lshl_add_u32 v{q+7}, v{q+9}, 3, v{q+7}
v_lshlrev_b32 v{q+7}, v{q+7}, 1
v_lshrrev_b32 v{q+9}, 2, v{n}
v_xor_b32 v{q+9}, v{q+9}, v{kq}
v_lshl_add_u32 v{q+6}, v{q+9}, 1, v{q+6}
v_lshlrev_b32 v{q+6}, v{q+6}, 1
""" + "".join(f"v_bfe_i32 v{d+r}, v{o}, {r}, 1\n" for d, o, k in ((ID, q + 7, 8), (vID, q + 6, 2)) for r in range(k)) + \
        "".join(f"v_and_b32 v{d+r}, v{q+8}, v{d+r}\n" for d, k in ((ID, 8), (vID, 2)) for r in range(k)) + f"""{mksrd(sO, 18, XB)}
s_mov_b32 s{sT}, 0
s_mov_b32 s{sOF[0]}, 0
s_mov_b32 s{sOF[1]}, {ROW}
s_mov_b32 s{sOF[2]}, {4*ROW}
s_mov_b32 s{sOF[3]}, {5*ROW}
s_mov_b32 s{sC}, {h2u(C_) * 0x10001}
s_mov_b32 s{sONE}, 0x3c003c00
s_mov_b32 s{sLUT}, {LUT}
s_mov_b32 s{sKK}, {hex(h2u(K_) * 0x10001)}
s_mov_b32 s{sKB}, {hex(h2u(K_) << 16 if T1 == "f16" else f2u(K_))}
v_lshrrev_b32 v{q+6}, 2, v{n}
v_xor_b32 v{q+6}, v{q+6}, v{kq}
v_bfe_i32 v{q+6}, v{q+6}, 0, 1
v_bfi_b32 v{q+6}, v{q+6}, 0, s{sONE}
""" + "".join(f"v_accvgpr_write_b32 a{ONES+r}, v{q+6}\n" for r in range(4)) + (f"""v_and_b32 v{vMK}, v{hh}, v{kq}
v_lshlrev_b32 v{vMK}, 4, v{vMK}
""" if sw1 else f"v_lshlrev_b32 v{vMK}, 4, v{hh}\n") + f"v_lshrrev_b32 v{vMK}, v{vMK}, -1\n"
    z = q + 12
    tables = f"""
v_lshlrev_b32 v{q+6}, 6, v0
v_add_u32 v{q+6}, {TAB}, v{q+6}
v_cmp_gt_u32 vcc, 144, v0
v_cndmask_b32 v{q+6}, v{oor}, v{q+6}, vcc
v_and_b32 v{q+7}, 3, v0
v_lshl_add_u32 v{q+8}, v{q+7}, 2, v{q+6}
v_lshrrev_b32 v{q+7}, 1, v{q+7}
v_lshl_add_u32 v{q+7}, v{q+7}, 2, v{q+6}
v_lshlrev_b32 v{q+9}, 4, v0
v_add_u32 v{q+9}, {G2}, v{q+9}
v_cmp_gt_u32 vcc, 24, v0
v_cndmask_b32 v{q+9}, v{oor}, v{q+9}, vcc
v_mov_b32 v{z}, 0
v_mov_b32 v{z+1}, 0
v_mov_b32 v{z+2}, 0
v_mov_b32 v{z+3}, 0
ds_write_b128 v{q+6}, {r4(z)}
ds_write_b128 v{q+6}, {r4(z)} offset:16
ds_write_b128 v{q+6}, {r4(z)} offset:32
ds_write_b128 v{q+6}, {r4(z)} offset:48
ds_write_b16 v{q+8}, v{t+16}
ds_write_b16_d16_hi v{q+8}, v{t+16} offset:34
ds_write_b16 v{q+7}, v{t+17} offset:16
ds_write_b16_d16_hi v{q+7}, v{t+17} offset:48
ds_write_b16 v{q+7}, v{t+18} offset:24
ds_write_b16_d16_hi v{q+7}, v{t+18} offset:56
v_lshlrev_b32 v{z+4}, 16, v{t+20}
v_and_b32 v{z+5}, 0xffff0000, v{t+20}
v_lshlrev_b32 v{z+6}, 16, v{t+21}
v_and_b32 v{z+7}, 0xffff0000, v{t+21}
v_lshlrev_b32 v{z+8}, 16, v{t+22}
v_and_b32 v{z+9}, 0xffff0000, v{t+22}
v_lshlrev_b32 v{z+10}, 16, v{t+23}
v_and_b32 v{z+11}, 0xffff0000, v{t+23}
v_mul_f32 v{z+4}, v{z+4}, v{z+8}
v_mul_f32 v{z+5}, v{z+5}, v{z+9}
v_mul_f32 v{z+6}, v{z+6}, v{z+10}
v_mul_f32 v{z+7}, v{z+7}, v{z+11}
ds_write_b128 v{q+9}, {r4(z+4)}
"""
    def lutb(rs):
        L = []; W = []
        for n_, r in enumerate(rs):
            b = 160 + 8 * n_; two = lambda f: [f(b + 1, b + 3, b + 5), f(b + 2, b + 4, b + 6)]
            l = [f"v_add_u32 v{b}, {hex(0x10001000 * r)}, v{SC}", f"v_cvt_f32_f16 v{b+1}, v{b}", f"v_cvt_f32_f16_sdwa v{b+2}, v{b} dst_sel:DWORD dst_unused:UNUSED_PAD src0_sel:WORD_1"]
            if r < 5:
                for f in (lambda u, a, e: f"v_mul_f32 v{a}, {hex(f2u(A3))}, v{u}", lambda u, a, e: f"v_fma_f32 v{a}, v{a}, v{u}, s73", lambda u, a, e: f"v_mul_f32 v{a}, -v{u}, v{a}",
                          lambda u, a, e: f"v_exp_f32 v{e}, v{a}", lambda u, a, e: f"v_fma_f32 v{a}, v{e}, s{sK}, s{sK}", lambda u, a, e: f"v_rcp_f32 v{a}, v{a}",
                          lambda u, a, e: f"v_mul_f32 v{a}, v{u}, v{a}", lambda u, a, e: f"v_mul_f32 v{e}, -v{e}, v{a}"): l += two(f)
                l += [f"v_cvt_pk_bf16_f32 v{b+7}, v{b+5}, v{b+6}"]; W.append(f"ds_write_b32 v{SC+1}, v{b+7} offset:{8192+1024*r}")
            else: l += two(lambda u, a, e: f"v_mul_f32 v{a}, {hex(f2u(1 / K_))}, v{u}")
            L.append(l + [f"v_cvt_pk_bf16_f32 v{b}, v{b+3}, v{b+4}"]); W.append(f"ds_write_b32 v{SC+1}, v{b} offset:{1024*r}")
        return il(*L) + W
    lut = parse(f"""s_mov_b32 s73, {hex(f2u(C_))}
s_mov_b32 s{sK}, {hex(f2u(K_))}
v_mul_u32_u24 v{SC}, 0x100010, v0
v_add_u32 v{SC}, 0xc0004, v{SC}
v_lshlrev_b32 v{SC+1}, 2, v0
v_add_u32 v{SC+1}, {LUT}, v{SC+1}""")
    luts = [parse(lutb(rs)) for rs in ((0, 1), (2, 3), (4, 5), (6, 7))]; luts[0] = lut + luts[0]
    def src(nu, h, s): return a4(16 * nu + 8 * h + 4 * s) if nu < 6 else r4(ACC[0] + 16 * (nu - 6) + 8 * h + 4 * s)
    acc = lambda nu, h: 80 + 32 * (nu % 3) + 16 * h
    N95, R95, RB1, RG_ = (208, 192, 208), 176, WR, 208
    def xpose(d, f, cin=None): return [mm32("bf16", d, f(0), r4(ID), cin), mm32("bf16", d, f(1), r4(ID + 4))]
    def uxpose(w2, nu):
        l = il(*[xpose(acc(nu, h), lambda s: src(nu, h, s), "0" if w2 else r16(N95[nu // 3])) for h in range(2)])
        if not w2 and nu % 3 == 2: l += xpose(acc(nu, 1), lambda s: a4(RB1 + 4 * (nu // 3)))[1:]
        return l
    def un95(i): return (parse(f"s_mov_b32 s93, 0xfff8fff8\nv_mov_b32 v{SC}, {0x40004 if opt.get('wmask') == -1 else 0}") if opt.get("wmask", 0) < 0 and i == 0 else []) + parse([f"v_xor_b32 v{R95+4*i+e}, 0x80008000, v{R95+4*i+e}" for e in range(4)]) + xpose(N95[i], lambda s: r4(R95 + 4 * i), "0")
    def uload(w2, nu):
        i, k = divmod(nu, 3); l = []
        if opt.get("lin"): return parse(f"s_mul_i32 s74, s{sW}, 36864\ns_and_b32 s74, s74, 0xffff\ns_add_u32 s74, s74, {4096*nu}") + [I(f"buffer_load_dwordx4 {src(nu, h, s)}, v{vW[0]}, {srd(sW2 if w2 else sW1)}, s74 offen offset:{2048*h+1024*s}") for h in range(2) for s in range(2)]
        if w2:
            if k == 0: l = parse(f"s_mov_b32 s74, {24576*i}\ns_mov_b32 s75, {24576*i+6144}")
            return l + [I(f"buffer_load_dwordx4 {src(nu, h, s)}, v{pS}, {srd(sW2)}, s{74+(h if sg else s)} offen offset:{768*s+64*k if sg else 1536*h+64*k}") for h in range(2) for s in range(2)]
        return l + parse(f"s_mov_b32 s74, {24576*k}\ns_mov_b32 s75, {24576*k+12288}") + \
            [I(f"buffer_load_dwordx4 {src(nu, h, s)}, v{pS+h}, {srd(sW1)}, s{74+s} offen offset:{256*i}") for h in range(2) for s in range(2)]
    def wmk(d, w2):
        m = opt.get("wmask", 0) * (1 - w2)
        if m < 0: return parse([f"v_and_or_b32 v{d+r}, v{d+r}, s{87 if not opt.get('bou') else 93}, v{SC}" for r in range(4)])
        return parse([f"v_add_u32 v{d+r}, {hex((1 << m - 1) * 0x10001)}, v{d+r}" for r in range(4)] + [f"v_and_b32 v{d+r}, {hex((0xffff << m & 0xffff) * 0x10001)}, v{d+r}" for r in range(4)]) if m else []
    def ufin(w2, nu):
        i, k = divmod(nu, 3); P = []
        for e in range(4):
            dst = pD + 4 * (e & 1); sr = lambda r, x: acc(nu, r >> 1) + 8 * (r & 1) + 4 * x + e
            l = []
            if w2 and e % 2 == 0: l = parse([f"v_pk_mul_f32 v[{sr(r, x)}:{sr(r, x)+1}], v[{sr(r, x)}:{sr(r, x)+1}], v[{GK+4*k+e}:{GK+4*k+e+1}]" for r in range(4) for x in range(2)])
            l += parse([f"v_cvt_pk_{'bf16' if w2 else T1}_f32 v{dst+r}, v{sr(r, 0)}, v{sr(r, 1)}" for r in range(4)]) + wmk(dst, w2)
            if w2: l.append(I(f"ds_write_b128 v{pT+(e&1)}, {r4(dst)} offset:{6144+2048*k+128*(e>>1)}"))
            else: l.append(I(f"ds_write_b128 v{pT}, {r4(dst)} offset:{(10240 if i == 1 else 12288)*(e>>1)+1024*(2*k+(e&1))}"))
            P.append(l)
        if k == 2 and i < 2:
            P[3] += parse([f"v_{'sub' if i == 0 else 'add'}_u32 v{pT+e}, v{pT+e}, v{pE}" for e in range(1 + w2)])
        return P
    x = q + 6
    rowx = f"""
v_bfe_u32 v{x}, v{ln}, 2, 1
v_bfe_u32 v{x+1}, v{ln}, 3, 2
v_lshl_add_u32 v{x+1}, v{x}, 2, v{x+1}
v_and_b32 v{x+2}, 3, v{ln}
"""
    uaddr = [rowx + f"""v_lshl_add_u32 v{pN}, v{hh}, 2, v{x+2}
s_lshl_b32 s60, s{sW}, 7
v_lshl_add_u32 v{pN}, v{pN}, 4, s60
v_mul_u32_u24 v{x+1}, 768, v{x+1}
v_add_u32 v{pS}, v{x+1}, v{pN}
v_add_u32 v{pS+1}, 6144, v{pS}
v_and_b32 v{x+1}, 0x1c, v{ln}
v_cmp_eq_u32 vcc, 0x1c, v{x+1}
s_mov_b32 s72, {95*768}
s_mul_i32 s60, s{sW}, 24576
s_add_u32 s60, s60, {WB}
v_cndmask_b32 v{pN+1}, v{t+8}, v{pN}, vcc
v_lshl_add_u32 v{pT}, v{ln}, 4, s60
s_lshl_b32 s60, s{sW}, 12
s_add_u32 s60, s60, {WB}
v_mov_b32 v{pE}, s60
""" + "\n".join(f"buffer_load_dwordx4 {r4(R95+4*i)}, v{pN}, {srd(sW1)}, s72 offen offset:{256*i}\nbuffer_load_dwordx4 {a4(RB1+4*i)}, v{pN+1}, {srd(sB1)}, 0 offen offset:{256*i}" for i in range(3)), rowx + (f"v_lshl_add_u32 v{x+1}, v{x}, 2, v{x+1}\n" if sg else "") + f"""v_lshl_add_u32 v{x+1}, v{hh}, 4, v{x+1}
s_lshl_b32 s60, s{sW}, 6
s_sub_u32 s60, s60, 128
v_add_u32 v{x+1}, s60, v{x+1}
v_xor_b32 v{pN}, v{hh}, v{x+2}
v_lshlrev_b32 v{pN}, 4, v{pN}
v_mad_u32_u24 v{pS}, v{x+1}, s69, v{pN}
""" + (f"""v_bfe_u32 v{x+1}, v{ln}, 3, 2
v_lshl_add_u32 v{x+1}, v{x}, 2, v{x+1}
v_mul_u32_u24 v{x+1}, 384, v{x+1}
v_lshl_add_u32 v{x+1}, v{hh}, 6, v{x+1}
s_mul_i32 s61, s60, 192
v_add3_u32 v{pS}, v{x+1}, s61, v{pN}
""" if opt.get("fl") else "") + f"""s_lshl_b32 s60, s{sW}, 1
s_sub_u32 s60, s60, 4
v_add_u32 v{x+1}, s60, v{x}
v_lshlrev_b32 v{pE}, 11, v{x+1}
v_add_u32 v{pE}, {WB+2048}, v{pE}
v_mul_u32_u24 v{x+1}, 768, v{x+1}
v_lshl_add_u32 v{x+1}, v{x}, 2, v{x+1}
v_add_u32 v{x+1}, v{x+2}, v{x+1}
v_bfe_u32 v{x+2}, v{ln}, 3, 1
v_lshl_add_u32 v{x+1}, v{x+2}, 6, v{x+1}
v_lshrrev_b32 v{x+2}, 4, v{ln}
v_lshl_add_u32 v{x+1}, v{x+2}, 4, v{x+1}
v_lshlrev_b32 v{x+1}, 4, v{x+1}
v_add_u32 v{pT}, {WB}, v{x+1}
v_xor_b32 v{pT+1}, 64, v{pT}
""" + "\n".join(f"buffer_load_dwordx4 {r4(RG_+4*k)}, v{pN}, {srd(sGA)}, 0 offen offset:{64*k}" for k in range(3))]
    gfin = flat(xpose(GK + 4 * k, lambda s: r4(RG_ + 4 * k), "0") for k in range(3))
    bar = lambda: parse("s_waitcnt lgkmcnt(0)\ns_barrier")
    def resid_rd(qs): return [I(f"ds_read_b128 {a4(48*qq+4*f)}, v{vW[1]} offset:{12288*qq+1024*f}") for qq in qs for f in range(12)]
    xa = lambda: flat(xdma(0, 0, dfl)); xb = lambda: flat(xdma(1, 1, dfl)) + touch(dfl)
    n0, nh, xp = opt.get("n0", 3), opt.get("nh", 2), opt.get("xp", 9)
    spc_rd = [I(f"ds_read_b128 {a4(SPC+8*p+4*h)}, v{vW[0]} offset:{10240*p+4096+1024*h}") for p in range(4) for h in range(2)]
    greg = lambda g: (0, 1, 0)[g >> 2]
    def Bop(g, j, u, first=False):
        if first and opt.get("c0h") and 0 < g < 4: return "v", (((64, 68, 72), (76, 80, 84)), ((88, 92, 96), (100, 104, 108)), ((32, 36, 40), (44, 216, 220)))[g - 1][u][j]
        if first == 0 and opt.get("e4") and g in (2, 3):
            a_, y_ = ACC[0], YN[0]; return "v", (((a_, a_ + 4, a_ + 8), (a_ + 12, a_ + 32, a_ + 36)), ((y_ + 8, y_ + 12, y_ + 16), (y_ + 20, a_ + 40, a_ + 44)))[g - 2][u][j]
        if g % 2 == 0: return "a", WR + 12 * u + 4 * j
        return "v", ((Y[0], Y[0] + 4, Y[0] + 8), (Y[0] + 12, G[0], G[0] + 4))[u][j]
    opd = lambda fr, n=4: f"{fr[0]}[{fr[1]}:{fr[1]+n-1}]"
    def rdB(g, j, u, first=False):
        if g > 11: return []
        i = I(f"ds_read_b128 {opd(Bop(g, j, u, first))}, v{vPB+(4 if j else 0)+((g&3)^(3 if j == 2 else 0))} offset:{REG*greg(g)+SUB*u+(1280 if j == 2 else 0)}")
        return [tag(i, [RG(greg(g))], [RD(greg(g))])]
    UO = ((1, 0), (1, 1), (0, 1), (0, 0))
    def rdR(b): return [tag(I(f"ds_read_b128 {r4(cR[b]+8*u+4*o)}, v{vRS+o} offset:{REG*greg(4*b)+SUB*u}"), [RG(greg(4*b))], [RD(greg(4*b))]) for u, o in UO]
    plB = lambda g, first=False: [x for j in range(3) for u in range(2) for x in rdB(g, j, u, first)]
    po = opt.get("po")
    xsw = opt.get("xsw")
    S["head"] = H + ps() + wta + wsrd + wtouch + taba + (parse(f"s_cmp_eq_u32 s{sW}, 3\ns_cbranch_scc1 L_nt") + tabld[:3] + parse(f"s_cmp_lg_u32 s{sW}, 0\ns_cbranch_scc1 L_nt") + tabld[3:] + parse("L_nt:") if opt.get("tsk") else tabld) + (parse(f"s_bitcmp1_b32 s2, {xsw[0]}\ns_cbranch_scc1 L_prep2") if xsw else []) + parse(f"s_cmp_ge_u32 s{sW}, 2\ns_cbranch_scc1 L_prep1")
    pc0 = pc[0]; roles = range(4 if xsw else 2)
    for pv in roles:
        w2 = pv & 1; po = xsw[1] if pv > 1 else opt["po"]; po = po[w2] if isinstance(po, tuple) else po
        pc[0] = pc0; b1_, b2_ = (4, 6) if w2 else (3, 5)
        if 1:
            ua = uaddr[w2].strip().split("\n"); ug = [y for y in ua if y.startswith("buffer")]; ua = [y for y in ua if y not in ug]
            it = {"lane": parse(lanec), "a6": parse(last) + xdma(0, 0, opt.get("dfa", dfl), [6])[0], "dm": parse([x.text for x in dmk]), "tab": parse(tables), "g": parse(ug if "g2" not in po or w2 else ug[:3]), **({"g2": parse([] if w2 else ug[3:])} if "g2" in po else {}), "t": touch(dfl), "s": None, "gp": parse([x.text for x in gfin]) if w2 else un95(0) + un95(1)}
            it.update({f"x{k}": uxpose(w2, k) for k in range(2) if f"x{k}" in po})
            it.update({f"u{k}": uload(w2, k) for k in range(9)}); it.update({f"l{k}": parse([x.text for x in luts[k]]) for k in range(4)})
            if "xt" in po: it["xt"] = parse(f"""v_mul_u32_u24 v{t+6}, 205, v{ln}
v_lshrrev_b32 v{t+6}, 10, v{t+6}
v_mad_i32_i24 v{t+7}, v{t+6}, -5, v{ln}
v_mul_u32_u24 v{t+7}, 384, v{t+7}
v_mul_u32_u24 v{t+6}, {ROW}, v{t+6}
v_cmp_gt_u32 vcc, 50, v{ln}
v_add3_u32 v{t+6}, v{t+6}, s64, v{t+7}
v_cndmask_b32 v{t+6}, v{t+8}, v{t+6}, vcc
buffer_load_dword v250, v{t+6}, {srd(sX)}, 0 offen offset:64""")
            it.update({f"a{k}": xdma(0, 0, dfl, [k])[0] for k in range(opt.get("xn", 6), 6)})
            if po.index("dm") < po.index("a6"): it["dm"] = parse(last) + it["dm"]; it["a6"] = xdma(0, 0, dfl, [6])[0]
            for n_, Gq in (("b", 1),): it.update({f"{n_}{k}": x for k, x in enumerate(xdma(Gq, Gq, opt.get("dfb", dfl)))})
            P = parse(f"L_prep{pv}:") + (parse(f"s_cmp_ge_u32 s{sW}, 2\ns_cbranch_scc1 L_prep3") if pv == 2 else []) + parse(ua); late = {}; cur = P
            for x in po.split():
                if x == "a": S[f"pre{pv}"] = P + xloop(pv); S[f"br{pv}"] = parse(f"s_branch L_prb{pv}") if pv != 1 else []; P = cur = parse(f"L_prb{pv}:"); continue
                if x in ("hi", "lo"): cur += parse(f"s_setprio {2 * (x == 'hi')}"); continue
                if x[0] == "p": cur = late.setdefault(int(x[1:]), []); continue
                cur += ps() if x == "s" else xs(x) if x[0] == "y" else parse(f"s_waitcnt vmcnt({x[1:]})") if x[0] == "w" else it.pop(x)
            assert list(it) == ["s"], it
        if stamp == 7: pc[0] = 0
        P += xs("p1") + st(1) + ps() + flat(uxpose(w2, k) for k in range(2) if f"x{k}" not in po)
        rk_ = lambda k: [resid_rd((q_,))[f] for q_ in (0, 2, 3, 1) for f in (2 * k, 2 * k + 1, 6 + 2 * k, 7 + 2 * k)]
        r01 = spc_rd + rk_(0) + rk_(1); RR = {b1_: r01[:20], b1_ + 1: r01[20:], b2_: rk_(2)}; b3 = opt.get("b3")
        if not b3: r01 += rk_(2); RR = {b1_: r01[:28], b1_ + 1: r01[28:]}
        c0r = plB(0, 1) + plB(3, 1)[:5] + rdR(0) + plB(1, 1) + plB(2, 1) + plB(3, 1)[5:]; c0r = c0r if opt.get("c0h") else []; RR[7] = c0r[:opt.get("c0n", 20)]; RR[8] = c0r[len(RR[7]):]
        if opt.get("la"):
            P = P[:len(P) - len(uxpose(w2, 1))]; r01 = resid_rd((0, 2, 3)) + spc_rd + resid_rd((1,)); late_x = opt["la"] == 2
            XU = {nu: [nu + 1] for nu in range(b1_ - late_x)}; XU[b1_] = [b1_ + 1, b1_ + 2]; XU.update({nu: [nu + 2] for nu in range(b1_ + 1, 7)})
            for nu in range(9):
                nx = flat(uxpose(w2, k) for k in XU.get(nu, [])); f = ufin(w2, nu); l = list(late.get(nu, [])); r = []
                if nu == b1_:
                    P += ps() + bar() + xs("p3") + ps()
                    if late_x: P += flat([m] + r01[3*k:3*k+3] for k, m in enumerate(uxpose(w2, nu)[:4])) + uxpose(w2, nu)[4:] + r01[12:18]; r01 = r01[18:]
                    if not w2: x_ = un95(2); P += x_[:4]; nx += x_[4:]
                    r = r01[:len(r01) // 2]
                if nu == b1_ + 1: r = r01[len(r01) // 2:]
                one = nu < b1_
                if one: P += nx[:1]; nx = nx[1:]
                per = -(-len(nx) // (3 if one else 4))
                for e in range(4):
                    k_ = [i.kind for i in f[e]].index("dsw"); m = nx[per*e:per*e+per]
                    P += f[e][:k_-2] + m[:-1] + f[e][k_-2:k_] + m[-1:]
                    if e == 0 and nu == b2_: P += ps() + bar() + xs("p4") + ps()
                    P += f[e][k_:k_+1] + r[len(r)*e//4:len(r)*(e+1)//4] + l[len(l)*e//4:len(l)*(e+1)//4] + f[e][k_+1:]
                P += ps()
        for nu in range(0 if opt.get("la") else 9):
            nx = uxpose(w2, nu + 2) if nu < 7 else []
            if nu == 2 and not w2: x_ = un95(2); P += x_[:4]; nx += x_[4:]
            f = ufin(w2, nu); l = list(late.get(nu, [])); r = RR.get(nu, []); ne = 2 if nu == 8 else 4
            for e in range(4):
                k_ = [i.kind for i in f[e]].index("dsw")
                P += f[e][:k_] + nx[e:e+1]
                if e == 3 and nu < 6: P += [use(*[src(nu + 3, h, s_) for h in range(2) for s_ in range(2)])]
                if e == 0 and nu in (b1_, b2_, 8 if b3 else -1): P += ps() + bar() + xs({b1_: "p3", b2_: "p4", 8: "p5"}[nu]) + ps()
                P += f[e][k_:k_+1] + r[len(r)*e//ne:len(r)*(e+1)//ne] + l[len(l)*e//4:len(l)*(e+1)//4] + f[e][k_+1:]
            P += nx[4:] + ps()
        if opt.get("now"):
            P = [i for i in P if not (i.kind == "vml" and ("s", sW1) in i.rd | {("s", x - 4) for y, x in i.rd if y == "s" and x == sW2})]
            k_ = [n_ for n_, i in enumerate(P) if i.kind == "mfma"][0]; P = P[:k_] + [i for i in P[k_:] if i.kind in ("vmd", "sml", "wait") or ("s", "m0") in i.wr or (i.kind == "vml")] + bar()
        S[f"prep{pv}"] = P + xs("p2") + (parse("s_branch L_conv0") if pv != 0 else [])
    def res(p, f): return a4(48 * POS[p][1] + 4 * f)
    sfl = opt.get("sfl", "")
    g1 = lambda f, u, o, a: mm16(T1, Y[u] + 8 * o + 4 * (f & 1), a, r4(YN[u] + 8 * (f >> 1) + 4 * o), "0" if f < 2 else None)
    Areg = lambda u, o, rb: ACC[u] + 16 * (rb >> 1) + 8 * o + 4 * (rb & 1)
    BUF = [U + 16 * k for k in [(0, 2, 1)[j % 3] for j in range(19)] + [1, 2, 0, 2, 0]]
    def g2(f, u, o, a, j):
        if sg: return I(f"v_smfmac_f32_16x16x64_bf16 {r4(Areg(u, o, f - 6))}, {a}, v[{BUF[j]+8*o}:{BUF[j]+8*o+7}], v{vIDX} abid:1")
        return mm16("bf16", Areg(u, o, f - 6), a, r4(G[u] + 4 * o))
    gm = lambda f, u, o, a, j: g1(f, u, o, a) if f < 6 else g2(f, u, o, a, j - 2 + u)
    def epi_mm(u, o): return [g2(f, u, o, res(11, f), 23) for f in range(6, 12)]
    def epi(u, o, b, fl):
        d = Areg(u, o, 2 * b)
        return parse([f"v_cvt_pk_bf16_f32 v{d+e}, v{d+2*e}, v{d+2*e+1}" for e in range(4)] +
                     [f"buffer_store_dwordx4 {r4(d)}, v{vO}, {srd(sO)}, s{sOF[2*u+o]} offen offset:{64*b} {fl}".rstrip()])
    rdAD = lambda g: [I(f"ds_read_b128 {r4(cAD+4*(g&1))}, v{vA} offset:{256*g}")] if g < 12 else []
    rdAS = lambda g: [I(f"ds_read_b128 {r4(cAS+4*(g&1))}, v{vA} offset:{256*g+16}")] if g < 12 else []
    def mmR(b):
        return [I(f"v_mfma_f32_16x16x16_bf16 {r4(Areg(u, o, 2*b+s))}, v[{vID}:{vID+1}], v[{cR[b]+8*u+4*o+2*s}:{cR[b]+8*u+4*o+2*s+1}], {r4(Areg(0, 0, 2*b+s))}") for u, o in UO for s in range(2)]
    cinit = lambda b: [I(f"ds_read_b128 {r4(Areg(0, 0, 2*b+s))}, v{vCT} offset:{128*b+16*s}") for s in range(2)]
    def cmm(g, j, u, first):
        cc = r4(Creg(u, g))
        if j == 0: return I(f"v_mfma_f32_16x16x32_bf16 {cc}, {r4(cAD+4*(g&1))}, {opd(Bop(g, 0, u, first))}, 0")
        return I(f"v_smfmac_f32_16x16x64_bf16 {cc}, {r4(cAS+4*(g&1))}, {opd(Bop(g, 1, u, first), 8)}, v{vIDX}")
    def cvt16(u, g):
        cc = Creg(u, g); d = Creg(u, g & ~1) + 2 * (g & 1)
        return parse([f"v_cvt_pkrtz_f16_f32 v{d+e}, v{cc+2*e}, v{cc+2*e+1}" for e in range(2)])
    def dots(u, g):
        d = Creg(u, g & ~1) + 2 * (g & 1); vQ = vSQ[u] + 1
        c = lambda r, e: 0 if g == 0 and e == 0 else f"v{r}"
        return parse([x for e in range(2) for x in [f"v_dot2_f32_f16 v{vQ}, v{d+e}, v{d+e}, {c(vQ, e)}"] + ([] if sm else [f"v_dot2_f32_f16 v{vQ-1}, v{d+e}, s{sONE}, {c(vQ-1, e)}"])])
    summ = lambda kk: [mm16("f16", vSM[u], a4(ONES), r4(YN[u] + 4 * kk), "0" if kk == 0 else None) for u in range(2 * sm)]
    swaps = lambda u, ks: parse([f"v_permlane16_swap_b32 v{YN[u]+8*ks+e}, v{YN[u]+8*ks+4+e}" for e in range(4)])
    DOT = ("x", "dot")
    def dbatch(gs):
        l = flat(il(dots(0, g), dots(1, g)) for g in gs)
        if l: tag(l[0], [DOT]); tag(l[-1], (), [DOT])
        return l
    def fence(l):
        for i in l:
            if i.kind == "mfma" or i.op.startswith("v_dot"):
                if i.kind == "mfma": tag(i, [DOT])
        return l
    spc = lambda p, f: p < 4 and f in (6, 7)
    uses = [(0, f) for f in range(6)]
    for p in range(8): uses += ([(p + 1, f) for f in range(6)] if p < 7 else []) + [(p, f) for f in range(6, 12)]
    uses = [x for x in uses if not spc(*x)]
    def wread(k):
        if k >= len(uses): return []
        p, f = uses[k]
        return [I(f"ds_read_b128 {a4(WR+4*(k%6))}, v{vW[p//4]} offset:{10240*p+1024*(f - 2 * (f > 5)) if p < 4 else 12288*(p-4)+1024*f}")]
    def frag(p, f):
        if p >= 8: return res(p, f), []
        if spc(p, f): return a4(SPC + 8 * p + 4 * (f - 6)), []
        k = uses.index((p, f)); return a4(WR + 4 * (k % 6)), wread(k + 6)
    db = opt.get("db", (3, 6, 9))
    def place(X, pos, items):
        for q_, x in zip(pos, items): X.setdefault(q_, []).extend(x if isinstance(x, list) else [x])
    dp = opt.get("dp", (0, 1, 2, 3, 4, 5, 6) if opt.get("e4") else (7, 8, 9, 10, 11, 12, 13))
    bst = opt.get("bst", (15, 16, 28, 32, 36, 40))
    sadd = lambda: parse(f"v_add_u32 v{vO}, s{sVO}, v{vO}\ns_mov_b32 s{sVO}, {DR}")
    def conv(first, fl=""):
        B = []; X = {}; V = {}
        nb = lambda g: (4 if g == 0 else 99 if g < 4 else g + 2) if first and opt.get("c0h") else (g + 4 if g < 2 else 99 if g < 4 else g + 2) if opt.get("e4") and not first else g + 2
        if first and not opt.get("c0h"):
            B += rdAD(0) + plB(0)[:2] + rdAS(0) + plB(0)[2:] + rdAD(1) + rdAS(1) + plB(1)
            place(X, opt.get("r00", (1, 3, 5, 7)), rdR(0)); place(X, opt.get("ci00", (12, 13)), cinit(0)); place(X, opt.get("dp0", (7, 8, 9, 10, 11, 12, 13)), xdma(2, 0, dfl))
        elif first: B += rdAD(0) + rdAS(0) + rdAD(1) + rdAS(1) + plB(5); place(X, opt.get("ci00", (15, 15)), cinit(0)); place(X, opt.get("dp0", (0, 1, 2, 3, 4, 5, 6)), xdma(2, 0, dfl))
        else:
            e = [epi(1, o, b, fl) for b in range(3) for o in range(2)]
            place(X, opt.get("emp", (7, 7, 8, 9, 10, 11)), epi_mm(1, 1))
            place(X, opt.get("ci0", (12, 13)), cinit(0))
            place(V, opt.get("epv", (2, 3, 5, 6, 7, 8)), [x[:4] for x in e])
            place(X, bst, [x[4] for x in e])
            if max(bst) < 48: place(X, [45], [sadd()])
            place(X, dp, xdma(2, 0, opt.get("dfl2", "")))
        z = "0" if first else ""
        place(X, opt.get("rp" + z, (17, 18, 19, 20, 21, 22, 23, 24)), mmR(0))
        place(X, opt.get("r1p" + z, (16, 18, 20, 22)), rdR(1))
        place(X, opt.get("cip" + z, (38, 39, 41, 42)), cinit(1) + cinit(2))
        place(X, opt.get("w0p" + z, (44, 44, 45, 45, 46, 47)), [wread(k) for k in range(4 if first else 6)])
        dbs = set(opt.get("db0", db)) | {max(db)} if first else db
        if opt.get("cst") and stamp == 1: place(X, opt["cst"], [[lq(2 + k)] for k in range(12)])
        dn = sn = 0
        for g in range(12):
            x = lambda k: X.get(4 * g + k, [])
            if g: B += il(cvt16(0, g - 1), cvt16(1, g - 1))
            B += V.get(g, [])
            B += [cmm(g, 0, 0, first)] + rdB(nb(g), 0, 0, first) + x(0) + [cmm(g, 0, 1, first)] + rdB(nb(g), 0, 1, first) + rdAD(g + 2) + x(1)
            B += [cmm(g, 1, 0, first)] + rdB(nb(g), 1, 0, first) + rdB(nb(g), 2, 0, first) + x(2) + [cmm(g, 1, 1, first)] + rdB(nb(g), 1, 1, first) + rdB(nb(g), 2, 1, first) + rdAS(g + 2) + x(3)
            if g % 2 == 0 and g: B += summ(g // 2 - 1)
            if g in dbs and g <= max(db): B += dbatch(range(dn, g)); dn = g
            while sw1 and 4 * sn + 4 <= min(dn, g & ~1): B += il(swaps(0, sn), swaps(1, sn)); sn += 1
        for i in B:
            if i.kind == "mfma": i.cap = opt.get("ccap" + z, 6)
        return fence(B)
    def lnfin(u):
        vS, vQ = vSQ[u], vSQ[u] + 1
        return parse((f"""
v_mov_b32 v{vS}, v{vQ}
v_permlane32_swap_b32 v{vS}, v{vQ}
v_add_f32 v{vQ}, v{vS}, v{vQ}
v_mul_f32 v{vS}, {hex(f2u(1/96))}, v{vSM[u]}""" if sm else f"""
v_permlane32_swap_b32 v{vS}, v{vQ}
v_add_f32 v{vS}, v{vS}, v{vQ}
v_mov_b32 v{vQ}, v{vS}
v_permlane32_swap_b32 v{vS}, v{vQ}
v_mul_f32 v{vS}, {hex(f2u(1/96))}, v{vS}""") + f"""
v_mul_f32 v{vQ}, {hex(f2u(1/96))}, v{vQ}
v_fma_f32 v{vQ}, -v{vS}, v{vS}, v{vQ}
v_max_f32 v{vQ}, 0, v{vQ}
v_add_f32 v{vQ}, {hex(f2u(1e-5))}, v{vQ}
v_rsq_f32 v{vQ}, v{vQ}
v_fma_mixlo_f16 v{vQ}, v{vQ}, s{sK}, 0
v_fma_mixhi_f16 v{vQ}, -v{vS}, v{vQ}, 0 op_sel_hi:[0,1,0]""" + (f"\nv_mov_b32 v{vS}, v{vQ}\nv_permlane16_swap_b32 v{vQ}, v{vS}" if sw1 else ""))
    nxt = parse(f"s_cmp_eq_u32 s{sT}, 3\ns_cselect_b32 s{sINC}, 0x40000000, {DR}" + (f"\ns_cselect_b32 s{sIMG}, 0x30000, s{sIMG}" if opt.get("lo3") else "")) + parse([f"v_add_u32 v{r}, s{sINC}, v{r}" for r in list(range(vDM, vDM + 7)) + [vTC] * (not opt.get("nt_"))])
    def norm(u, kk):
        p = vSQ[u] + (1 - (kk & 1) if sw1 else 1); r = YN[u] + 4 * kk; c5 = kk >= (4 if sw1 else 5)
        l = [f"v_pk_fma_f16 v{r+e}, v{r+e}, v{p}, v{p} op_sel:[0,0,1] op_sel_hi:[1,0,1]" for e in ((3, 0, 1, 2) if c5 else range(4))]
        if T1 == "bf16":
            es = (3, 0, 1, 2) if c5 else range(4); t_ = vSM[u]
            l = [f"v_fma_mix_f32 v{t_+e}, v{r+e}, v{p}, v{p} op_sel:[0,0,1] op_sel_hi:[1,1,1]" for e in es] + [f"v_fma_mix_f32 v{r+e}, v{r+e}, v{p}, v{p} op_sel:[1,0,1] op_sel_hi:[1,1,1]" for e in es]
            l += [f"v_cvt_pk_bf16_f32 v{r+e}, v{t_+e}, v{r+e}" for e in es]
        if c5: l = l[:-1] + [f"v_bfi_b32 v{r+3}, v{vMK}, v{r+3}, s{sKB}"] + l[-1:]
        return parse(l) + (swaps(u, kk >> 1) if kk & 1 and not sw1 else [])
    la, lk, ln_, mr = opt.get("lnv", (0, 6, 0, 0)); k0 = min(max(db), 10) // 4
    B = il(cvt16(0, 11), cvt16(1, 11)) + summ(5) + ([] if ln_ else nxt) + dbatch(range(max(db), 12)); m = mmR(1); r = rdR(2)
    mm_ = [m[0]] + r[:2] + [m[1]] + r[2:] + m[2:]
    sB = flat(swaps(1, ks) for ks in range(k0, 3))
    if la == 2: B += il(lnfin(0), flat(swaps(0, ks) for ks in range(k0, 3))) + (mm_ if not mr else [])
    elif la: B += il(lnfin(0), flat(swaps(u, ks) for u in range(2) for ks in range(k0, 3)) if sw1 else []) + (mm_ if not mr else [])
    else: B += (flat(il(swaps(0, ks), swaps(1, ks)) for ks in range(k0, 3)) if sw1 else []) + il(lnfin(0), lnfin(1)) + (mm_ if not mr else [])
    if opt.get("om") and sw1:
        for o in range(2):
            for ks in range(3): B += norm(0, 2 * ks + o) + [g1(f, 0, o, frag(0, f)[0]) for f in (2 * ks, 2 * ks + 1)]
    else:
        for ks in range(3): B += norm(0, 2 * ks) + norm(0, 2 * ks + 1) + [g1(f, 0, o, frag(0, f)[0]) for f in (2 * ks, 2 * ks + 1) for o in range(2)]
    if mr: B += mm_
    rest = (lnfin(1) if la == 1 else il(lnfin(1), sB) if la == 2 else []) + flat(norm(1, kk) for kk in range(6))
    nr = len(rest) - len(flat(norm(1, kk) for kk in range(lk, 6))) if lk >= 0 else max(0, 8 * (lk + 4))
    B += rest[:nr]; late0 = rest[nr:] + (nxt if ln_ else [])
    LN = fence(B)
    def sd(op, d, s): return f"{op}_sdwa v{d}, v{s} dst_sel:WORD_1 dst_unused:UNUSED_PRESERVE src0_sel:WORD_1"
    pool = list(range(U, U + 24)) + opt.get("pool", []); pk = [0]
    def take():
        pk[0] += 1; return pool[(pk[0] - 1) % len(pool)]
    def gelu(u, L, j):
        X = [i for i in range(8) if i not in L]
        V = gelu_(u, L, X)
        if not opt.get("pool"): return V
        m = {}
        for i in L + X:
            if sg: m[E + i] = BUF[j] + 2 * i; m[T + i] = BUF[j] + 2 * i + 1; m[U + i] = m[T + i] if i in L else (0, vTC)[X.index(i)]; continue
            m[T + i] = take(); m[E + i] = take(); m[U + i] = m[T + i] if i in L else take()
        import re
        return [parse([re.sub(r"\bv(\d+)\b", lambda z: f"v{m.get(int(z.group(1)), int(z.group(1)))}", i.text) for i in l]) for l in V]
    def gelu_(u, L, X):
        cvt = [f"v_cvt_pkrtz_f16_f32 v{U+i}, v{Y[u]+2*i}, v{Y[u]+2*i+1}" for i in L + X]
        sh = [f"v_pk_lshrrev_b16 v{T+i}, 3, v{U+i} op_sel_hi:[0,1]" for i in L]
        ma = [x for i in L for x in (f"v_mad_u32_u16 v{E+i}, v{T+i}, 2, s{sLUT}", f"v_alignbit_b32 v{T+i}, 1, v{T+i}, 15" if opt.get("alb") else f"v_mad_u32_u16 v{T+i}, v{T+i}, 2, s{sLUT} op_sel:[1,0,0,0]")]
        ga = [x for i in L for x in (f"ds_read_u16 v{E+i}, v{E+i}", f"ds_read_u16{'' if sg else '_d16_hi'} v{T+i}, v{T+i}" + (f" offset:{LUT - 0x20000}" if opt.get("alb") else ""))]
        fma = [f"v_pk_fma_f16 v{T+i}, v{U+i}, v{U+i}, s{sC}" for i in X]
        mul = [f"v_pk_mul_f16 v{T+i}, v{T+i}, v{U+i} neg_lo:[1,0] neg_hi:[1,0]" for i in X]
        el = [f"v_exp_f16 v{E+i}, v{T+i}" for i in X]; eh = [sd("v_exp_f16", E + i, T + i) for i in X]
        ad = [f"v_pk_fma_f16 v{E+i}, v{E+i}, s{sKK}, s{sKK}" for i in X]
        rl = [f"v_rcp_f16 v{T+i}, v{E+i}" for i in X]; rh = [sd("v_rcp_f16", T + i, E + i) for i in X]
        fin = [f"v_or_b32 v{G[u]+i}, v{E+i}, v{T+i}" if i in L else f"v_pk_mul_f16 v{G[u]+i}, v{T+i}, v{U+i}" for i in L + X]
        if 1:
            rh += [f"v_fma_mix_f32 v{E+i}, v{T+i}, v{U+i}, 0 op_sel_hi:[1,1,0]" for i in X] + [f"v_fma_mix_f32 v{T+i}, v{T+i}, v{U+i}, 0 op_sel:[1,1,0] op_sel_hi:[1,1,0]" for i in X]
            fin = fin[:len(L)] + [f"v_cvt_pk_bf16_f32 v{G[u]+i}, v{E+i}, v{T+i}" for i in X]
        if sg: fin = [f"v_cvt_pk_bf16_f32 v{r+i}, v{r+i}, v{r+i}" for i in X for r in (E, T)]
        v1 = cvt + sh + ma
        if opt.get("vch"):
            c_ = opt["vch"]; v1 = [x for k in range(0, 8, c_) for x in cvt[k:k+c_] + sh[k:k+c_] + ma[2*k:2*k+2*c_]]
            if u == 1 or opt.get("vc1"): v1 = cvt[:c_] + sh[:c_] + cvt[c_:] + [x for x in v1 if x not in cvt and x not in sh[:c_]]
        return parse(v1), parse(ga), parse(fma + mul + el + eh + ad + rl + rh), parse(fin)
    pf = xdma(1, 1, opt.get("xfl", "")) + xdma(0, 0, opt.get("xfl", "")) + [touch(opt.get("xfl", ""))]
    pp = opt.get("pfpos", [(j, 12 if j else 6) for j in range(15)])
    slots = [(p, u) for p in range(8) for u in range(2)] + [(p, u) for u in range(2) for p in range(8, 12)]
    ea = [epi(0, o, b, sfl) for b in range(3) for o in range(2)]
    XS = {}; XV = {}
    place(XS, pp, pf)
    place(XS, opt.get("ast", ((21, 6), (21, 16), (22, 2), (22, 12), (22, 22), (23, 8))), [x[4] for x in ea])
    place(XV, opt.get("asv", (21, 21, 22, 22, 22, 23)), [x[:4] for x in ea])
    place(XS, opt.get("epos", [(19, 2 + 4 * k) for k in range(6)] + [(21, 2 + 4 * k) for k in range(6)] + [(23, k) for k in (0, 2, 4, 6, 9, 10, 11, 12)]), plB(0) + plB(1) + rdAD(0) + rdAS(0) + rdAD(1) + rdAS(1) + rdR(0))
    if opt.get("e4"): place(XS, opt.get("ep4", [(23, 9 + k) for k in range(6)] + [(22, 2), (22, 6), (22, 10), (23, 15), (22, 14), (23, 16)]), plB(2) + plB(3))
    place(XS, [(23, 18 + k) for k in dp if k < 0], xdma(2, 0, opt.get("dfl2", "")))
    for c_ in ([opt["cpp"]] if opt.get("cpp") else []) + opt.get("cpq", []): x_ = cpl(); place(XV, [c_[0]], [x_[:2]]); place(XS, [c_], x_[2:])
    place(XS, [(23, 17)], [parse(f"s_add_u32 s{sT}, s{sT}, 1\ns_cmp_eq_u32 s{sT}, 4")])
    nl = opt.get("nl", [4] * 24)
    def slot(j):
        p, u = slots[j]; M = []
        if j == 0:
            for f in range(6): a, post = frag(0, f); M += [[g1(f, 1, 0, a)], [g1(f, 1, 1, a)] + post]
            M += [[x] for x in mmR(2)]
        elif j < 15:
            pp_, fs = (p + 1, range(6)) if u else (p - 1, range(6, 12)); k_ = opt.get("lead", 1)
            a_ = [[[gm(f, 0, o, frag(pp_, f)[0], j)] for o in range(2)] for f in fs]; b_ = [[[gm(f, 1, 0, frag(pp_, f)[0], j)], [gm(f, 1, 1, frag(pp_, f)[0], j)] + frag(pp_, f)[1]] for f in fs]
            M = flat(a_[:k_] + [x for z in range(6) for x in (b_[z:z+1] + a_[z+k_:z+k_+1])])
        else:
            p2, u2 = slots[j - 1]
            M = [[g2(f, u2, o, frag(p2, f)[0], j - 1)] for o in range(2) for f in range(6, 12)]
            if j < 23:
                p1, u1 = slots[j + 1]; m1 = [[g1(f, u1, o, res(p1, f))] for o in range(2) for f in range(6)]; k_, e_ = opt.get("mord", (2, 2))
                M = M[:k_] + il(m1, M[k_:12-e_]) + M[12-e_:]
        n_ = nl[j]; L = list(range(n_)) if j == 23 or opt.get("lo", 1) else list(range(8 - n_, 8))
        V1, ga, V2, fin = gelu(u, L, j)
        for x in ga: x.free = 1
        M[0] += ga
        if j == 23:
            k_ = 0 if sg else 4; em = epi_mm(1, 0); M += [fin[:k_] + [em[0]]] + [[x] for x in em[1:]]; fin = fin[k_:]
            assert n_ >= 4
        B = (V1[:opt.get("v1k", 99)] + late0 + V1[opt.get("v1k", 99):] if j == 0 else V1) + XV.get(j, [])
        if j % 2 == 0 and not opt.get('cst'): M[0].insert(1, lq(2 + j // 2))
        for k, e in enumerate(M): B += [x for x in e if x] + XS.get((j, k), [])
        return B + V2 + fin
    sp = opt.get("sp", {})
    rdreg = [{i.text for b in range(3) for i in rdR(b) + flat(plB(4 * b + g) for g in range(4)) if RG(k) in i.rd} for k in range(2)]
    mid = LN + flat(slot(j) for j in range(24))
    if opt.get("sig"):
        sig = {}; cv = conv(False, sfl); lw = {}; cnt = {}
        for i in conv(True) + wread(4) + wread(5) + mid + cv + mid + cv + mid:
            cnt[i.text] = cnt.get(i.text, 0) + 1; key = (i.text, cnt[i.text])
            sig[key] = {(r, lw.get(r)) for r in i.rd if r not in (DOT, RD(0), RD(1))}
            if i.kind == "vmd": sig[key].add(sum(v for k_, v in cnt.items() if k_ in rdreg[RG(0) not in i.wr]))
            for r in i.wr: lw[r] = key
        sig["period"] = sorted(i.text for i in cv + mid); sig["first"] = sorted(i.text for i in conv(True) if not i.op.startswith(("v_dot", "v_perm")))
        return sig
    def run(l, t):
        o, tm, t = sched.schedule(l, t, **sp); return o, tm, t
    sp0 = dict(sp, **opt.get('sp0', {}))
    c0, tc0, _ = sched.schedule(conv(True), None, **sp0)
    cv = conv(False, sfl); t_ = None
    for it in range(2):
        t0 = t_.tv if t_ else 0
        oc, tc, t_ = run(cv, t_); t1 = t_.tv
        om, tm, t_ = run(mid, t_); t2 = t_.tv
    model = dict(conv=t1 - t0, mid=t2 - t1, tile=t2 - t0)
    if opt.get("dump"):
        for x, y in list(zip(tc, oc)) + list(zip(tm, om)): print(f"{x-t0:6d} {y.text}")
    if stamp == 1:
        tt = [0, t1 - t0] + [x - t0 for x, y in zip(tm, om) if y.text.startswith("s_memtime")] + [t2 - t0]
        print("model", [b - a for a, b in zip(tt, tt[1:])])
    abl = opt.get("abl", ())
    def cls(i):
        x = i.text
        if i.kind == "dsr": return "gat" if "u16" in x else "wrd" if f"v{vW[0]} " in x or f"v{vW[1]} " in x else "crd"
        if i.kind == "mfma": return "res" if "16x16x16" in x else "g1" if any(("v", Y[0] + k) in i.wr for k in range(32)) else "g2" if ", a[" in x.split("], ")[0] + "], "[:0] + x[x.index("], "):x.index("], ")+5] else "cmm"
        if i.kind == "valu": return "tr" if i.trans else "adr" if "mad_u32_u16" in x or "lshrrev_b16" in x else "dot" if "dot2" in x else "pk" if "v_pk_" in x else "cvt" if "cvt" in x else "val"
        return i.kind
    def ablate(o, tm):
        z = [(i, t) for i, t in zip(o, tm) if cls(i) not in abl]
        if opt.get("pad"):
            z = [y for k, (i, t) in enumerate(z) for y in ([(i, t), (I(f"s_nop {opt['pad'][1]}"), t)] if i.kind == "valu" and k % opt["pad"][0] == 0 else [(i, t)])]
        if opt.get("add"):
            kind, every = opt["add"]; y = []; n_ = 0
            for i, t in z:
                if i.kind == "mfma" and "16x16x32" in i.op and i.text.split(", ")[1][0] == "a":
                    n_ += 1
                    if n_ % every == 0:
                        p_ = i.text.split(", "); b0 = i.b[0][1]
                        y.append((I({"v": f"v_xor_b32 v255, v{b0}, v{b0+1}", "p": f"v_pk_mul_f16 v255, v{b0}, v{b0+1}", "e": f"v_exp_f16 v255, v{b0}",
                                     "m": f"{i.op} a[224:227], {p_[1]}, {p_[2]}, a[224:227]", "z": f"{i.op} a[224:227], {p_[1]}, {p_[2]}, 0"}[kind]), t))
                y.append((i, t))
            z = y
        return [a for a, b in z], [b for a, b in z]
    oc, tc = ablate(oc, tc); om, tm = ablate(om, tm)
    carry = lambda l: {r for i in l if i.kind in ("dsr", "vmd") for r in i.wr}
    def cbar(l):
        bp = opt["bp"]; o = []; n_ = 0
        def blk(w):
            wt = I("s_barrier", ws=0); wt.text = "s_waitcnt lgkmcnt(0)"
            return parse(f"s_cmp_lg_u32 s{sW}, {w}\ns_cbranch_scc1 L_cb{w}") + [wt, I("s_barrier", ws=0)] + parse(f"L_cb{w}:")
        for i in l:
            if i.kind == "mfma":
                for w in range(4):
                    if bp[w] == n_: o += blk(w)
                n_ += 1
            o.append(i)
        return o
    fl7 = lambda: parse("s_waitcnt lgkmcnt(0)\nv_mov_b32 v255, 0") + flat(parse(f"s_sub_u32 s{r}, s{r}, s97\nv_writelane_b32 v255, s{r}, {k}") for k, r in enumerate((list(range(4, 20, 2)) + list(range(28, 44, 2)) + [88, 90, 92])[:pc[0]])) if stamp == 7 else []
    h0 = sched.hoist(c0, tc0, sp0, carry(c0r))
    if uni:
        rd0 = plB(0) + plB(1) + plB(2) + plB(3) + rdR(0) + rdAD(0) + rdAS(0) + rdAD(1) + rdAS(1); assert opt.get("e4") and max(dp) < 0
        d2 = xdma(2, 0, dfl); d2 = flat(d[:1] + rd0[28+k:29+k] + d[1:] for k, d in enumerate(d2)); wv = parse("s_waitcnt vmcnt(0)"); w7 = parse("s_waitcnt vmcnt(7)")
        pre0 = [rd0[:28] + wv + bar() + d2, bar() + rd0[:28] + wv + d2, rd0[:28] + wv + d2 + bar(), rd0[:14] + bar() + rd0[14:28] + wv + d2,
                bar() + rd0[:28] + d2 + w7, rd0[:14] + bar() + rd0[14:28] + d2 + w7, rd0[:22] + bar() + rd0[22:28] + d2 + w7][opt.get("pv", 4)]
        S["conv0"] = parse("L_conv0:") + ps() + (cpa if opt.get("cpp") else []) + (parse(f"s_movk_i32 s60, {opt['delay']}\nL_dl:\ns_sub_u32 s60, s60, 1\ns_cbranch_scc0 L_dl") if opt.get("delay") else []) + pre0 + st(2) + xs("m0") + ps() + fl7() + (parse("v_accvgpr_write_b32 a224, v255") if stamp in (1, 3, 7) else []) + parse("s_branch L_conv")
    else: S["conv0"] = parse("L_conv0:") + ps() + (parse("v_accvgpr_write_b32 a224, v255") if stamp == 3 else []) + cpa + [x for x in [lq(0)] if x] + ls(0, 5) + (cbar(h0) if opt.get("bp") else h0) + (parse("v_accvgpr_read_b32 v255, a224") if stamp == 3 else []) + ps() + ([] if opt.get("bp") else bar()) + wread(4) + wread(5) + (parse(f"s_mul_i32 s60, s{sW}, {opt['skew']}\nL_sk:\ns_sub_u32 s60, s60, 1\ns_cbranch_scc0 L_sk") if opt.get("skew") else []) + st(2) + xs("m0") + ps() + (parse("v_accvgpr_write_b32 a224, v255") if stamp in (1, 3) else []) + parse("s_branch L_mid")
    xc_ = flat(parse(f"s_cmp_lg_u32 s{sT}, {tt}\ns_cbranch_scc1 L_xc{tt}") + xs(f"c{tt}") + parse(f"L_xc{tt}:") for tt in range(4) if xs(f"c{tt}"))
    S["conv"] = parse("L_conv:") + xc_ + [x for x in [lq(0)] if x] + ls(0, 5) + sched.hoist(oc, tc, sp, carry(mid))
    xt_ = flat(parse(f"s_cmp_lg_u32 s{sT}, {tt}\ns_cbranch_scc1 L_xs{tt}") + xs(f"t{tt}") + parse(f"L_xs{tt}:") for tt in range(4) if xs(f"t{tt}"))
    S["mid"] = parse("L_mid:") + xt_ + [x for x in [lq(1)] if x] + ls(15, 5) + sched.hoist(om, tm, sp, carry(cv)) + lqf() + (parse(f"s_cmp_eq_u32 s{sT}, 4") if stamp in (1, 5) else []) + parse("s_cbranch_scc0 L_conv" + ("" if uni else "\ns_branch L_final"))
    fl = opt.get("sflf", sfl); e = [epi(1, o, b, fl) for o in range(2) for b in range(3)]; m = epi_mm(1, 1)
    F = parse("L_final:") + sched.schedule(flat(x[:4] for x in e[:3]) + flat([m[2*b], e[b][4], m[2*b+1]] for b in range(3)) + flat(e[3:]), None, **sp)[0]
    if opt.get("ro"):
        wg, wv, sa, sb = opt["ro"]
        F += parse("s_waitcnt vmcnt(0)") + st(7) + parse((f"s_bitcmp{1-wg[1]}_b32 s2, {wg[0]}" if isinstance(wg, tuple) else f"s_cmp_lg_u32 s2, {wg if wg >= 0 else 's2'}") + f"""
s_cbranch_scc1 L_end
s_cmp_lg_u32 s{sW}, {wv if wv >= 0 else 's'+str(sW)}
s_cbranch_scc1 L_end
s_sub_u32 s60, s{sa}, s{sb}
s_mul_i32 s60, s60, {10 if opt.get('exrt') else 1}
s_min_u32 s60, s60, 150000
s_add_u32 s60, s60, 10000
L_spin:
s_memrealtime s[62:63]
s_waitcnt lgkmcnt(0)
s_sub_u32 s61, s62, s96
s_cmp_lt_u32 s61, s60
s_cbranch_scc1 L_spin""")
    elif stamp == 6:
        pts = [97 if opt.get("cyc") else 96] + list(AR) + [100 if opt.get("cyc") else 101]
        F += parse("s_waitcnt vmcnt(0)") + st(7) + parse(f"s_load_dwordx2 s[4:5], s[0:1], 64\ns_waitcnt lgkmcnt(0)\n{mksrd(sDW, 4, 256)}\nv_mov_b32 v17, 0\ns_mov_b64 exec, 1")
        for k, (a, b) in enumerate(zip(pts, pts[1:])):
            F += parse(f"s_sub_u32 s61, s{b}, s{a}\nv_mov_b32 v16, s61\nbuffer_atomic_add v16, v17, {srd(sDW)}, 0 offen offset:{4*k}\nbuffer_atomic_umax v16, v17, {srd(sDW)}, 0 offen offset:{32+4*k}")
    elif stamp:
        F += parse("s_waitcnt vmcnt(0)") + st(7) + parse(f"""
s_load_dwordx4 s[4:7], s[0:1], 64
s_waitcnt lgkmcnt(0)
{mksrd(sDW, 4, 65536)}
{mksrd(sB1, 6, 1 << 20)}
s_lshl_b32 s60, s2, 3
s_add_u32 s60, s60, s{sW}
s_lshl_b32 s61, s60, 8
s_lshl_b32 s60, s60, 5
v_mov_b32 v17, s60
v_lshrrev_b32 v18, 2, v{vW[0]}
v_accvgpr_read_b32 v255, a224
buffer_store_dword v255, v18, {srd(sB1)}, s61 offen
""" + "\n".join((f"s_sub_u32 s61, s{96+k}, s97" if k in (2, 3, 4) else f"s_mov_b32 s61, s{96+k}") + f"\nv_mov_b32 v16, s61\nbuffer_store_dword v16, v17, {srd(sDW)}, 0 offen offset:{4*k}" for k in range(6))
 + "\n" + "\n".join(f"s_sub_u32 s61, s{88+2*k}, s{96 if opt.get('exrt') else 97}\nv_mov_b32 v16, s61\nbuffer_store_dword v16, v17, {srd(sDW)}, 0 offen offset:{24+4*k}" for k in range(2)))
    S["final"] = F + parse("L_end:\ns_endpgm")
    S["head"] = (parse("s_memrealtime s[76:77]\ns_memtime s[78:79]") if opt.get("rt0") else []) + S["head"]
    out, stats_ = resolve(S, [["head", f"pre{pr}"] + [f"xl{pr}"] * opt.get("xn", 6) + [f"br{pr}", f"prep{pr}", "conv0"] + ["conv"] * bool(uni) + ["mid", "conv", "mid", "conv", "mid", "final"] for pr in roles])
    if opt.get("trace0"): print(sched.simulate(out[opt["trace0"]], sp, reps=1, trace=True))
    stats_["sim0"] = dict(n=sched.simulate(out["conv0"], sp, reps=1)[0], waits=0, nops=0, port=0, mem=0)
    tt, st_, mk = sched.simulate(out["conv"] + out["mid"], sp, trace=opt.get("trace"))
    stats_["model"] = dict(n=model["conv"], waits=model["mid"], nops=model["tile"], port=tt, mem=st_)
    if mk: print("sim  ", [b - a for a, b in zip(mk, mk[1:])])
    return out, stats_

HDR = open("standalone__modern_conv_block_convnext__vision.s.ref").read().split("; Override launch")[0]
ABOUT = """; One wave per SIMD; a wave takes four 8x8-pixel tiles through: depthwise conv (MFMA, diagonal operand) -> LayerNorm -> GEMM1 -> GELU -> GEMM2 -> gamma, +x.
; GELU (tanh form): most values come from a table in LDS that every workgroup computes at its start with exp/rcp in f32.  The table has one entry for
; every sign, f16 exponent and 7 mantissa bits of the pre-activation (the precision of the bf16 tensor the reference feeds into GELU), so it covers the
; whole range and does not depend on the inputs; the other values are computed directly with exp/rcp.
; At the start the waves read the kernel's own code once (plain loads, result unused) so that later instruction fetches hit in L2.
"""
BLOCK, NVGPR = 256, 512
def emit(opt, name=KNAME, full=True):
    out, stats_ = gen(opt)
    lines = [l for n in ["head"] + [x + k for k in "0231" for x in ("pre", "xl", "br")] + ["prep" + k for k in "1230"] + (["conv0", "conv", "mid", "final"] if opt.get("uni") else ["conv0", "final", "conv", "mid"]) for l in out.get(n, [])]
    if opt.get("align"):
        import align
        lines, a = align.align_runs(lines, opt["align"]); stats_["align"] = dict(n=a, waits=0, nops=0, port=0, mem=0)
    lines.insert(-1, "L_last:")
    if opt.get("pga") is not None:
        import align
        k = lines.index("L_conv:"); n = sum(align.sizes(lines[k:])) + opt["pga"]
        lines[k:k] = ["; never executed: places the loop so that it enters no new 4 KB page once its first stores are under way", ".p2alignl 12, 0xbf810000", f".fill {(-n % 4096) // 4}, 4, 0xbf810000"]
    body = "\n".join(lines)
    if name != KNAME: body = body.replace("L_", f"L_{name}_")
    s = ""
    if full:
        s += HDR + f"; Generated by tools/gen4.py (hand-designed schedule, see that file)\n; @launch grid=(256,1,1) block=({BLOCK},1,1) lds={LDS}\n" + ABOUT
        s += '.amdgcn_target "amdgcn-amd-amdhsa--gfx950"\n'
    s += f""".text
.globl {name}
{".p2align 12" + chr(10) + ".fill %d, 4, 0xbf800000" % (opt["org"] // 4) + chr(10) if opt.get("org") is not None else ""}.p2align 8
.type {name},@function
{name}:
{body}
.section .rodata,"a"
.p2align 6
.amdhsa_kernel {name}
  .amdhsa_next_free_vgpr {NVGPR}
  .amdhsa_next_free_sgpr 102
  .amdhsa_accum_offset 256
  .amdhsa_group_segment_fixed_size 0
  .amdhsa_kernarg_size 80
  .amdhsa_user_sgpr_count 2
  .amdhsa_user_sgpr_kernarg_segment_ptr 1
  .amdhsa_system_sgpr_workgroup_id_x 1
.end_amdhsa_kernel
"""
    return s, stats_

DEFAULT = dict(sfl='sc0 sc1', dfl='', uni=1, pga=1024, bou=1, nl=[7]*16+[8]*8, vch=2, pool=[248, 249, 250, 251, 252, 253, 0], sp={'vlat': 700, 'cap': 2, 'pace': 40},
    po='g a a6 dm lane l0 l1 l2 l3 tab gp u0 u1 u2 u3 u4 u5 p0 u6 p1 u7 p2 u8 p3 b0 b1 b2 b3 p4 b4 b5 b6 t')
BASE = dict(DEFAULT, uni=0)
DEFAULT.update(eval(open("tuned4.txt").read()))
if __name__ == "__main__":
    if len(sys.argv) > 1:
        import os; os.makedirs("var", exist_ok=True)
        for a in sys.argv[1:]:
            n, o = a.split(":", 1); d = dict(DEFAULT); d.update(eval(o) if o[0] == '{' else dict(eval(open(o.split('+')[0]).read()), **(eval(o.split('+', 1)[1]) if '+' in o else {})))
            s, st_ = emit(d); open(f"var/{n}.s", "w").write(s)
            print(n, {k: (v['n'], v['waits'], v['nops'], v['port'], v['mem']) for k, v in st_.items()})
        sys.exit(0)
    s, st_ = emit(DEFAULT)
    open("standalone__modern_conv_block_convnext__vision.s", "w").write(s)
    for n, v in st_.items(): print(n, v)
```

```python
import sys, struct, math
from asmdsl import I, parse, resolve, use
import sched

KNAME = "standalone__modern_conv_block_convnext__vision_kernel"
def f2u(x): return struct.unpack("<I", struct.pack("<f", x))[0]
def h2u(x): return struct.unpack("<H", struct.pack("<e", x))[0]
A_ = 2 * math.sqrt(2 / math.pi) * math.log2(math.e)
K_ = 0.46875
C_ = A_ / K_; A3 = A_ * 0.044715 / K_ ** 3
XB = 512 * 512 * 192
ROW = 98304
OOR = 0x10000000
WA, WB = 0, 40960
IMG = 90112; IMGW = 12800; REG = 6400; SUB = 2560
TAB = IMG + 4 * IMGW; DYS = 3072
G2 = TAB + 3 * DYS
LUT = G2 + 384
LDS = 163840
vID = 18
vDM, vPB, vIDX, vMK, vRS, vA, vW, vCT, vO, vSQ, vTC = 1, 8, 16, 17, 20, 22, (23, 24), 25, 26, (27, 29), 31
ACC, YN, Y, U, T, E, G = (32, 80), (128, 152), (176, 192), 208, 216, 224, (232, 240)
SC = 252; vSM = (248, 252)
pS, pT, pN, pE, pD, GK, ID = 232, 234, 236, 238, 224, 176, 240
def Creg(u, g): return YN[u] + 4 * (g >> 1) if g % 2 == 0 else E + 4 * u
cAD, cAS, cR = Y[1], Y[1] + 8, (ACC[0] + 16, U, G[0])
SPC, ONES, WR = 192, 228, 232
sW = 3; sX = 20; sO = 24; sDW = 28; sB1 = 32; sB2 = 36; sGA = 40; sW1 = 44; sW2 = 48
sT, sC, sROW, sCOL, sIMG, sINC, sONE, sK = 52, 53, 54, 55, 56, 57, 58, 59
sOF = (80, 81, 82, 83)
sKB, sLUT, sKK, sPC, sVO, sDR = 84, 85, 86, 94, 54, 87
POS = {p: ((p // 4 + 1) % 3, p % 4) for p in range(12)}
r4 = lambda r: f"v[{r}:{r+3}]"
a4 = lambda r: f"a[{r}:{r+3}]"
r16 = lambda r: f"v[{r}:{r+15}]"
srd = lambda s: f"s[{s}:{s+3}]"
flat = lambda ll: [x for l in ll for x in l]

def mm32(ty, d, a, b, c=None):
    return I(f"v_mfma_f32_32x32x16_{ty} {r16(d)}, {a}, {b}, {r16(d) if c is None else c}")
def mm16(ty, d, a, b, c=None): return I(f"v_mfma_f32_16x16x32_{ty} {r4(d)}, {a}, {b}, {r4(d) if c is None else c}")
def mix(main, extra):
    extra = sorted(extra, key=lambda e: e[0]); out = []; acc = 0; k = 0
    for m in main:
        while k < len(extra) and extra[k][0] <= acc: out += extra[k][1]; k += 1
        out.append(m); acc += m.cost
    for e in extra[k:]: out += e[1]
    return out
def il(*ls):
    out = []
    for k in range(max(map(len, ls))): out += [l[k] for l in ls if k < len(l)]
    return out
def mksrd(s, p, n): return f"s_mov_b32 s{s}, s{p}\ns_mov_b32 s{s+1}, s{p+1}\ns_mov_b32 s{s+2}, {n}\ns_mov_b32 s{s+3}, 0x20000"
def tag(i, rd=(), wr=()): i.rd = i.rd | set(rd); i.wr = i.wr | set(wr); return i
RG = lambda r: ("x", f"img{r}")
RD = lambda r: ("x", f"rd{r}")

def gen(opt):
    S = {}
    sg = opt.get("sg")
    if sg: opt = dict(opt, nt_=1)
    uni = opt.get("uni")
    stamp = opt.get("stamp"); T1 = opt.get("g1t", "f16"); sm = opt.get("sm", 1); sw1 = opt.get("sw1", 1)
    def st(k):
        if not stamp: return []
        if k == 0 and opt.get("rt0"): return parse("s_waitcnt lgkmcnt(0)\ns_mov_b32 s96, s76\ns_mov_b32 s97, s78")
        if k == 0: return parse("s_memrealtime s[76:77]\ns_memtime s[78:79]\ns_waitcnt lgkmcnt(0)\ns_mov_b32 s96, s76\ns_mov_b32 s97, s78")
        if k == 7: return parse("s_memrealtime s[76:77]\ns_memtime s[78:79]\ns_waitcnt lgkmcnt(0)\ns_mov_b32 s101, s76\ns_mov_b32 s100, s78")
        return parse(f"s_memtime s[78:79]\ns_waitcnt lgkmcnt(0)\ns_mov_b32 s{97+k}, s78")
    AG = opt.get("ag", ("p1", "p2", "t0", "c1", "t1", "c2", "t3"))
    AR = (36, 38, 40, 42, 88, 90, 92)
    def xs(k):
        if stamp == 6: return parse(f"{'s_memtime' if opt.get('cyc') else 's_memrealtime'} s[{AR[AG.index(k)]}:{AR[AG.index(k)]+1}]\ns_waitcnt lgkmcnt(0)") if k in AG else []
        if not stamp or k not in opt.get("exs", ()): return []
        r = 88 + 2 * opt['exs'].index(k)
        return parse(f"{'s_memrealtime' if opt.get('exrt') else 's_memtime'} s[{r}:{r+1}]\ns_waitcnt lgkmcnt(0)")
    def ls(k, mode=1):
        if stamp != mode: return []
        i = I("s_mov_b32 s60, s60"); i.text = f"s_memtime s[{60+k//15*2}:{61+k//15*2}]"; i.rd = set(); i.wr = set()
        if k == 0: return [i]
        return [i]
    SQ = [60, 62, 64, 66, 68, 70, 72, 74, 76, 78, 36, 38, 40, 42, 44]
    def lq(k):
        if stamp != 1: return None
        i = I("s_mov_b32 s60, s60"); i.text = f"s_memtime s[{SQ[k]}:{SQ[k]+1}]"; i.rd = set(); i.wr = set(); return i
    def lqf():
        if stamp == 5: return parse(f"s_waitcnt lgkmcnt(0)\nv_accvgpr_read_b32 v255, a224\ns_lshl_b32 m0, s{sT}, 4\ns_sub_u32 m0, m0, 16\ns_sub_u32 s60, s60, s97\nv_writelane_b32 v255, s60, m0\ns_add_u32 m0, m0, 15\ns_sub_u32 s62, s62, s97\nv_writelane_b32 v255, s62, m0\nv_accvgpr_write_b32 a224, v255")
        if stamp != 1: return []
        return [lq(14)] + parse(f"s_waitcnt lgkmcnt(0)\nv_accvgpr_read_b32 v255, a224\ns_lshl_b32 m0, s{sT}, 4\ns_sub_u32 m0, m0, 16") + flat(parse(f"s_sub_u32 s{r}, s{r}, s97\nv_writelane_b32 v255, s{r}, m0\ns_add_u32 m0, m0, 1") for r in SQ) + parse("v_accvgpr_write_b32 a224, v255")
    pc = [0 if stamp != 7 else -1]
    def ps():
        if stamp == 7 and pc[0] >= 0:
            pc[0] += 1; r = (list(range(4, 20, 2)) + list(range(28, 44, 2)) + [88, 90, 92])[pc[0] - 1]
            i = I("s_mov_b32 s60, s60"); i.text = f"s_memtime s[{r}:{r+1}]"; i.rd = set(); i.wr = set(); return [i]
        if stamp != 3: return []
        pc[0] += 1
        return parse(f"s_memtime s[78:79]\ns_waitcnt lgkmcnt(0)\ns_sub_u32 s78, s78, s97\nv_writelane_b32 v255, s78, {pc[0]-1}")
    def xdma(Gq, reg, fl, ks=range(7)):
        l = []
        for k in ks:
            i = I(f"buffer_load_dword{'x4' if k < 6 else ''} v{vDM+k}, {srd(sX)}, 0 offen offset:{64*Gq} {fl} lds".replace("  ", " "))
            l.append(parse(f"s_add_u32 m0, s{sIMG}, {REG*reg + 1024*k - 64*Gq}") + [tag(i, [RD(reg)], [RG(reg)])])
        return l
    touch = lambda fl: [I(f"buffer_load_dword v{SC+2}, v{vTC}, {srd(x)}, 0 offen {fl}".rstrip()) for x in ((sX, sO) if opt.get("ot") else () if opt.get("nt_") else (sX,))]
    t = 128
    ln = t + 1; hh = t + 10; tt, tp, tc = t + 2, t + 3, t + 4
    def dma_addr(d, x, y): return f"""v_lshrrev_b32 v{x}, 11, v{tt}
v_subrev_u32 v{y}, s65, v{tt}
v_mad_u32_u24 v{x}, v{x}, s68, v{tp}
v_and_b32 v{y}, 0x7ff, v{y}
v_cmp_gt_u32 vcc, s66, v{y}
v_lshrrev_b32 v{y}, 7, v{tt}
v_and_b32 v{y}, 32, v{y}
v_xad_u32 v{x}, v{tc}, v{y}, v{x}
v_cndmask_b32 v{d}, v{t+8}, v{x}, vcc
"""
    step = f"v_add_u32 v{tt}, {16*205}, v{tt}\nv_add_u32 v{tp}, {16*192}, v{tp}\n"
    first = f"""v_lshrrev_b32 v{tp}, 2, v{ln}
v_mul_u32_u24 v{tt}, 205, v{tp}
v_mul_u32_u24 v{tp}, 192, v{tp}
v_add_u32 v{tp}, s64, v{tp}
"""
    last = f"""v_lshrrev_b32 v{tp}, 4, v{ln}
v_add_u32 v{tp}, 96, v{tp}
v_mul_u32_u24 v{tt}, 205, v{tp}
v_mul_u32_u24 v{tp}, 192, v{tp}
v_add_u32 v{tp}, s64, v{tp}
v_lshlrev_b32 v{t+5}, 2, v{ln}
v_and_b32 v{t+5}, 63, v{t+5}
""" + dma_addr(vDM + 6, t + 6, t + 7).replace(f"v{tc},", f"v{t+5},")
    ncl = 4 if opt.get("xsw") else 3
    cpf = f"""s_getpc_b64 s[62:63]
L_pc:
v_min_u32 v18, {ncl-1}, v{ln}
s_lshr_b32 s71, s2, 3
s_lshl2_add_u32 s71, s71, s{sW}
v_mad_u32_u24 v18, s71, {ncl}, v18
v_min_u32 v18, (L_last-L_pc)/128, v18
v_lshlrev_b32 v18, 1, v18
v_mad_u64_u32 v[18:19], vcc, v18, 64, s[62:63]
global_load_dword v251, v[18:19], off
"""
    cpa = parse(f"""s_getpc_b64 s[{sPC}:{sPC+1}]
L_pd:
s_lshl_b32 s60, s{sW}, 10
s_add_u32 s60, s60, {'L_last-3968' if uni else 'L_final'}-L_pd
s_add_u32 s{sPC}, s{sPC}, s60
s_addc_u32 s{sPC+1}, s{sPC+1}, 0""")
    cpl = lambda: parse(f"""v_and_b32 v254, 0x70, v{vW[0]}
v_mad_u64_u32 v[254:255], vcc, v254, 8, s[{sPC}:{sPC+1}]""") + [I("global_load_dword v254, v[254:255], off")]
    bou = f"""s_bitcmp1_b32 s2, 7
s_cselect_b32 s{sDR}, 1, -1
s_cselect_b32 s61, 0, {24*ROW}
s_mul_i32 s{sDR}, s{sDR}, {8*ROW}
s_add_u32 s63, s63, s61
""" if opt.get("bou") == 1 else ""
    DR = f"s{sDR}" if opt.get("bou") == 1 else 128 * ROW if opt.get("bou") == 2 else 8 * ROW
    H = parse(f"""
s_cmp_ge_u32 s2, 256
s_cbranch_scc1 L_end
s_load_dwordx16 s[4:19], s[0:1], 0
v_readfirstlane_b32 s{sW}, v0
v_and_b32 v{ln}, 63, v0
s_and_b32 s60, s2, 7
s_lshr_b32 s61, s2, 7
s_lshl1_add_u32 s60, s60, s61
s_lshr_b32 s{sW}, s{sW}, 6
{cpf}s_bfe_u32 s61, s2, 0x40003
s_lshl2_add_u32 s{sCOL}, s61, s{sW}
s_mul_i32 s60, s60, {8*ROW if opt.get('bou') == 2 else 32*ROW}
s_mul_i32 s61, s{sCOL}, 1536
s_add_u32 s63, s60, s61
{bou}s_sub_u32 s64, s63, {ROW+192}
s_movk_i32 s65, 0
s_movk_i32 s66, 2048
s_cmp_eq_u32 s{sCOL}, 0
s_cmovk_i32 s65, 100
s_cmovk_i32 s66, 1948
s_cmp_eq_u32 s{sCOL}, 63
s_cmovk_i32 s66, 1800
s_mul_i32 s{sIMG}, s{sW}, {IMGW}
s_add_u32 s{sIMG}, s{sIMG}, {IMG}
s_mov_b32 s68, {ROW-1920}
{first}v_lshlrev_b32 v{tc}, 4, v0
v_and_b32 v{t+5}, 16, v0
v_bitop3_b32 v{tc}, v{tc}, v{t+5}, 48 bitop3:0x28
v_bfrev_b32 v{t+8}, 1
""") + st(0) + parse(mksrd(sX, 4, XB))
    dfl = opt.get("dfl", "")
    def xloop(pv):
        dm = tag(I(f"buffer_load_dwordx4 v{t+6}, {srd(sX)}, 0 offen {opt.get('dfa', dfl)} lds".replace("  ", " ")), [RD(0)], [RG(0)])
        S[f"xl{pv}"] = parse(f"L_xl{pv}:") + parse(dma_addr(t + 6, t + 6, t + 7)) + parse(step) + [dm] + parse(f"s_add_u32 m0, m0, 1024\ns_sub_u32 s70, s70, 1\ns_cbranch_scc0 L_xl{pv}")
        return parse(f"s_mov_b32 m0, s{sIMG}\ns_movk_i32 s70, {opt.get('xn', 6) - 1}")
    dmk = parse(first + step.join(dma_addr(vDM + k, t + 6, t + 7) for k in range(6)) + f"""s_cmp_lt_u32 s{sCOL}, 63
s_cselect_b32 s66, 10, 0
s_add_u32 s64, s64, {9*192+128}
v_mul_u32_u24 v{t+6}, {ROW}, v{ln}
v_add_u32 v{t+6}, s64, v{t+6}
v_cmp_gt_u32 vcc, s66, v{ln}
v_cndmask_b32 v{vTC}, v{t+8}, v{t+6}, vcc
""")
    wta = parse(f"""s_mulk_i32 s71, 640
v_lshlrev_b32 v{t+13}, 7, v{ln}
v_cmp_gt_u32 vcc, 5, v{ln}
v_cndmask_b32 v{t+13}, v{t+8}, v{t+13}, vcc
""")
    taba = parse(f"""v_lshrrev_b32 v{hh}, 5, v{ln}
s_movk_i32 s69, 192
v_mul_u32_u24 v{t+11}, 1366, v0
v_lshrrev_b32 v{t+11}, 16, v{t+11}
v_mul_u32_u24 v{t+11}, 384, v{t+11}
v_lshl_add_u32 v{t+11}, v0, 2, v{t+11}
v_lshlrev_b32 v{t+12}, 3, v0
{mksrd(sDW, 6, 1728)}
{mksrd(sB2, 14, 192)}
{mksrd(sGA, 16, 192)}
{mksrd(sB1, 10, 768)}
""")
    tabld = parse(f"""
buffer_load_dword v{t+16}, v{t+11}, {srd(sDW)}, 0 offen
buffer_load_dword v{t+17}, v{t+11}, {srd(sDW)}, 0 offen offset:192
buffer_load_dword v{t+18}, v{t+11}, {srd(sDW)}, 0 offen offset:384
buffer_load_dwordx2 v[{t+20}:{t+21}], v{t+12}, {srd(sB2)}, 0 offen
buffer_load_dwordx2 v[{t+22}:{t+23}], v{t+12}, {srd(sGA)}, 0 offen
""")
    wsrd = parse(f"{mksrd(sW1, 8, 73728)}\n{mksrd(sW2, 12, 73728)}")
    wtouch = parse(f"buffer_load_dword v{t+14}, v{t+13}, {srd(sW1)}, s71 offen {opt.get('dfw', '')}\nbuffer_load_dword v{t+15}, v{t+13}, {srd(sW2)}, s71 offen {opt.get('dfw', '')}")
    if 0: wtouch += parse(f"v_lshlrev_b32 v{t+19}, 7, v{ln}\nbuffer_load_dword v{t+19}, v{t+19}, {srd(sB1)}, 0 offen")
    q = t + 24
    n, kq, rp, c, par, oor = q, q + 1, q + 2, q + 3, q + 4, q + 5
    lanec = f"""
v_mov_b32 v{oor}, {OOR}
v_and_b32 v{n}, 15, v{ln}
v_lshrrev_b32 v{kq}, 4, v{ln}
v_add_u32 v{rp}, 4, v{n}
v_lshrrev_b32 v{rp}, 3, v{rp}
v_mad_i32_i24 v{c}, v{rp}, -4, v{n}
v_and_b32 v{rp}, 1, v{rp}
v_and_b32 v{par}, 1, v{kq}
v_lshlrev_b32 v{q+6}, 1, v{rp}
v_mul_u32_u24 v{q+7}, {ROW}, v{q+6}
v_mad_u32_u24 v{q+7}, v{c}, s69, v{q+7}
v_lshl_add_u32 v{q+7}, v{kq}, 4, v{q+7}
v_add_u32 v{vO}, s63, v{q+7}
{f"v_xor_b32 v{vO}, 0x80000000, v{vO}" if uni else ""}
s_mov_b32 s{sVO}, {0x80000000 if uni else 8*ROW}
"""
    def pixaddr(d, row, col, fhi, x=None):
        return f"""v_add_u32 v{q+7}, {row}, v{q+6}
v_add_u32 v{q+8}, {col}, v{c}
v_mad_u32_u24 v{q+7}, v{q+7}, 10, v{q+8}
v_bfe_u32 v{q+8}, v{q+7}, 2, 1
v_lshl_or_b32 v{q+8}, v{fhi}, 1, v{q+8}
""" + (f"v_xor_b32 v{q+8}, v{x}, v{q+8}\n" if x else "") + f"""v_lshl_add_u32 v{q+8}, v{q+7}, 2, v{q+8}
v_lshl_add_u32 v{d}, v{q+8}, 4, s{sIMG}
"""
    lanec += f"v_xor_b32 v{q+9}, v{rp}, v{hh}\n" + pixaddr(vPB, f"v{kq}", 0, q + 9)
    lanec += f"v_add_u32 v{q+10}, 1, v{par}\n" + pixaddr(vPB + 4, f"v{hh}", f"v{q+10}", rp)
    lanec += "".join(f"v_xor_b32 v{vPB+4*d+i}, {16*i}, v{vPB+4*d}\n" for d in range(2) for i in (1, 2, 3))
    lanec += pixaddr(vRS, 1, 1, rp, kq) + f"v_xor_b32 v{q+9}, 1, v{rp}\n" + pixaddr(vRS + 1, 2, 1, q + 9, kq)
    lanec += f"""v_bfe_u32 v{q+6}, v{n}, 2, 1
v_sub_u32 v{q+6}, v{kq}, v{q+6}
v_and_b32 v{q+7}, 3, v{n}
v_mul_u32_u24 v{vIDX}, 0x1111, v{q+7}
{f"v_or_b32 v{vIDX}, 0x88880000, v{vIDX}" if sg else ""}
v_lshrrev_b32 v{q+8}, 3, v{n}
v_lshl_add_u32 v{q+7}, v{q+8}, 2, v{q+7}
v_lshlrev_b32 v{q+7}, 5, v{q+7}
v_add_u32 v{q+7}, {TAB}, v{q+7}
s_movk_i32 s70, {DYS}
v_cmp_gt_u32 vcc, 3, v{q+6}
v_mad_u32_u24 v{q+7}, v{q+6}, s70, v{q+7}
v_cndmask_b32 v{vA}, v{oor}, v{q+7}, vcc
v_lshlrev_b32 v{vW[0]}, 4, v{ln}
v_add_u32 v{vW[1]}, {WB}, v{vW[0]}
v_lshlrev_b32 v{vCT}, 5, v{kq}
v_add_u32 v{vCT}, {G2}, v{vCT}
v_and_b32 v{q+8}, 1, v{ln}
v_lshlrev_b32 v{q+8}, 4, v{q+8}
v_mov_b32 v{q+9}, 0x3f80
v_lshlrev_b32 v{q+8}, v{q+8}, v{q+9}
v_bfe_u32 v{q+6}, v{ln}, 1, 1
v_bfe_u32 v{q+7}, v{ln}, 3, 2
v_lshl_add_u32 v{q+7}, v{q+7}, 1, v{q+6}
v_bfe_u32 v{q+9}, v{ln}, 2, 1
v_xor_b32 v{q+9}, v{q+9}, v{hh}
v_lshl_add_u32 v{q+7}, v{q+9}, 3, v{q+7}
v_lshlrev_b32 v{q+7}, v{q+7}, 1
v_lshrrev_b32 v{q+9}, 2, v{n}
v_xor_b32 v{q+9}, v{q+9}, v{kq}
v_lshl_add_u32 v{q+6}, v{q+9}, 1, v{q+6}
v_lshlrev_b32 v{q+6}, v{q+6}, 1
""" + "".join(f"v_bfe_i32 v{d+r}, v{o}, {r}, 1\n" for d, o, k in ((ID, q + 7, 8), (vID, q + 6, 2)) for r in range(k)) + \
        "".join(f"v_and_b32 v{d+r}, v{q+8}, v{d+r}\n" for d, k in ((ID, 8), (vID, 2)) for r in range(k)) + f"""{mksrd(sO, 18, XB)}
s_mov_b32 s{sT}, 0
s_mov_b32 s{sOF[0]}, 0
s_mov_b32 s{sOF[1]}, {ROW}
s_mov_b32 s{sOF[2]}, {4*ROW}
s_mov_b32 s{sOF[3]}, {5*ROW}
s_mov_b32 s{sC}, {h2u(C_) * 0x10001}
s_mov_b32 s{sONE}, 0x3c003c00
s_mov_b32 s{sLUT}, {LUT}
s_mov_b32 s{sKK}, {hex(h2u(K_) * 0x10001)}
s_mov_b32 s{sKB}, {hex(h2u(K_) << 16 if T1 == "f16" else f2u(K_))}
v_lshrrev_b32 v{q+6}, 2, v{n}
v_xor_b32 v{q+6}, v{q+6}, v{kq}
v_bfe_i32 v{q+6}, v{q+6}, 0, 1
v_bfi_b32 v{q+6}, v{q+6}, 0, s{sONE}
""" + "".join(f"v_accvgpr_write_b32 a{ONES+r}, v{q+6}\n" for r in range(4)) + (f"""v_and_b32 v{vMK}, v{hh}, v{kq}
v_lshlrev_b32 v{vMK}, 4, v{vMK}
""" if sw1 else f"v_lshlrev_b32 v{vMK}, 4, v{hh}\n") + f"v_lshrrev_b32 v{vMK}, v{vMK}, -1\n"
    z = q + 12
    tables = f"""
v_lshlrev_b32 v{q+6}, 6, v0
v_add_u32 v{q+6}, {TAB}, v{q+6}
v_cmp_gt_u32 vcc, 144, v0
v_cndmask_b32 v{q+6}, v{oor}, v{q+6}, vcc
v_and_b32 v{q+7}, 3, v0
v_lshl_add_u32 v{q+8}, v{q+7}, 2, v{q+6}
v_lshrrev_b32 v{q+7}, 1, v{q+7}
v_lshl_add_u32 v{q+7}, v{q+7}, 2, v{q+6}
v_lshlrev_b32 v{q+9}, 4, v0
v_add_u32 v{q+9}, {G2}, v{q+9}
v_cmp_gt_u32 vcc, 24, v0
v_cndmask_b32 v{q+9}, v{oor}, v{q+9}, vcc
v_mov_b32 v{z}, 0
v_mov_b32 v{z+1}, 0
v_mov_b32 v{z+2}, 0
v_mov_b32 v{z+3}, 0
ds_write_b128 v{q+6}, {r4(z)}
ds_write_b128 v{q+6}, {r4(z)} offset:16
ds_write_b128 v{q+6}, {r4(z)} offset:32
ds_write_b128 v{q+6}, {r4(z)} offset:48
ds_write_b16 v{q+8}, v{t+16}
ds_write_b16_d16_hi v{q+8}, v{t+16} offset:34
ds_write_b16 v{q+7}, v{t+17} offset:16
ds_write_b16_d16_hi v{q+7}, v{t+17} offset:48
ds_write_b16 v{q+7}, v{t+18} offset:24
ds_write_b16_d16_hi v{q+7}, v{t+18} offset:56
v_lshlrev_b32 v{z+4}, 16, v{t+20}
v_and_b32 v{z+5}, 0xffff0000, v{t+20}
v_lshlrev_b32 v{z+6}, 16, v{t+21}
v_and_b32 v{z+7}, 0xffff0000, v{t+21}
v_lshlrev_b32 v{z+8}, 16, v{t+22}
v_and_b32 v{z+9}, 0xffff0000, v{t+22}
v_lshlrev_b32 v{z+10}, 16, v{t+23}
v_and_b32 v{z+11}, 0xffff0000, v{t+23}
v_mul_f32 v{z+4}, v{z+4}, v{z+8}
v_mul_f32 v{z+5}, v{z+5}, v{z+9}
v_mul_f32 v{z+6}, v{z+6}, v{z+10}
v_mul_f32 v{z+7}, v{z+7}, v{z+11}
ds_write_b128 v{q+9}, {r4(z+4)}
"""
    def lutb(rs):
        L = []; W = []
        for n_, r in enumerate(rs):
            b = 160 + 8 * n_; two = lambda f: [f(b + 1, b + 3, b + 5), f(b + 2, b + 4, b + 6)]
            l = [f"v_add_u32 v{b}, {hex(0x10001000 * r)}, v{SC}", f"v_cvt_f32_f16 v{b+1}, v{b}", f"v_cvt_f32_f16_sdwa v{b+2}, v{b} dst_sel:DWORD dst_unused:UNUSED_PAD src0_sel:WORD_1"]
            if r < 5:
                for f in (lambda u, a, e: f"v_mul_f32 v{a}, {hex(f2u(A3))}, v{u}", lambda u, a, e: f"v_fma_f32 v{a}, v{a}, v{u}, s73", lambda u, a, e: f"v_mul_f32 v{a}, -v{u}, v{a}",
                          lambda u, a, e: f"v_exp_f32 v{e}, v{a}", lambda u, a, e: f"v_fma_f32 v{a}, v{e}, s{sK}, s{sK}", lambda u, a, e: f"v_rcp_f32 v{a}, v{a}",
                          lambda u, a, e: f"v_mul_f32 v{a}, v{u}, v{a}", lambda u, a, e: f"v_mul_f32 v{e}, -v{e}, v{a}"): l += two(f)
                l += [f"v_cvt_pk_bf16_f32 v{b+7}, v{b+5}, v{b+6}"]; W.append(f"ds_write_b32 v{SC+1}, v{b+7} offset:{8192+1024*r}")
            else: l += two(lambda u, a, e: f"v_mul_f32 v{a}, {hex(f2u(1 / K_))}, v{u}")
            L.append(l + [f"v_cvt_pk_bf16_f32 v{b}, v{b+3}, v{b+4}"]); W.append(f"ds_write_b32 v{SC+1}, v{b} offset:{1024*r}")
        return il(*L) + W
    lut = parse(f"""s_mov_b32 s73, {hex(f2u(C_))}
s_mov_b32 s{sK}, {hex(f2u(K_))}
v_mul_u32_u24 v{SC}, 0x100010, v0
v_add_u32 v{SC}, 0xc0004, v{SC}
v_lshlrev_b32 v{SC+1}, 2, v0
v_add_u32 v{SC+1}, {LUT}, v{SC+1}""")
    luts = [parse(lutb(rs)) for rs in ((0, 1), (2, 3), (4, 5), (6, 7))]; luts[0] = lut + luts[0]
    def src(nu, h, s): return a4(16 * nu + 8 * h + 4 * s) if nu < 6 else r4(ACC[0] + 16 * (nu - 6) + 8 * h + 4 * s)
    acc = lambda nu, h: 80 + 32 * (nu % 3) + 16 * h
    N95, R95, RB1, RG_ = (208, 192, 208), 176, WR, 208
    def xpose(d, f, cin=None): return [mm32("bf16", d, f(0), r4(ID), cin), mm32("bf16", d, f(1), r4(ID + 4))]
    def uxpose(w2, nu):
        l = il(*[xpose(acc(nu, h), lambda s: src(nu, h, s), "0" if w2 else r16(N95[nu // 3])) for h in range(2)])
        if not w2 and nu % 3 == 2: l += xpose(acc(nu, 1), lambda s: a4(RB1 + 4 * (nu // 3)))[1:]
        return l
    def un95(i): return (parse(f"s_mov_b32 s93, 0xfff8fff8\nv_mov_b32 v{SC}, {0x40004 if opt.get('wmask') == -1 else 0}") if opt.get("wmask", 0) < 0 and i == 0 else []) + parse([f"v_xor_b32 v{R95+4*i+e}, 0x80008000, v{R95+4*i+e}" for e in range(4)]) + xpose(N95[i], lambda s: r4(R95 + 4 * i), "0")
    def uload(w2, nu):
        i, k = divmod(nu, 3); l = []
        if opt.get("lin"): return parse(f"s_mul_i32 s74, s{sW}, 36864\ns_and_b32 s74, s74, 0xffff\ns_add_u32 s74, s74, {4096*nu}") + [I(f"buffer_load_dwordx4 {src(nu, h, s)}, v{vW[0]}, {srd(sW2 if w2 else sW1)}, s74 offen offset:{2048*h+1024*s}") for h in range(2) for s in range(2)]
        if w2:
            if k == 0: l = parse(f"s_mov_b32 s74, {24576*i}\ns_mov_b32 s75, {24576*i+6144}")
            return l + [I(f"buffer_load_dwordx4 {src(nu, h, s)}, v{pS}, {srd(sW2)}, s{74+(h if sg else s)} offen offset:{768*s+64*k if sg else 1536*h+64*k}") for h in range(2) for s in range(2)]
        return l + parse(f"s_mov_b32 s74, {24576*k}\ns_mov_b32 s75, {24576*k+12288}") + \
            [I(f"buffer_load_dwordx4 {src(nu, h, s)}, v{pS+h}, {srd(sW1)}, s{74+s} offen offset:{256*i}") for h in range(2) for s in range(2)]
    def wmk(d, w2):
        m = opt.get("wmask", 0) * (1 - w2)
        if m < 0: return parse([f"v_and_or_b32 v{d+r}, v{d+r}, s{87 if not opt.get('bou') else 93}, v{SC}" for r in range(4)])
        return parse([f"v_add_u32 v{d+r}, {hex((1 << m - 1) * 0x10001)}, v{d+r}" for r in range(4)] + [f"v_and_b32 v{d+r}, {hex((0xffff << m & 0xffff) * 0x10001)}, v{d+r}" for r in range(4)]) if m else []
    def ufin(w2, nu):
        i, k = divmod(nu, 3); P = []
        for e in range(4):
            dst = pD + 4 * (e & 1); sr = lambda r, x: acc(nu, r >> 1) + 8 * (r & 1) + 4 * x + e
            l = []
            if w2 and e % 2 == 0: l = parse([f"v_pk_mul_f32 v[{sr(r, x)}:{sr(r, x)+1}], v[{sr(r, x)}:{sr(r, x)+1}], v[{GK+4*k+e}:{GK+4*k+e+1}]" for r in range(4) for x in range(2)])
            l += parse([f"v_cvt_pk_{'bf16' if w2 else T1}_f32 v{dst+r}, v{sr(r, 0)}, v{sr(r, 1)}" for r in range(4)]) + wmk(dst, w2)
            if w2: l.append(I(f"ds_write_b128 v{pT+(e&1)}, {r4(dst)} offset:{6144+2048*k+128*(e>>1)}"))
            else: l.append(I(f"ds_write_b128 v{pT}, {r4(dst)} offset:{(10240 if i == 1 else 12288)*(e>>1)+1024*(2*k+(e&1))}"))
            P.append(l)
        if k == 2 and i < 2:
            P[3] += parse([f"v_{'sub' if i == 0 else 'add'}_u32 v{pT+e}, v{pT+e}, v{pE}" for e in range(1 + w2)])
        return P
    x = q + 6
    rowx = f"""
v_bfe_u32 v{x}, v{ln}, 2, 1
v_bfe_u32 v{x+1}, v{ln}, 3, 2
v_lshl_add_u32 v{x+1}, v{x}, 2, v{x+1}
v_and_b32 v{x+2}, 3, v{ln}
"""
    uaddr = [rowx + f"""v_lshl_add_u32 v{pN}, v{hh}, 2, v{x+2}
s_lshl_b32 s60, s{sW}, 7
v_lshl_add_u32 v{pN}, v{pN}, 4, s60
v_mul_u32_u24 v{x+1}, 768, v{x+1}
v_add_u32 v{pS}, v{x+1}, v{pN}
v_add_u32 v{pS+1}, 6144, v{pS}
v_and_b32 v{x+1}, 0x1c, v{ln}
v_cmp_eq_u32 vcc, 0x1c, v{x+1}
s_mov_b32 s72, {95*768}
s_mul_i32 s60, s{sW}, 24576
s_add_u32 s60, s60, {WB}
v_cndmask_b32 v{pN+1}, v{t+8}, v{pN}, vcc
v_lshl_add_u32 v{pT}, v{ln}, 4, s60
s_lshl_b32 s60, s{sW}, 12
s_add_u32 s60, s60, {WB}
v_mov_b32 v{pE}, s60
""" + "\n".join(f"buffer_load_dwordx4 {r4(R95+4*i)}, v{pN}, {srd(sW1)}, s72 offen offset:{256*i}\nbuffer_load_dwordx4 {a4(RB1+4*i)}, v{pN+1}, {srd(sB1)}, 0 offen offset:{256*i}" for i in range(3)), rowx + (f"v_lshl_add_u32 v{x+1}, v{x}, 2, v{x+1}\n" if sg else "") + f"""v_lshl_add_u32 v{x+1}, v{hh}, 4, v{x+1}
s_lshl_b32 s60, s{sW}, 6
s_sub_u32 s60, s60, 128
v_add_u32 v{x+1}, s60, v{x+1}
v_xor_b32 v{pN}, v{hh}, v{x+2}
v_lshlrev_b32 v{pN}, 4, v{pN}
v_mad_u32_u24 v{pS}, v{x+1}, s69, v{pN}
""" + (f"""v_bfe_u32 v{x+1}, v{ln}, 3, 2
v_lshl_add_u32 v{x+1}, v{x}, 2, v{x+1}
v_mul_u32_u24 v{x+1}, 384, v{x+1}
v_lshl_add_u32 v{x+1}, v{hh}, 6, v{x+1}
s_mul_i32 s61, s60, 192
v_add3_u32 v{pS}, v{x+1}, s61, v{pN}
""" if opt.get("fl") else "") + f"""s_lshl_b32 s60, s{sW}, 1
s_sub_u32 s60, s60, 4
v_add_u32 v{x+1}, s60, v{x}
v_lshlrev_b32 v{pE}, 11, v{x+1}
v_add_u32 v{pE}, {WB+2048}, v{pE}
v_mul_u32_u24 v{x+1}, 768, v{x+1}
v_lshl_add_u32 v{x+1}, v{x}, 2, v{x+1}
v_add_u32 v{x+1}, v{x+2}, v{x+1}
v_bfe_u32 v{x+2}, v{ln}, 3, 1
v_lshl_add_u32 v{x+1}, v{x+2}, 6, v{x+1}
v_lshrrev_b32 v{x+2}, 4, v{ln}
v_lshl_add_u32 v{x+1}, v{x+2}, 4, v{x+1}
v_lshlrev_b32 v{x+1}, 4, v{x+1}
v_add_u32 v{pT}, {WB}, v{x+1}
v_xor_b32 v{pT+1}, 64, v{pT}
""" + "\n".join(f"buffer_load_dwordx4 {r4(RG_+4*k)}, v{pN}, {srd(sGA)}, 0 offen offset:{64*k}" for k in range(3))]
    gfin = flat(xpose(GK + 4 * k, lambda s: r4(RG_ + 4 * k), "0") for k in range(3))
    bar = lambda: parse("s_waitcnt lgkmcnt(0)\ns_barrier")
    def resid_rd(qs): return [I(f"ds_read_b128 {a4(48*qq+4*f)}, v{vW[1]} offset:{12288*qq+1024*f}") for qq in qs for f in range(12)]
    xa = lambda: flat(xdma(0, 0, dfl)); xb = lambda: flat(xdma(1, 1, dfl)) + touch(dfl)
    n0, nh, xp = opt.get("n0", 3), opt.get("nh", 2), opt.get("xp", 9)
    spc_rd = [I(f"ds_read_b128 {a4(SPC+8*p+4*h)}, v{vW[0]} offset:{10240*p+4096+1024*h}") for p in range(4) for h in range(2)]
    greg = lambda g: (0, 1, 0)[g >> 2]
    def Bop(g, j, u, first=False):
        if first and opt.get("c0h") and 0 < g < 4: return "v", (((64, 68, 72), (76, 80, 84)), ((88, 92, 96), (100, 104, 108)), ((32, 36, 40), (44, 216, 220)))[g - 1][u][j]
        if first == 0 and opt.get("e4") and g in (2, 3):
            a_, y_ = ACC[0], YN[0]; return "v", (((a_, a_ + 4, a_ + 8), (a_ + 12, a_ + 32, a_ + 36)), ((y_ + 8, y_ + 12, y_ + 16), (y_ + 20, a_ + 40, a_ + 44)))[g - 2][u][j]
        if g % 2 == 0: return "a", WR + 12 * u + 4 * j
        return "v", ((Y[0], Y[0] + 4, Y[0] + 8), (Y[0] + 12, G[0], G[0] + 4))[u][j]
    opd = lambda fr, n=4: f"{fr[0]}[{fr[1]}:{fr[1]+n-1}]"
    def rdB(g, j, u, first=False):
        if g > 11: return []
        i = I(f"ds_read_b128 {opd(Bop(g, j, u, first))}, v{vPB+(4 if j else 0)+((g&3)^(3 if j == 2 else 0))} offset:{REG*greg(g)+SUB*u+(1280 if j == 2 else 0)}")
        return [tag(i, [RG(greg(g))], [RD(greg(g))])]
    UO = ((1, 0), (1, 1), (0, 1), (0, 0))
    def rdR(b): return [tag(I(f"ds_read_b128 {r4(cR[b]+8*u+4*o)}, v{vRS+o} offset:{REG*greg(4*b)+SUB*u}"), [RG(greg(4*b))], [RD(greg(4*b))]) for u, o in UO]
    plB = lambda g, first=False: [x for j in range(3) for u in range(2) for x in rdB(g, j, u, first)]
    po = opt.get("po")
    xsw = opt.get("xsw")
    xs2 = opt.get("xs2")
    small = lambda: parse([x.text for x in wta + wsrd + wtouch + taba + tabld])
    S["head"] = H + ps() + ([] if xs2 else wta + wsrd + wtouch + taba) + ([] if xs2 else [0])[:0] + (parse(f"s_cmp_eq_u32 s{sW}, 3\ns_cbranch_scc1 L_nt") + tabld[:3] + parse(f"s_cmp_lg_u32 s{sW}, 0\ns_cbranch_scc1 L_nt") + tabld[3:] + parse("L_nt:") if opt.get("tsk") else [] if xs2 else tabld) + (parse(f"s_bitcmp1_b32 s2, {xsw[0]}\ns_cbranch_scc1 L_prep2") if xsw else []) + parse(f"s_cmp_ge_u32 s{sW}, 2\ns_cbranch_scc1 L_prep1")
    pc0 = pc[0]; roles = range(4 if xsw else 2)
    for pv in roles:
        w2 = pv & 1; po = xsw[1] if pv > 1 else opt["po"]; po = po[w2] if isinstance(po, tuple) else po
        pc[0] = pc0; b1_, b2_ = (4, 6) if w2 else (3, 5)
        if 1:
            ua = uaddr[w2].strip().split("\n"); ug = [y for y in ua if y.startswith("buffer")]; ua = [y for y in ua if y not in ug]
            it = {"lane": parse(lanec), "a6": parse(last) + xdma(0, 0, opt.get("dfa", dfl), [6])[0], "dm": parse([x.text for x in dmk]), "tab": parse(tables), "g": parse(ug if "g2" not in po or w2 else ug[:3]), **({"g2": parse([] if w2 else ug[3:])} if "g2" in po else {}), "t": touch(dfl), "s": None, "gp": parse([x.text for x in gfin]) if w2 else un95(0) + un95(1)}
            it.update({f"x{k}": uxpose(w2, k) for k in range(2) if f"x{k}" in po})
            it.update({f"u{k}": uload(w2, k) for k in range(9)}); it.update({f"l{k}": parse([x.text for x in luts[k]]) for k in range(4)})
            if "xt" in po: it["xt"] = parse(f"""v_mul_u32_u24 v{t+6}, 205, v{ln}
v_lshrrev_b32 v{t+6}, 10, v{t+6}
v_mad_i32_i24 v{t+7}, v{t+6}, -5, v{ln}
v_mul_u32_u24 v{t+7}, 384, v{t+7}
v_mul_u32_u24 v{t+6}, {ROW}, v{t+6}
v_cmp_gt_u32 vcc, 50, v{ln}
v_add3_u32 v{t+6}, v{t+6}, s64, v{t+7}
v_cndmask_b32 v{t+6}, v{t+8}, v{t+6}, vcc
buffer_load_dword v250, v{t+6}, {srd(sX)}, 0 offen offset:64""")
            it.update({f"a{k}": xdma(0, 0, dfl, [k])[0] for k in range(opt.get("xn", 6), 6)})
            if po.index("dm") < po.index("a6"): it["dm"] = parse(last) + it["dm"]; it["a6"] = xdma(0, 0, dfl, [6])[0]
            for n_, Gq in (("b", 1),): it.update({f"{n_}{k}": x for k, x in enumerate(xdma(Gq, Gq, opt.get("dfb", dfl)))})
            P = parse(f"L_prep{pv}:") + (parse(f"s_cmp_ge_u32 s{sW}, 2\ns_cbranch_scc1 L_prep3") if pv == 2 else []) + parse(ua); late = {}; cur = P
            for x in po.split():
                if x == "a" and xs2:
                    k_ = 1 + 2 * (pv == 2); x_ = xloop(pv)
                    S[f"pre{pv}"] = P[:k_] + x_[:1] + parse(f"s_movk_i32 s70, {xs2 - 1}\ns_mov_b32 s67, 0")
                    S[f"xm{pv}"] = parse(f"s_cmp_lg_u32 s67, 0\ns_cbranch_scc1 L_xd{pv}"); S[f"xn{pv}"] = small() + P[k_:] + parse(f"s_movk_i32 s70, {5 - xs2}\ns_mov_b32 s67, 1\ns_branch L_xl{pv}")
                    S[f"br{pv}"] = parse(f"L_xd{pv}:") + (parse(f"s_branch L_prb{pv}") if pv != 1 else []); P = cur = parse(f"L_prb{pv}:"); continue
                if x == "a": S[f"pre{pv}"] = P + xloop(pv); S[f"br{pv}"] = parse(f"s_branch L_prb{pv}") if pv != 1 else []; P = cur = parse(f"L_prb{pv}:"); continue
                if x in ("hi", "lo"): cur += parse(f"s_setprio {2 * (x == 'hi')}"); continue
                if x[0] == "p": cur = late.setdefault(int(x[1:]), []); continue
                cur += ps() if x == "s" else xs(x) if x[0] == "y" else parse(f"s_waitcnt vmcnt({x[1:]})") if x[0] == "w" else it.pop(x)
            assert list(it) == ["s"], it
        if stamp == 7: pc[0] = 0
        P += xs("p1") + st(1) + ps() + flat(uxpose(w2, k) for k in range(2) if f"x{k}" not in po)
        rk_ = lambda k: [resid_rd((q_,))[f] for q_ in (0, 2, 3, 1) for f in (2 * k, 2 * k + 1, 6 + 2 * k, 7 + 2 * k)]
        r01 = spc_rd + rk_(0) + rk_(1); RR = {b1_: r01[:20], b1_ + 1: r01[20:], b2_: rk_(2)}; b3 = opt.get("b3")
        if not b3: r01 += rk_(2); RR = {b1_: r01[:28], b1_ + 1: r01[28:]}
        c0r = plB(0, 1) + plB(3, 1)[:5] + rdR(0) + plB(1, 1) + plB(2, 1) + plB(3, 1)[5:]; c0r = c0r if opt.get("c0h") else []; RR[7] = c0r[:opt.get("c0n", 20)]; RR[8] = c0r[len(RR[7]):]
        if opt.get("la"):
            P = P[:len(P) - len(uxpose(w2, 1))]; r01 = resid_rd((0, 2, 3)) + spc_rd + resid_rd((1,)); late_x = opt["la"] == 2
            XU = {nu: [nu + 1] for nu in range(b1_ - late_x)}; XU[b1_] = [b1_ + 1, b1_ + 2]; XU.update({nu: [nu + 2] for nu in range(b1_ + 1, 7)})
            for nu in range(9):
                nx = flat(uxpose(w2, k) for k in XU.get(nu, [])); f = ufin(w2, nu); l = list(late.get(nu, [])); r = []
                if nu == b1_:
                    P += ps() + bar() + xs("p3") + ps()
                    if late_x: P += flat([m] + r01[3*k:3*k+3] for k, m in enumerate(uxpose(w2, nu)[:4])) + uxpose(w2, nu)[4:] + r01[12:18]; r01 = r01[18:]
                    if not w2: x_ = un95(2); P += x_[:4]; nx += x_[4:]
                    r = r01[:len(r01) // 2]
                if nu == b1_ + 1: r = r01[len(r01) // 2:]
                one = nu < b1_
                if one: P += nx[:1]; nx = nx[1:]
                per = -(-len(nx) // (3 if one else 4))
                for e in range(4):
                    k_ = [i.kind for i in f[e]].index("dsw"); m = nx[per*e:per*e+per]
                    P += f[e][:k_-2] + m[:-1] + f[e][k_-2:k_] + m[-1:]
                    if e == 0 and nu == b2_: P += ps() + bar() + xs("p4") + ps()
                    P += f[e][k_:k_+1] + r[len(r)*e//4:len(r)*(e+1)//4] + l[len(l)*e//4:len(l)*(e+1)//4] + f[e][k_+1:]
                P += ps()
        for nu in range(0 if opt.get("la") else 9):
            nx = uxpose(w2, nu + 2) if nu < 7 else []
            if nu == 2 and not w2: x_ = un95(2); P += x_[:4]; nx += x_[4:]
            f = ufin(w2, nu); l = list(late.get(nu, [])); r = RR.get(nu, []); ne = 2 if nu == 8 else 4
            for e in range(4):
                k_ = [i.kind for i in f[e]].index("dsw")
                P += f[e][:k_] + nx[e:e+1]
                if e == 3 and nu < 6: P += [use(*[src(nu + 3, h, s_) for h in range(2) for s_ in range(2)])]
                if e == 0 and nu in (b1_, b2_, 8 if b3 else -1): P += ps() + bar() + xs({b1_: "p3", b2_: "p4", 8: "p5"}[nu]) + ps()
                P += f[e][k_:k_+1] + r[len(r)*e//ne:len(r)*(e+1)//ne] + l[len(l)*e//4:len(l)*(e+1)//4] + f[e][k_+1:]
            P += nx[4:] + ps()
        if opt.get("now"):
            P = [i for i in P if not (i.kind == "vml" and ("s", sW1) in i.rd | {("s", x - 4) for y, x in i.rd if y == "s" and x == sW2})]
            k_ = [n_ for n_, i in enumerate(P) if i.kind == "mfma"][0]; P = P[:k_] + [i for i in P[k_:] if i.kind in ("vmd", "sml", "wait") or ("s", "m0") in i.wr or (i.kind == "vml")] + bar()
        S[f"prep{pv}"] = P + xs("p2") + (parse("s_branch L_conv0") if pv != 0 else [])
    def res(p, f): return a4(48 * POS[p][1] + 4 * f)
    sfl = opt.get("sfl", "")
    g1 = lambda f, u, o, a: mm16(T1, Y[u] + 8 * o + 4 * (f & 1), a, r4(YN[u] + 8 * (f >> 1) + 4 * o), "0" if f < 2 else None)
    Areg = lambda u, o, rb: ACC[u] + 16 * (rb >> 1) + 8 * o + 4 * (rb & 1)
    BUF = [U + 16 * k for k in [(0, 2, 1)[j % 3] for j in range(19)] + [1, 2, 0, 2, 0]]
    def g2(f, u, o, a, j):
        if sg: return I(f"v_smfmac_f32_16x16x64_bf16 {r4(Areg(u, o, f - 6))}, {a}, v[{BUF[j]+8*o}:{BUF[j]+8*o+7}], v{vIDX} abid:1")
        return mm16("bf16", Areg(u, o, f - 6), a, r4(G[u] + 4 * o))
    gm = lambda f, u, o, a, j: g1(f, u, o, a) if f < 6 else g2(f, u, o, a, j - 2 + u)
    def epi_mm(u, o): return [g2(f, u, o, res(11, f), 23) for f in range(6, 12)]
    def epi(u, o, b, fl):
        d = Areg(u, o, 2 * b)
        return parse([f"v_cvt_pk_bf16_f32 v{d+e}, v{d+2*e}, v{d+2*e+1}" for e in range(4)] +
                     [f"buffer_store_dwordx4 {r4(d)}, v{vO}, {srd(sO)}, s{sOF[2*u+o]} offen offset:{64*b} {fl}".rstrip()])
    rdAD = lambda g: [I(f"ds_read_b128 {r4(cAD+4*(g&1))}, v{vA} offset:{256*g}")] if g < 12 else []
    rdAS = lambda g: [I(f"ds_read_b128 {r4(cAS+4*(g&1))}, v{vA} offset:{256*g+16}")] if g < 12 else []
    def mmR(b):
        return [I(f"v_mfma_f32_16x16x16_bf16 {r4(Areg(u, o, 2*b+s))}, v[{vID}:{vID+1}], v[{cR[b]+8*u+4*o+2*s}:{cR[b]+8*u+4*o+2*s+1}], {r4(Areg(0, 0, 2*b+s))}") for u, o in UO for s in range(2)]
    cinit = lambda b: [I(f"ds_read_b128 {r4(Areg(0, 0, 2*b+s))}, v{vCT} offset:{128*b+16*s}") for s in range(2)]
    def cmm(g, j, u, first):
        cc = r4(Creg(u, g))
        if j == 0: return I(f"v_mfma_f32_16x16x32_bf16 {cc}, {r4(cAD+4*(g&1))}, {opd(Bop(g, 0, u, first))}, 0")
        return I(f"v_smfmac_f32_16x16x64_bf16 {cc}, {r4(cAS+4*(g&1))}, {opd(Bop(g, 1, u, first), 8)}, v{vIDX}")
    def cvt16(u, g):
        cc = Creg(u, g); d = Creg(u, g & ~1) + 2 * (g & 1)
        return parse([f"v_cvt_pkrtz_f16_f32 v{d+e}, v{cc+2*e}, v{cc+2*e+1}" for e in range(2)])
    def dots(u, g):
        d = Creg(u, g & ~1) + 2 * (g & 1); vQ = vSQ[u] + 1
        c = lambda r, e: 0 if g == 0 and e == 0 else f"v{r}"
        return parse([x for e in range(2) for x in [f"v_dot2_f32_f16 v{vQ}, v{d+e}, v{d+e}, {c(vQ, e)}"] + ([] if sm else [f"v_dot2_f32_f16 v{vQ-1}, v{d+e}, s{sONE}, {c(vQ-1, e)}"])])
    summ = lambda kk: [mm16("f16", vSM[u], a4(ONES), r4(YN[u] + 4 * kk), "0" if kk == 0 else None) for u in range(2 * sm)]
    swaps = lambda u, ks: parse([f"v_permlane16_swap_b32 v{YN[u]+8*ks+e}, v{YN[u]+8*ks+4+e}" for e in range(4)])
    DOT = ("x", "dot")
    def dbatch(gs):
        l = flat(il(dots(0, g), dots(1, g)) for g in gs)
        if l: tag(l[0], [DOT]); tag(l[-1], (), [DOT])
        return l
    def fence(l):
        for i in l:
            if i.kind == "mfma" or i.op.startswith("v_dot"):
                if i.kind == "mfma": tag(i, [DOT])
        return l
    spc = lambda p, f: p < 4 and f in (6, 7)
    uses = [(0, f) for f in range(6)]
    for p in range(8): uses += ([(p + 1, f) for f in range(6)] if p < 7 else []) + [(p, f) for f in range(6, 12)]
    uses = [x for x in uses if not spc(*x)]
    def wread(k):
        if k >= len(uses): return []
        p, f = uses[k]
        return [I(f"ds_read_b128 {a4(WR+4*(k%6))}, v{vW[p//4]} offset:{10240*p+1024*(f - 2 * (f > 5)) if p < 4 else 12288*(p-4)+1024*f}")]
    def frag(p, f):
        if p >= 8: return res(p, f), []
        if spc(p, f): return a4(SPC + 8 * p + 4 * (f - 6)), []
        k = uses.index((p, f)); return a4(WR + 4 * (k % 6)), wread(k + 6)
    db = opt.get("db", (3, 6, 9))
    def place(X, pos, items):
        for q_, x in zip(pos, items): X.setdefault(q_, []).extend(x if isinstance(x, list) else [x])
    dp = opt.get("dp", (0, 1, 2, 3, 4, 5, 6) if opt.get("e4") else (7, 8, 9, 10, 11, 12, 13))
    bst = opt.get("bst", (15, 16, 28, 32, 36, 40))
    sadd = lambda: parse(f"v_add_u32 v{vO}, s{sVO}, v{vO}\ns_mov_b32 s{sVO}, {DR}")
    def conv(first, fl=""):
        B = []; X = {}; V = {}
        nb = lambda g: (4 if g == 0 else 99 if g < 4 else g + 2) if first and opt.get("c0h") else (g + 4 if g < 2 else 99 if g < 4 else g + 2) if opt.get("e4") and not first else g + 2
        if first and not opt.get("c0h"):
            B += rdAD(0) + plB(0)[:2] + rdAS(0) + plB(0)[2:] + rdAD(1) + rdAS(1) + plB(1)
            place(X, opt.get("r00", (1, 3, 5, 7)), rdR(0)); place(X, opt.get("ci00", (12, 13)), cinit(0)); place(X, opt.get("dp0", (7, 8, 9, 10, 11, 12, 13)), xdma(2, 0, dfl))
        elif first: B += rdAD(0) + rdAS(0) + rdAD(1) + rdAS(1) + plB(5); place(X, opt.get("ci00", (15, 15)), cinit(0)); place(X, opt.get("dp0", (0, 1, 2, 3, 4, 5, 6)), xdma(2, 0, dfl))
        else:
            e = [epi(1, o, b, fl) for b in range(3) for o in range(2)]
            place(X, opt.get("emp", (7, 7, 8, 9, 10, 11)), epi_mm(1, 1))
            place(X, opt.get("ci0", (12, 13)), cinit(0))
            place(V, opt.get("epv", (2, 3, 5, 6, 7, 8)), [x[:4] for x in e])
            place(X, bst, [x[4] for x in e])
            if max(bst) < 48: place(X, [45], [sadd()])
            place(X, dp, xdma(2, 0, opt.get("dfl2", "")))
        z = "0" if first else ""
        place(X, opt.get("rp" + z, (17, 18, 19, 20, 21, 22, 23, 24)), mmR(0))
        place(X, opt.get("r1p" + z, (16, 18, 20, 22)), rdR(1))
        place(X, opt.get("cip" + z, (38, 39, 41, 42)), cinit(1) + cinit(2))
        place(X, opt.get("w0p" + z, (44, 44, 45, 45, 46, 47)), [wread(k) for k in range(4 if first else 6)])
        dbs = set(opt.get("db0", db)) | {max(db)} if first else db
        if opt.get("cst") and stamp == 1: place(X, opt["cst"], [[lq(2 + k)] for k in range(12)])
        dn = sn = 0
        for g in range(12):
            x = lambda k: X.get(4 * g + k, [])
            if g: B += il(cvt16(0, g - 1), cvt16(1, g - 1))
            B += V.get(g, [])
            B += [cmm(g, 0, 0, first)] + rdB(nb(g), 0, 0, first) + x(0) + [cmm(g, 0, 1, first)] + rdB(nb(g), 0, 1, first) + rdAD(g + 2) + x(1)
            B += [cmm(g, 1, 0, first)] + rdB(nb(g), 1, 0, first) + rdB(nb(g), 2, 0, first) + x(2) + [cmm(g, 1, 1, first)] + rdB(nb(g), 1, 1, first) + rdB(nb(g), 2, 1, first) + rdAS(g + 2) + x(3)
            if g % 2 == 0 and g: B += summ(g // 2 - 1)
            if g in dbs and g <= max(db): B += dbatch(range(dn, g)); dn = g
            while sw1 and 4 * sn + 4 <= min(dn, g & ~1): B += il(swaps(0, sn), swaps(1, sn)); sn += 1
        for i in B:
            if i.kind == "mfma": i.cap = opt.get("ccap" + z, 6)
        return fence(B)
    def lnfin(u):
        vS, vQ = vSQ[u], vSQ[u] + 1
        return parse((f"""
v_mov_b32 v{vS}, v{vQ}
v_permlane32_swap_b32 v{vS}, v{vQ}
v_add_f32 v{vQ}, v{vS}, v{vQ}
v_mul_f32 v{vS}, {hex(f2u(1/96))}, v{vSM[u]}""" if sm else f"""
v_permlane32_swap_b32 v{vS}, v{vQ}
v_add_f32 v{vS}, v{vS}, v{vQ}
v_mov_b32 v{vQ}, v{vS}
v_permlane32_swap_b32 v{vS}, v{vQ}
v_mul_f32 v{vS}, {hex(f2u(1/96))}, v{vS}""") + f"""
v_mul_f32 v{vQ}, {hex(f2u(1/96))}, v{vQ}
v_fma_f32 v{vQ}, -v{vS}, v{vS}, v{vQ}
v_max_f32 v{vQ}, 0, v{vQ}
v_add_f32 v{vQ}, {hex(f2u(1e-5))}, v{vQ}
v_rsq_f32 v{vQ}, v{vQ}
v_fma_mixlo_f16 v{vQ}, v{vQ}, s{sK}, 0
v_fma_mixhi_f16 v{vQ}, -v{vS}, v{vQ}, 0 op_sel_hi:[0,1,0]""" + (f"\nv_mov_b32 v{vS}, v{vQ}\nv_permlane16_swap_b32 v{vQ}, v{vS}" if sw1 else ""))
    nxt = parse(f"s_cmp_eq_u32 s{sT}, 3\ns_cselect_b32 s{sINC}, 0x40000000, {DR}" + (f"\ns_cselect_b32 s{sIMG}, 0x30000, s{sIMG}" if opt.get("lo3") else "")) + parse([f"v_add_u32 v{r}, s{sINC}, v{r}" for r in list(range(vDM, vDM + 7)) + [vTC] * (not opt.get("nt_"))])
    def norm(u, kk):
        p = vSQ[u] + (1 - (kk & 1) if sw1 else 1); r = YN[u] + 4 * kk; c5 = kk >= (4 if sw1 else 5)
        l = [f"v_pk_fma_f16 v{r+e}, v{r+e}, v{p}, v{p} op_sel:[0,0,1] op_sel_hi:[1,0,1]" for e in ((3, 0, 1, 2) if c5 else range(4))]
        if T1 == "bf16":
            es = (3, 0, 1, 2) if c5 else range(4); t_ = vSM[u]
            l = [f"v_fma_mix_f32 v{t_+e}, v{r+e}, v{p}, v{p} op_sel:[0,0,1] op_sel_hi:[1,1,1]" for e in es] + [f"v_fma_mix_f32 v{r+e}, v{r+e}, v{p}, v{p} op_sel:[1,0,1] op_sel_hi:[1,1,1]" for e in es]
            l += [f"v_cvt_pk_bf16_f32 v{r+e}, v{t_+e}, v{r+e}" for e in es]
        if c5: l = l[:-1] + [f"v_bfi_b32 v{r+3}, v{vMK}, v{r+3}, s{sKB}"] + l[-1:]
        return parse(l) + (swaps(u, kk >> 1) if kk & 1 and not sw1 else [])
    la, lk, ln_, mr = opt.get("lnv", (0, 6, 0, 0)); k0 = min(max(db), 10) // 4
    B = il(cvt16(0, 11), cvt16(1, 11)) + summ(5) + ([] if ln_ else nxt) + dbatch(range(max(db), 12)); m = mmR(1); r = rdR(2)
    mm_ = [m[0]] + r[:2] + [m[1]] + r[2:] + m[2:]
    sB = flat(swaps(1, ks) for ks in range(k0, 3))
    if la == 2: B += il(lnfin(0), flat(swaps(0, ks) for ks in range(k0, 3))) + (mm_ if not mr else [])
    elif la: B += il(lnfin(0), flat(swaps(u, ks) for u in range(2) for ks in range(k0, 3)) if sw1 else []) + (mm_ if not mr else [])
    else: B += (flat(il(swaps(0, ks), swaps(1, ks)) for ks in range(k0, 3)) if sw1 else []) + il(lnfin(0), lnfin(1)) + (mm_ if not mr else [])
    if opt.get("om") and sw1:
        for o in range(2):
            for ks in range(3): B += norm(0, 2 * ks + o) + [g1(f, 0, o, frag(0, f)[0]) for f in (2 * ks, 2 * ks + 1)]
    else:
        for ks in range(3): B += norm(0, 2 * ks) + norm(0, 2 * ks + 1) + [g1(f, 0, o, frag(0, f)[0]) for f in (2 * ks, 2 * ks + 1) for o in range(2)]
    if mr: B += mm_
    rest = (lnfin(1) if la == 1 else il(lnfin(1), sB) if la == 2 else []) + flat(norm(1, kk) for kk in range(6))
    nr = len(rest) - len(flat(norm(1, kk) for kk in range(lk, 6))) if lk >= 0 else max(0, 8 * (lk + 4))
    B += rest[:nr]; late0 = rest[nr:] + (nxt if ln_ else [])
    LN = fence(B)
    def sd(op, d, s): return f"{op}_sdwa v{d}, v{s} dst_sel:WORD_1 dst_unused:UNUSED_PRESERVE src0_sel:WORD_1"
    pool = list(range(U, U + 24)) + opt.get("pool", []); pk = [0]
    def take():
        pk[0] += 1; return pool[(pk[0] - 1) % len(pool)]
    def gelu(u, L, j):
        X = [i for i in range(8) if i not in L]
        V = gelu_(u, L, X)
        if not opt.get("pool"): return V
        m = {}
        for i in L + X:
            if sg: m[E + i] = BUF[j] + 2 * i; m[T + i] = BUF[j] + 2 * i + 1; m[U + i] = m[T + i] if i in L else (0, vTC)[X.index(i)]; continue
            m[T + i] = take(); m[E + i] = take(); m[U + i] = m[T + i] if i in L else take()
        import re
        return [parse([re.sub(r"\bv(\d+)\b", lambda z: f"v{m.get(int(z.group(1)), int(z.group(1)))}", i.text) for i in l]) for l in V]
    def gelu_(u, L, X):
        cvt = [f"v_cvt_pkrtz_f16_f32 v{U+i}, v{Y[u]+2*i}, v{Y[u]+2*i+1}" for i in L + X]
        sh = [f"v_pk_lshrrev_b16 v{T+i}, 3, v{U+i} op_sel_hi:[0,1]" for i in L]
        ma = [x for i in L for x in (f"v_mad_u32_u16 v{E+i}, v{T+i}, 2, s{sLUT}", f"v_alignbit_b32 v{T+i}, 1, v{T+i}, 15" if opt.get("alb") else f"v_mad_u32_u16 v{T+i}, v{T+i}, 2, s{sLUT} op_sel:[1,0,0,0]")]
        ga = [x for i in L for x in (f"ds_read_u16 v{E+i}, v{E+i}", f"ds_read_u16{'' if sg else '_d16_hi'} v{T+i}, v{T+i}" + (f" offset:{LUT - 0x20000}" if opt.get("alb") else ""))]
        fma = [f"v_pk_fma_f16 v{T+i}, v{U+i}, v{U+i}, s{sC}" for i in X]
        mul = [f"v_pk_mul_f16 v{T+i}, v{T+i}, v{U+i} neg_lo:[1,0] neg_hi:[1,0]" for i in X]
        el = [f"v_exp_f16 v{E+i}, v{T+i}" for i in X]; eh = [sd("v_exp_f16", E + i, T + i) for i in X]
        ad = [f"v_pk_fma_f16 v{E+i}, v{E+i}, s{sKK}, s{sKK}" for i in X]
        rl = [f"v_rcp_f16 v{T+i}, v{E+i}" for i in X]; rh = [sd("v_rcp_f16", T + i, E + i) for i in X]
        fin = [f"v_or_b32 v{G[u]+i}, v{E+i}, v{T+i}" if i in L else f"v_pk_mul_f16 v{G[u]+i}, v{T+i}, v{U+i}" for i in L + X]
        if 1:
            rh += [f"v_fma_mix_f32 v{E+i}, v{T+i}, v{U+i}, 0 op_sel_hi:[1,1,0]" for i in X] + [f"v_fma_mix_f32 v{T+i}, v{T+i}, v{U+i}, 0 op_sel:[1,1,0] op_sel_hi:[1,1,0]" for i in X]
            fin = fin[:len(L)] + [f"v_cvt_pk_bf16_f32 v{G[u]+i}, v{E+i}, v{T+i}" for i in X]
        if sg: fin = [f"v_cvt_pk_bf16_f32 v{r+i}, v{r+i}, v{r+i}" for i in X for r in (E, T)]
        v1 = cvt + sh + ma
        if opt.get("vch"):
            c_ = opt["vch"]; v1 = [x for k in range(0, 8, c_) for x in cvt[k:k+c_] + sh[k:k+c_] + ma[2*k:2*k+2*c_]]
            if u == 1 or opt.get("vc1"): v1 = cvt[:c_] + sh[:c_] + cvt[c_:] + [x for x in v1 if x not in cvt and x not in sh[:c_]]
        return parse(v1), parse(ga), parse(fma + mul + el + eh + ad + rl + rh), parse(fin)
    pf = xdma(1, 1, opt.get("xfl", "")) + xdma(0, 0, opt.get("xfl", "")) + [touch(opt.get("xfl", ""))]
    pp = opt.get("pfpos", [(j, 12 if j else 6) for j in range(15)])
    slots = [(p, u) for p in range(8) for u in range(2)] + [(p, u) for u in range(2) for p in range(8, 12)]
    ea = [epi(0, o, b, sfl) for b in range(3) for o in range(2)]
    XS = {}; XV = {}
    place(XS, pp, pf)
    place(XS, opt.get("ast", ((21, 6), (21, 16), (22, 2), (22, 12), (22, 22), (23, 8))), [x[4] for x in ea])
    place(XV, opt.get("asv", (21, 21, 22, 22, 22, 23)), [x[:4] for x in ea])
    place(XS, opt.get("epos", [(19, 2 + 4 * k) for k in range(6)] + [(21, 2 + 4 * k) for k in range(6)] + [(23, k) for k in (0, 2, 4, 6, 9, 10, 11, 12)]), plB(0) + plB(1) + rdAD(0) + rdAS(0) + rdAD(1) + rdAS(1) + rdR(0))
    if opt.get("e4"): place(XS, opt.get("ep4", [(23, 9 + k) for k in range(6)] + [(22, 2), (22, 6), (22, 10), (23, 15), (22, 14), (23, 16)]), plB(2) + plB(3))
    place(XS, [(23, 18 + k) for k in dp if k < 0], xdma(2, 0, opt.get("dfl2", "")))
    for c_ in ([opt["cpp"]] if opt.get("cpp") else []) + opt.get("cpq", []): x_ = cpl(); place(XV, [c_[0]], [x_[:2]]); place(XS, [c_], x_[2:])
    place(XS, [(23, 17)], [parse(f"s_add_u32 s{sT}, s{sT}, 1\ns_cmp_eq_u32 s{sT}, 4")])
    nl = opt.get("nl", [4] * 24)
    def slot(j):
        p, u = slots[j]; M = []
        if j == 0:
            for f in range(6): a, post = frag(0, f); M += [[g1(f, 1, 0, a)], [g1(f, 1, 1, a)] + post]
            M += [[x] for x in mmR(2)]
        elif j < 15:
            pp_, fs = (p + 1, range(6)) if u else (p - 1, range(6, 12)); k_ = opt.get("lead", 1)
            a_ = [[[gm(f, 0, o, frag(pp_, f)[0], j)] for o in range(2)] for f in fs]; b_ = [[[gm(f, 1, 0, frag(pp_, f)[0], j)], [gm(f, 1, 1, frag(pp_, f)[0], j)] + frag(pp_, f)[1]] for f in fs]
            M = flat(a_[:k_] + [x for z in range(6) for x in (b_[z:z+1] + a_[z+k_:z+k_+1])])
        else:
            p2, u2 = slots[j - 1]
            M = [[g2(f, u2, o, frag(p2, f)[0], j - 1)] for o in range(2) for f in range(6, 12)]
            if j < 23:
                p1, u1 = slots[j + 1]; m1 = [[g1(f, u1, o, res(p1, f))] for o in range(2) for f in range(6)]; k_, e_ = opt.get("mord", (2, 2))
                M = M[:k_] + il(m1, M[k_:12-e_]) + M[12-e_:]
        n_ = nl[j]; L = list(range(n_)) if j == 23 or opt.get("lo", 1) else list(range(8 - n_, 8))
        V1, ga, V2, fin = gelu(u, L, j)
        for x in ga: x.free = 1
        M[0] += ga
        if j == 23:
            k_ = 0 if sg else 4; em = epi_mm(1, 0); M += [fin[:k_] + [em[0]]] + [[x] for x in em[1:]]; fin = fin[k_:]
            assert n_ >= 4
        B = (V1[:opt.get("v1k", 99)] + late0 + V1[opt.get("v1k", 99):] if j == 0 else V1) + XV.get(j, [])
        if j % 2 == 0 and not opt.get('cst'): M[0].insert(1, lq(2 + j // 2))
        for k, e in enumerate(M): B += [x for x in e if x] + XS.get((j, k), [])
        return B + V2 + fin
    sp = opt.get("sp", {})
    rdreg = [{i.text for b in range(3) for i in rdR(b) + flat(plB(4 * b + g) for g in range(4)) if RG(k) in i.rd} for k in range(2)]
    mid = LN + flat(slot(j) for j in range(24))
    if opt.get("sig"):
        sig = {}; cv = conv(False, sfl); lw = {}; cnt = {}
        for i in conv(True) + wread(4) + wread(5) + mid + cv + mid + cv + mid:
            cnt[i.text] = cnt.get(i.text, 0) + 1; key = (i.text, cnt[i.text])
            sig[key] = {(r, lw.get(r)) for r in i.rd if r not in (DOT, RD(0), RD(1))}
            if i.kind == "vmd": sig[key].add(sum(v for k_, v in cnt.items() if k_ in rdreg[RG(0) not in i.wr]))
            for r in i.wr: lw[r] = key
        sig["period"] = sorted(i.text for i in cv + mid); sig["first"] = sorted(i.text for i in conv(True) if not i.op.startswith(("v_dot", "v_perm")))
        return sig
    def run(l, t):
        o, tm, t = sched.schedule(l, t, **sp); return o, tm, t
    sp0 = dict(sp, **opt.get('sp0', {}))
    c0, tc0, _ = sched.schedule(conv(True), None, **sp0)
    cv = conv(False, sfl); t_ = None
    for it in range(2):
        t0 = t_.tv if t_ else 0
        oc, tc, t_ = run(cv, t_); t1 = t_.tv
        om, tm, t_ = run(mid, t_); t2 = t_.tv
    model = dict(conv=t1 - t0, mid=t2 - t1, tile=t2 - t0)
    if opt.get("dump"):
        for x, y in list(zip(tc, oc)) + list(zip(tm, om)): print(f"{x-t0:6d} {y.text}")
    if stamp == 1:
        tt = [0, t1 - t0] + [x - t0 for x, y in zip(tm, om) if y.text.startswith("s_memtime")] + [t2 - t0]
        print("model", [b - a for a, b in zip(tt, tt[1:])])
    abl = opt.get("abl", ())
    def cls(i):
        x = i.text
        if i.kind == "dsr": return "gat" if "u16" in x else "wrd" if f"v{vW[0]} " in x or f"v{vW[1]} " in x else "crd"
        if i.kind == "mfma": return "res" if "16x16x16" in x else "g1" if any(("v", Y[0] + k) in i.wr for k in range(32)) else "g2" if ", a[" in x.split("], ")[0] + "], "[:0] + x[x.index("], "):x.index("], ")+5] else "cmm"
        if i.kind == "valu": return "tr" if i.trans else "adr" if "mad_u32_u16" in x or "lshrrev_b16" in x else "dot" if "dot2" in x else "pk" if "v_pk_" in x else "cvt" if "cvt" in x else "val"
        return i.kind
    def ablate(o, tm):
        z = [(i, t) for i, t in zip(o, tm) if cls(i) not in abl]
        if opt.get("pad"):
            z = [y for k, (i, t) in enumerate(z) for y in ([(i, t), (I(f"s_nop {opt['pad'][1]}"), t)] if i.kind == "valu" and k % opt["pad"][0] == 0 else [(i, t)])]
        if opt.get("add"):
            kind, every = opt["add"]; y = []; n_ = 0
            for i, t in z:
                if i.kind == "mfma" and "16x16x32" in i.op and i.text.split(", ")[1][0] == "a":
                    n_ += 1
                    if n_ % every == 0:
                        p_ = i.text.split(", "); b0 = i.b[0][1]
                        y.append((I({"v": f"v_xor_b32 v255, v{b0}, v{b0+1}", "p": f"v_pk_mul_f16 v255, v{b0}, v{b0+1}", "e": f"v_exp_f16 v255, v{b0}",
                                     "m": f"{i.op} a[224:227], {p_[1]}, {p_[2]}, a[224:227]", "z": f"{i.op} a[224:227], {p_[1]}, {p_[2]}, 0"}[kind]), t))
                y.append((i, t))
            z = y
        return [a for a, b in z], [b for a, b in z]
    oc, tc = ablate(oc, tc); om, tm = ablate(om, tm)
    carry = lambda l: {r for i in l if i.kind in ("dsr", "vmd") for r in i.wr}
    def cbar(l):
        bp = opt["bp"]; o = []; n_ = 0
        def blk(w):
            wt = I("s_barrier", ws=0); wt.text = "s_waitcnt lgkmcnt(0)"
            return parse(f"s_cmp_lg_u32 s{sW}, {w}\ns_cbranch_scc1 L_cb{w}") + [wt, I("s_barrier", ws=0)] + parse(f"L_cb{w}:")
        for i in l:
            if i.kind == "mfma":
                for w in range(4):
                    if bp[w] == n_: o += blk(w)
                n_ += 1
            o.append(i)
        return o
    fl7 = lambda: parse("s_waitcnt lgkmcnt(0)\nv_mov_b32 v255, 0") + flat(parse(f"s_sub_u32 s{r}, s{r}, s97\nv_writelane_b32 v255, s{r}, {k}") for k, r in enumerate((list(range(4, 20, 2)) + list(range(28, 44, 2)) + [88, 90, 92])[:pc[0]])) if stamp == 7 else []
    h0 = sched.hoist(c0, tc0, sp0, carry(c0r))
    if uni:
        rd0 = plB(0) + plB(1) + plB(2) + plB(3) + rdR(0) + rdAD(0) + rdAS(0) + rdAD(1) + rdAS(1); assert opt.get("e4") and max(dp) < 0
        d2 = xdma(2, 0, dfl); d2 = flat(d[:1] + rd0[28+k:29+k] + d[1:] for k, d in enumerate(d2)); wv = parse("s_waitcnt vmcnt(0)"); w7 = parse("s_waitcnt vmcnt(7)")
        pre0 = [rd0[:28] + wv + bar() + d2, bar() + rd0[:28] + wv + d2, rd0[:28] + wv + d2 + bar(), rd0[:14] + bar() + rd0[14:28] + wv + d2,
                bar() + rd0[:28] + d2 + w7, rd0[:14] + bar() + rd0[14:28] + d2 + w7, rd0[:22] + bar() + rd0[22:28] + d2 + w7][opt.get("pv", 4)]
        S["conv0"] = parse("L_conv0:") + ps() + (cpa if opt.get("cpp") else []) + (parse(f"s_movk_i32 s60, {opt['delay']}\nL_dl:\ns_sub_u32 s60, s60, 1\ns_cbranch_scc0 L_dl") if opt.get("delay") else []) + pre0 + st(2) + xs("m0") + ps() + fl7() + (parse("v_accvgpr_write_b32 a224, v255") if stamp in (1, 3, 7) else []) + parse("s_branch L_conv")
    else: S["conv0"] = parse("L_conv0:") + ps() + (parse("v_accvgpr_write_b32 a224, v255") if stamp == 3 else []) + cpa + [x for x in [lq(0)] if x] + ls(0, 5) + (cbar(h0) if opt.get("bp") else h0) + (parse("v_accvgpr_read_b32 v255, a224") if stamp == 3 else []) + ps() + ([] if opt.get("bp") else bar()) + wread(4) + wread(5) + (parse(f"s_mul_i32 s60, s{sW}, {opt['skew']}\nL_sk:\ns_sub_u32 s60, s60, 1\ns_cbranch_scc0 L_sk") if opt.get("skew") else []) + st(2) + xs("m0") + ps() + (parse("v_accvgpr_write_b32 a224, v255") if stamp in (1, 3) else []) + parse("s_branch L_mid")
    xc_ = flat(parse(f"s_cmp_lg_u32 s{sT}, {tt}\ns_cbranch_scc1 L_xc{tt}") + xs(f"c{tt}") + parse(f"L_xc{tt}:") for tt in range(4) if xs(f"c{tt}"))
    S["conv"] = parse("L_conv:") + xc_ + [x for x in [lq(0)] if x] + ls(0, 5) + sched.hoist(oc, tc, sp, carry(mid))
    xt_ = flat(parse(f"s_cmp_lg_u32 s{sT}, {tt}\ns_cbranch_scc1 L_xs{tt}") + xs(f"t{tt}") + parse(f"L_xs{tt}:") for tt in range(4) if xs(f"t{tt}"))
    S["mid"] = parse("L_mid:") + xt_ + [x for x in [lq(1)] if x] + ls(15, 5) + sched.hoist(om, tm, sp, carry(cv)) + lqf() + (parse(f"s_cmp_eq_u32 s{sT}, 4") if stamp in (1, 5) else []) + parse("s_cbranch_scc0 L_conv" + ("" if uni else "\ns_branch L_final"))
    fl = opt.get("sflf", sfl); e = [epi(1, o, b, fl) for o in range(2) for b in range(3)]; m = epi_mm(1, 1)
    F = parse("L_final:") + sched.schedule(flat(x[:4] for x in e[:3]) + flat([m[2*b], e[b][4], m[2*b+1]] for b in range(3)) + flat(e[3:]), None, **sp)[0]
    if opt.get("ro"):
        wg, wv, sa, sb = opt["ro"]
        F += parse("s_waitcnt vmcnt(0)") + st(7) + parse((f"s_bitcmp{1-wg[1]}_b32 s2, {wg[0]}" if isinstance(wg, tuple) else f"s_cmp_lg_u32 s2, {wg if wg >= 0 else 's2'}") + f"""
s_cbranch_scc1 L_end
s_cmp_lg_u32 s{sW}, {wv if wv >= 0 else 's'+str(sW)}
s_cbranch_scc1 L_end
s_sub_u32 s60, s{sa}, s{sb}
s_mul_i32 s60, s60, {10 if opt.get('exrt') else 1}
s_min_u32 s60, s60, 150000
s_add_u32 s60, s60, 10000
L_spin:
s_memrealtime s[62:63]
s_waitcnt lgkmcnt(0)
s_sub_u32 s61, s62, s96
s_cmp_lt_u32 s61, s60
s_cbranch_scc1 L_spin""")
    elif stamp == 6:
        pts = [97 if opt.get("cyc") else 96] + list(AR) + [100 if opt.get("cyc") else 101]
        F += parse("s_waitcnt vmcnt(0)") + st(7) + parse(f"s_load_dwordx2 s[4:5], s[0:1], 64\ns_waitcnt lgkmcnt(0)\n{mksrd(sDW, 4, 256)}\nv_mov_b32 v17, 0\ns_mov_b64 exec, 1")
        for k, (a, b) in enumerate(zip(pts, pts[1:])):
            F += parse(f"s_sub_u32 s61, s{b}, s{a}\nv_mov_b32 v16, s61\nbuffer_atomic_add v16, v17, {srd(sDW)}, 0 offen offset:{4*k}\nbuffer_atomic_umax v16, v17, {srd(sDW)}, 0 offen offset:{32+4*k}")
    elif stamp:
        F += parse("s_waitcnt vmcnt(0)") + st(7) + parse(f"""
s_load_dwordx4 s[4:7], s[0:1], 64
s_waitcnt lgkmcnt(0)
{mksrd(sDW, 4, 65536)}
{mksrd(sB1, 6, 1 << 20)}
s_lshl_b32 s60, s2, 3
s_add_u32 s60, s60, s{sW}
s_lshl_b32 s61, s60, 8
s_lshl_b32 s60, s60, 5
v_mov_b32 v17, s60
v_lshrrev_b32 v18, 2, v{vW[0]}
v_accvgpr_read_b32 v255, a224
buffer_store_dword v255, v18, {srd(sB1)}, s61 offen
""" + "\n".join((f"s_sub_u32 s61, s{96+k}, s97" if k in (2, 3, 4) else f"s_mov_b32 s61, s{96+k}") + f"\nv_mov_b32 v16, s61\nbuffer_store_dword v16, v17, {srd(sDW)}, 0 offen offset:{4*k}" for k in range(6))
 + "\n" + "\n".join(f"s_sub_u32 s61, s{88+2*k}, s{96 if opt.get('exrt') else 97}\nv_mov_b32 v16, s61\nbuffer_store_dword v16, v17, {srd(sDW)}, 0 offen offset:{24+4*k}" for k in range(2)))
    S["final"] = F + parse("L_end:\ns_endpgm")
    S["head"] = (parse("s_memrealtime s[76:77]\ns_memtime s[78:79]") if opt.get("rt0") else []) + S["head"]
    out, stats_ = resolve(S, [["head", f"pre{pr}"] + ([f"xl{pr}"] * xs2 + [f"xm{pr}", f"xn{pr}"] + [f"xl{pr}"] * (6 - xs2) + [f"xm{pr}"] if xs2 else [f"xl{pr}"] * opt.get("xn", 6)) + [f"br{pr}", f"prep{pr}", "conv0"] + ["conv"] * bool(uni) + ["mid", "conv", "mid", "conv", "mid", "final"] for pr in roles])
    if opt.get("trace0"): print(sched.simulate(out[opt["trace0"]], sp, reps=1, trace=True))
    stats_["sim0"] = dict(n=sched.simulate(out["conv0"], sp, reps=1)[0], waits=0, nops=0, port=0, mem=0)
    tt, st_, mk = sched.simulate(out["conv"] + out["mid"], sp, trace=opt.get("trace"))
    stats_["model"] = dict(n=model["conv"], waits=model["mid"], nops=model["tile"], port=tt, mem=st_)
    if mk: print("sim  ", [b - a for a, b in zip(mk, mk[1:])])
    return out, stats_

HDR = open("standalone__modern_conv_block_convnext__vision.s.ref").read().split("; Override launch")[0]
ABOUT = """; One wave per SIMD; a wave takes four 8x8-pixel tiles through: depthwise conv (MFMA, diagonal operand) -> LayerNorm -> GEMM1 -> GELU -> GEMM2 -> gamma, +x.
; GELU (tanh form): most values come from a table in LDS that every workgroup computes at its start with exp/rcp in f32.  The table has one entry for
; every sign, f16 exponent and 7 mantissa bits of the pre-activation (the precision of the bf16 tensor the reference feeds into GELU), so it covers the
; whole range and does not depend on the inputs; the other values are computed directly with exp/rcp.
; At the start the waves read the kernel's own code once (plain loads, result unused) so that later instruction fetches hit in L2.
"""
BLOCK, NVGPR = 256, 512
def emit(opt, name=KNAME, full=True):
    out, stats_ = gen(opt)
    lines = [l for n in ["head"] + [x + k for k in "0231" for x in ("pre", "xl", "xm", "xn", "br")] + ["prep" + k for k in "1230"] + (["conv0", "conv", "mid", "final"] if opt.get("uni") else ["conv0", "final", "conv", "mid"]) for l in out.get(n, [])]
    if opt.get("align"):
        import align
        lines, a = align.align_runs(lines, opt["align"]); stats_["align"] = dict(n=a, waits=0, nops=0, port=0, mem=0)
    lines.insert(-1, "L_last:")
    if opt.get("pga") is not None:
        import align
        k = lines.index("L_conv:"); n = sum(align.sizes(lines[k:])) + opt["pga"]
        lines[k:k] = ["; never executed: places the loop so that it enters no new 4 KB page once its first stores are under way", ".p2alignl 12, 0xbf810000", f".fill {(-n % 4096) // 4}, 4, 0xbf810000"]
    body = "\n".join(lines)
    if name != KNAME: body = body.replace("L_", f"L_{name}_")
    s = ""
    if full:
        s += HDR + f"; Generated by tools/gen4.py (hand-designed schedule, see that file)\n; @launch grid=(256,1,1) block=({BLOCK},1,1) lds={LDS}\n" + ABOUT
        s += '.amdgcn_target "amdgcn-amd-amdhsa--gfx950"\n'
    s += f""".text
.globl {name}
{".p2align 12" + chr(10) + ".fill %d, 4, 0xbf800000" % (opt["org"] // 4) + chr(10) if opt.get("org") is not None else ""}.p2align 8
.type {name},@function
{name}:
{body}
.section .rodata,"a"
.p2align 6
.amdhsa_kernel {name}
  .amdhsa_next_free_vgpr {NVGPR}
  .amdhsa_next_free_sgpr 102
  .amdhsa_accum_offset 256
  .amdhsa_group_segment_fixed_size 0
  .amdhsa_kernarg_size 80
  .amdhsa_user_sgpr_count 2
  .amdhsa_user_sgpr_kernarg_segment_ptr 1
  .amdhsa_system_sgpr_workgroup_id_x 1
.end_amdhsa_kernel
"""
    return s, stats_

DEFAULT = dict(sfl='sc0 sc1', dfl='', uni=1, pga=1024, bou=1, nl=[7]*16+[8]*8, vch=2, pool=[248, 249, 250, 251, 252, 253, 0], sp={'vlat': 700, 'cap': 2, 'pace': 40},
    po='g a a6 dm lane l0 l1 l2 l3 tab gp u0 u1 u2 u3 u4 u5 p0 u6 p1 u7 p2 u8 p3 b0 b1 b2 b3 p4 b4 b5 b6 t')
BASE = dict(DEFAULT, uni=0)
DEFAULT.update(eval(open("tuned4.txt").read()))
if __name__ == "__main__":
    if len(sys.argv) > 1:
        import os; os.makedirs("var", exist_ok=True)
        for a in sys.argv[1:]:
            n, o = a.split(":", 1); d = dict(DEFAULT); d.update(eval(o) if o[0] == '{' else dict(eval(open(o.split('+')[0]).read()), **(eval(o.split('+', 1)[1]) if '+' in o else {})))
            s, st_ = emit(d); open(f"var/{n}.s", "w").write(s)
            print(n, {k: (v['n'], v['waits'], v['nops'], v['port'], v['mem']) for k, v in st_.items()})
        sys.exit(0)
    s, st_ = emit(DEFAULT)
    open("standalone__modern_conv_block_convnext__vision.s", "w").write(s)
    for n, v in st_.items(): print(n, v)
```
